```python
import torch

def _softmax(x, axis=-1):
    return torch.softmax(x, dim=axis)
def _gelu(x):
    return torch.nn.functional.gelu(x, approximate="tanh")
def _silu(x):
    return torch.nn.functional.silu(x)
def _sigmoid(x):
    return torch.sigmoid(x)
def _layernorm(x, axis=-1, eps=1e-5):
    m = x.mean(dim=axis, keepdim=True)
    v = x.var(dim=axis, keepdim=True, unbiased=False)
    return (x - m) / torch.sqrt(v + eps)
def _scatter_add(tgt, idx, src, axis=0):
    return tgt.clone().index_add_(axis, idx, src)
def _segment_sum(src, seg, n):
    out = torch.zeros((n,) + src.shape[1:], dtype=src.dtype)
    return out.index_add_(0, seg, src)
def _pad(x, pw):
    flat = tuple(v for pair in reversed(pw) for v in pair)
    return torch.nn.functional.pad(x, flat)

kernel_name = 'sequential_preLN__ssm_conv_h3__glu_gated_bilinear__prompt'

def setup_inputs():

    _w = (lambda a: (lambda t: t.to(torch.bfloat16) if t.is_floating_point() else t)(torch.as_tensor(a)))
    def _A_setup():
        B, S, D = 1, 2048, 1024
        ks = 4
        return {
            "q": _w((lambda *s: torch.randn(*s, dtype=torch.bfloat16) * 0.05)(B, S, D)),
            "k": _w((lambda *s: torch.randn(*s, dtype=torch.bfloat16) * 0.2)(B, S, D)),
            "v": _w((lambda *s: torch.randn(*s, dtype=torch.bfloat16) * 0.2)(B, S, D)),
            "shift_k": _w((lambda *s: torch.randn(*s, dtype=torch.bfloat16) * 0.2)(D, ks) * 0.5),
            "ssm_k": _w((lambda *s: torch.randn(*s, dtype=torch.bfloat16) * 0.4)(D, S) * (1.0 / S ** 0.5)),
            "ssm_D": _w((lambda *s: torch.randn(*s, dtype=torch.bfloat16) * 0.2)(D)),
        }
    _A_in = _A_setup()

    def _B_setup():
        B, S, D, F = 1, 2048, 1024, 3584
        return {
            "x": _w((lambda *s: torch.randn(*s, dtype=torch.bfloat16) * 0.05)(B, S, D)),
            "w_gate": _w((lambda *s: torch.randn(*s, dtype=torch.bfloat16) * 0.2)(D, F) * (D ** -0.5)),
            "w_up": _w((lambda *s: torch.randn(*s, dtype=torch.bfloat16) * 0.2)(D, F) * (D ** -0.5)),
            "w_down": _w((lambda *s: torch.randn(*s, dtype=torch.bfloat16) * 0.2)(F, D) * (F ** -0.5)),
        }
    _B_in = _B_setup()

    return {
        "A_q": _A_in["q"],
        "A_k": _A_in["k"],
        "A_v": _A_in["v"],
        "A_shift_k": _A_in["shift_k"],
        "A_ssm_k": _A_in["ssm_k"],
        "A_ssm_D": _A_in["ssm_D"],
        "B_x": _B_in["x"],
        "B_w_gate": _B_in["w_gate"],
        "B_w_up": _B_in["w_up"],
        "B_w_down": _B_in["w_down"],
    }

def reference(A_q, A_k, A_v, A_shift_k, A_ssm_k, A_ssm_D, B_x, B_w_gate, B_w_up, B_w_down):
    def _A_ref(q, k, v, shift_k, ssm_k, ssm_D):
        B, S, D = q.shape
        ks = shift_k.shape[-1]
        k_pad = _pad(k, ((0, 0), (ks - 1, 0), (0, 0)))
        k_shift = torch.zeros_like(k)
        for t in range(ks):
            k_shift = k_shift + k_pad[:, t:t + S, :] * shift_k[:, ks - 1 - t][None, None, :]
        kv = k_shift * v
        L = 2 * S
        kv_pad = _pad(kv, ((0, 0), (0, S), (0, 0)))
        kf_pad = _pad(ssm_k, ((0, 0), (0, S)))
        kv_f = (lambda x, axes=(-2,-1): torch.fft.rfft2(x.float(), dim=axes))(kv_pad[:, None, :, :], axes=(1, 2))
        kf_f = (lambda x, axes=(-2,-1): torch.fft.rfft2(x.float(), dim=axes))(kf_pad[:, None, :], axes=(1, 2))
        kf_f = (lambda x, *d: x.permute(*d))(kf_f, 1, 2, 0)
        y_f = kv_f * kf_f[None, :, :, :]
        y = (lambda x, s, axes=(-2,-1): torch.fft.irfft2(x, s=s, dim=axes).to(torch.bfloat16))(y_f, (1, L), axes=(1, 2))[:, 0, :S, :]
        y = y + kv * ssm_D[None, None, :]
        return q * y

    def _B_ref(x, w_gate, w_up, w_down):
        g = torch.einsum("bsd,df->bsf", x, w_gate)
        u = torch.einsum("bsd,df->bsf", x, w_up)
        h = g * u
        return torch.einsum("bsf,fd->bsd", h, w_down)

    x = A_q
    h = x + _A_ref(_layernorm(x, axis=-1), A_k, A_v, A_shift_k, A_ssm_k, A_ssm_D)
    h2 = h + _B_ref(_layernorm(h, axis=-1), B_w_gate, B_w_up, B_w_down)
    return h2
```

```python
KNAME = "sequential_preLN__ssm_conv_h3__glu_gated_bilinear__prompt"

class Asm:
    def __init__(self):
        self.lines = []
        self.uid = 0
    def __call__(self, s=""):
        for l in s.split("\n"):
            self.lines.append("    " + l.strip() if l.strip() and not l.strip().endswith(":") else l.strip())
    def label(self, name):
        self.lines.append(name + ":")
    def new_label(self, stem):
        self.uid += 1
        return "L_%s_%d" % (stem, self.uid)
    def text(self):
        return "\n".join(self.lines) + "\n"

def vr(a, n=1):
    return "v%d" % a if n == 1 else "v[%d:%d]" % (a, a + n - 1)
def ar(a, n=1):
    return "a%d" % a if n == 1 else "a[%d:%d]" % (a, a + n - 1)
def sr(a, n=1):
    return "s%d" % a if n == 1 else "s[%d:%d]" % (a, a + n - 1)

def srd(a, dst, base_pair, nbytes):
    a("s_mov_b32 s%d, s%d" % (dst, base_pair))
    a("s_and_b32 s%d, s%d, 0xffff" % (dst + 1, base_pair + 1))
    a("s_mov_b32 s%d, %s" % (dst + 2, nbytes if isinstance(nbytes, str) else hex(nbytes)))
    a("s_mov_b32 s%d, 0x00020000" % (dst + 3))

def kernel_begin(a, name):
    a.lines.append(".text")
    a.lines.append(".globl %s" % name)
    a.lines.append(".p2align 8")
    a.lines.append(".type %s,@function" % name)
    a.lines.append("%s:" % name)

def kernel_desc(name, vgpr, sgpr, accum=None):
    if accum is None:
        accum = (vgpr + 3) // 4 * 4
    return """.section .rodata,"a"
.p2align 6
.amdhsa_kernel %s
  .amdhsa_next_free_vgpr %d
  .amdhsa_next_free_sgpr %d
  .amdhsa_accum_offset %d
  .amdhsa_group_segment_fixed_size 0
  .amdhsa_kernarg_size 104
  .amdhsa_user_sgpr_count 2
  .amdhsa_user_sgpr_kernarg_segment_ptr 1
  .amdhsa_system_sgpr_workgroup_id_x 1
  .amdhsa_float_denorm_mode_32 3
.end_amdhsa_kernel
""" % (name, vgpr, sgpr, accum)

def file_header(launches, comment=""):
    out = []
    for l in comment.split("\n"):
        if l.strip():
            out.append("; " + l)
    for k, g, b, lds in launches:
        out.append("; @launch kernel=%s grid=(%d,1,1) block=(%d,1,1) lds=%d" % (k, g, b, lds))
    out.append('.amdgcn_target "amdgcn-amd-amdhsa--gfx950"')
    return "\n".join(out) + "\n"

KA = dict(q=0, k=8, v=16, shift_k=24, ssm_k=32, ssm_D=40, bx=48, wg=56, wu=64, wd=72, out=80, dbg=88, ws=96)


STAMP = 0x0F000000
def stamp_begin(a):
    a("s_memrealtime s[88:89]")
    a("s_memtime s[90:91]")
    for i in range(60, 76): a("s_mov_b32 s%d, 0" % i)
def mark(a, i):
    a("s_memtime s[%d:%d]" % (60 + 2 * i, 61 + 2 * i))
def stamp_end(a, slot, wgreg="s2", tid="v0", tmp=1):
    a("s_waitcnt vmcnt(0) lgkmcnt(0)")
    a("s_barrier")
    a("s_memrealtime s[92:93]")
    a("s_memtime s[94:95]")
    a("s_load_dwordx2 s[96:97], s[0:1], 96")
    a("s_waitcnt lgkmcnt(0)")
    a("s_mov_b32 s84, s96")
    a("s_and_b32 s85, s97, 0xffff")
    a("s_mov_b32 s86, 0x10000000")
    a("s_mov_b32 s87, 0x00020000")
    a("s_lshl_b32 s98, %s, 7" % wgreg)
    a("s_add_u32 s98, s98, 0x%x" % (STAMP + slot * 65536))
    t = (tmp + 1) // 2 * 2
    regs = [88, 89, 92, 93, 90, 91, 94, 95] + list(range(60, 76))
    for i, s in enumerate(regs):
        a("v_mov_b32 v%d, s%d" % (t + i, s))
    a("v_mov_b32 v%d, s98" % (t + 24))
    a("v_cmp_eq_u32 vcc, 0, %s" % tid)
    a("s_and_saveexec_b64 s[98:99], vcc")
    l = a.new_label("nostamp")
    a("s_cbranch_execz %s" % l)
    for i in range(6):
        a("buffer_store_dwordx4 v[%d:%d], v%d, s[84:87], 0 offen offset:%d" % (t + 4 * i, t + 4 * i + 3, t + 24, 16 * i))
    a("s_waitcnt vmcnt(0)")
    a.label(l)
```

```python
from asmlib import *
from layout import *

def emit_k1(a, name, stamp=None, opt="pf"):
    kernel_begin(a, name)
    done = name + "_done"
    a("s_cmp_ge_u32 s2, 256"); a("s_cbranch_scc1 %s" % done)
    if stamp is not None: stamp_begin(a)
    a("s_load_dwordx4 s[4:7], s[0:1], %d" % KA["k"])
    a("s_load_dwordx2 s[8:9], s[0:1], %d" % KA["shift_k"])
    a("s_load_dwordx2 s[10:11], s[0:1], %d" % KA["ws"])
    if "pf" in opt:
        a("s_load_dwordx2 s[36:37], s[0:1], %d" % KA["ssm_k"])
        a("s_load_dwordx2 s[38:39], s[0:1], %d" % KA["q"])
    a("v_and_b32 v1, 7, v0")
    a("v_lshrrev_b32 v2, 3, v0")
    a("s_lshr_b32 s12, s2, 4")
    a("s_and_b32 s13, s2, 15")
    a("s_lshl_b32 s14, s12, 18")
    a("s_lshl_b32 s15, s13, 7")
    a("s_add_u32 s14, s14, s15")
    a("v_lshlrev_b32 v3, 13, v2")
    a("v_lshl_add_u32 v3, v1, 4, v3")
    a("v_add_u32 v3, s14, v3")
    a("v_subrev_u32 v4, 6144, v3")
    a("s_lshl_b32 s15, s13, 9")
    a("v_lshlrev_b32 v5, 6, v1")
    a("v_add_u32 v5, s15, v5")
    a("s_mov_b32 s33, 4096")
    a("s_mov_b32 s34, 0xffff0000")
    a("s_waitcnt lgkmcnt(0)")
    srd(a, 16, 4, 4194304); srd(a, 20, 6, 4194304); srd(a, 24, 8, 8192)
    a("s_add_u32 s10, s10, %d" % WS_XRT); a("s_addc_u32 s11, s11, 0")
    srd(a, 28, 10, 4194304)
    KR, VR, SK = 8, 36, 52
    def ld(dst, voff, s, soff, off):
        a("buffer_load_dwordx4 v[%d:%d], v%d, s[%d:%d], %s offen%s" % (dst, dst + 3, voff, s, s + 3, soff, " offset:%d" % off if off else ""))
    for i in range(4): ld(SK + 4 * i, 5, 24, "0", 16 * i)
    ld(KR + 0, 4, 16, "0", 0); ld(KR + 4, 4, 16, "0", 2048); ld(KR + 8, 4, 16, "s33", 0)
    ld(KR + 12, 3, 16, "0", 0); ld(KR + 16, 3, 16, "0", 2048); ld(KR + 20, 3, 16, "s33", 0); ld(KR + 24, 3, 16, "s33", 2048)
    ld(VR + 0, 3, 20, "0", 0); ld(VR + 4, 3, 20, "0", 2048); ld(VR + 8, 3, 20, "s33", 0); ld(VR + 12, 3, 20, "s33", 2048)
    a("v_sub_u32 v6, 31, v2"); a("v_lshlrev_b32 v7, 1, v1"); a("v_xor_b32 v6, v6, v7"); a("v_lshlrev_b32 v6, 3, v6")
    a("v_lshl_add_u32 v6, v1, 11, v6")
    W, K, V, O = 70, 74, 82, 86
    def unpack(dst, src, hi):
        if hi: a("v_and_b32 v%d, s34, v%d" % (dst, src))
        else: a("v_lshlrev_b32 v%d, 16, v%d" % (dst, src))
    a("s_waitcnt vmcnt(0)")
    if "pf" in opt:
        srd(a, 40, 36, 4194304); srd(a, 44, 38, 4194304)
        a("s_lshl_b32 s15, s2, 14")
        a("v_and_b32 v94, 0x7f, v0"); a("v_lshlrev_b32 v94, 7, v94"); a("v_add_u32 v94, s15, v94")
        a("v_cmp_gt_u32 vcc, 128, v0")
        a("s_and_saveexec_b64 s[48:49], vcc")
        lpf = a.new_label("pf"); a("s_cbranch_execz %s" % lpf)
        a("buffer_load_dword v95, v94, s[40:43], 0 offen")
        a("buffer_load_dword v95, v94, s[44:47], 0 offen")
        a.label(lpf)
        a("s_mov_b64 exec, s[48:49]")
    for c in range(8):
        d, hi = c >> 1, c & 1
        unpack(W + 0, SK + 2 * c, 0); unpack(W + 1, SK + 2 * c, 1); unpack(W + 2, SK + 2 * c + 1, 0); unpack(W + 3, SK + 2 * c + 1, 1)
        for i in range(7): unpack(K + i, KR + 4 * i + d, hi)
        for j in range(4): unpack(V + j, VR + 4 * j + d, hi)
        for j in range(4): a("v_mul_f32 v%d, v%d, v%d" % (O + j, K + j, W + 3))
        for tap in (1, 2, 3):
            for j in range(4): a("v_fmac_f32 v%d, v%d, v%d" % (O + j, K + j + tap, W + 3 - tap))
        for j in range(4): a("v_mul_f32 v%d, v%d, v%d" % (O + j, O + j, V + j))
        P = 90 + 2 * (c & 1)
        a("v_cvt_pk_bf16_f32 v%d, v%d, v%d" % (P, O + 3, O + 2))
        a("v_cvt_pk_bf16_f32 v%d, v%d, v%d" % (P + 1, O + 1, O + 0))
        a("ds_write_b64 v6, v[%d:%d] offset:%d" % (P, P + 1, c * 256))
    a("v_lshrrev_b32 v10, 4, v0"); a("v_and_b32 v11, 15, v0"); a("v_lshrrev_b32 v12, 7, v0")
    a("s_lshl_b32 s14, s13, 18"); a("s_lshl_b32 s15, s12, 8"); a("s_sub_u32 s14, s14, s15"); a("s_add_u32 s14, s14, 3840")
    a("v_lshlrev_b32 v13, 12, v10"); a("v_lshl_add_u32 v13, v11, 4, v13"); a("v_add_u32 v13, s14, v13")
    a("s_waitcnt lgkmcnt(0)")
    a("s_barrier")
    for i in range(4):
        a("v_add_u32 v14, %d, v12" % (2 * i)); a("v_xor_b32 v14, v14, v11"); a("v_lshlrev_b32 v14, 4, v14")
        a("v_lshl_add_u32 v14, v10, 8, v14")
        a("ds_read_b128 v[%d:%d], v14 offset:%d" % (16 + 4 * i, 19 + 4 * i, i * 4096))
    for i in range(4):
        a("s_mov_b32 s15, %d" % (i * 16 * 4096))
        a("s_waitcnt lgkmcnt(%d)" % (3 - i))
        a("buffer_store_dwordx4 v[%d:%d], v13, s[28:31], s15 offen" % (16 + 4 * i, 19 + 4 * i))
    if stamp is not None: stamp_end(a, stamp, tmp=40)
    a.label(done)
    a("s_endpgm")
    return dict(name=name, grid=256, block=256, lds=16384, vgpr=96, sgpr=102)
```

```python
import sys, importlib
sys.path.insert(0, "gen")
from asmlib import *
from layout import *
import k1
def build(parts, stamps=False):
    a = Asm(); L = []; D = ""
    for i, part in enumerate(parts):
        mod, fn, name = part[:3]
        kw = part[3] if len(part) > 3 else {}
        r = getattr(mod, fn)(a, name, stamp=(i if stamps else None), **kw)
        L.append((r["name"], r["grid"], r["block"], r["lds"]))
        D += kernel_desc(r["name"], r["vgpr"], r["sgpr"], r.get("accum"))
    hdr = "generated by gen/gen.py (hand-written generator)"
    return file_header(L, hdr) + a.text() + D
if __name__ == "__main__":
    out = sys.argv[1]; which = sys.argv[2].split(","); stamps = len(sys.argv) > 3 and sys.argv[3] == "stamps"
    table = {}
    table["k1"] = (k1, "emit_k1", "k1_kernel")
    for n in ("k2", "k3", "k4", "k5"):
        try:
            m = importlib.import_module(n); table[n] = (m, "emit_" + n, n + "_kernel")
        except ImportError as e:
            pass
    open(out, "w").write(build([table[w] for w in which], stamps))
```

```python
from asmlib import *
from layout import *

P_Q, P_K, P_V, P_SK, P_SSMK, P_SSMD, P_WG, P_WU, P_WD, P_OUT, P_DBG, P_WS = 4, 6, 8, 10, 12, 14, 18, 20, 22, 24, 26, 28
S_WAVE, S_X, S_J = 30, 31, 3
RA, RB, RC, RD, RE, RS = 32, 36, 40, 44, 48, 52
S_MASK, S_EPS = 56, 57
SPIN_MAX = 1 << 17

KCOPY = 4160; XB0 = 4 * KCOPY; XSTR = 4576; WREG = 25856
CSTG = 4 * WREG
PSTG = CSTG + 17408
G1_STAGE = 28672; G1_NSLOT = 5
G2_STAGE = 16384; G2_NSLOT = 5
LDS_TOTAL = G1_STAGE * G1_NSLOT

class Gen:
    def __init__(self, opt="", diag=False):
        self.a = Asm(); self.opt = set(opt.split(",")); self.diag = diag
    def mark(self, i):
        if not self.diag: return
        a = self.a
        a("s_memtime s[98:99]"); a("s_waitcnt lgkmcnt(0)")
        a("v_accvgpr_read_b32 v1, a255"); a("s_nop 1")
        a("v_writelane_b32 v1, s98, %d" % (2 * i)); a("v_writelane_b32 v1, s99, %d" % (2 * i + 1))
        a("s_nop 1"); a("v_accvgpr_write_b32 a255, v1")
    def ws_srd(self, dst, off, size):
        a = self.a
        a("s_add_u32 s%d, s%d, 0x%x" % (dst, P_WS, off)); a("s_addc_u32 s%d, s%d, 0" % (dst + 1, P_WS + 1))
        a("s_and_b32 s%d, s%d, 0xffff" % (dst + 1, dst + 1)); a("s_mov_b32 s%d, 0x%x" % (dst + 2, size)); a("s_mov_b32 s%d, 0x00020000" % (dst + 3))
    def in_srd(self, dst, ptr, size, soff=None):
        a = self.a
        if soff is None:
            srd(a, dst, ptr, size)
        else:
            a("s_add_u32 s%d, s%d, s%d" % (dst, ptr, soff)); a("s_addc_u32 s%d, s%d, 0" % (dst + 1, ptr + 1))
            a("s_and_b32 s%d, s%d, 0xffff" % (dst + 1, dst + 1)); a("s_mov_b32 s%d, 0x%x" % (dst + 2, size)); a("s_mov_b32 s%d, 0x00020000" % (dst + 3))
    def arrive(self, line_sgpr, check_init=None):
        a = self.a
        a("s_waitcnt vmcnt(0)")
        a("s_barrier")
        sk = a.new_label("arr")
        a("s_cmp_lg_u32 s%d, 0" % S_WAVE); a("s_cbranch_scc1 %s" % sk)
        if check_init is not None:
            ok = a.new_label("ini"); lp = a.new_label("inip")
            a("s_mov_b32 s59, 0")
            a.label(lp)
            a("v_readfirstlane_b32 s58, v%d" % check_init)
            a("s_cmp_lg_u32 s58, 0"); a("s_cbranch_scc1 %s" % ok)
            a("s_add_u32 s59, s59, 1"); a("s_cmp_gt_u32 s59, %d" % SPIN_MAX); a("s_cbranch_scc1 %s" % ok)
            a("v_mov_b32 v6, 0")
            a("buffer_load_dword v%d, v6, s[%d:%d], 0 offen sc1" % (check_init, RE, RE + 3))
            a("s_waitcnt vmcnt(0)")
            a("s_branch %s" % lp)
            a.label(ok)
        a("v_mov_b32 v6, 1"); a("v_mov_b32 v7, s%d" % line_sgpr)
        a("s_mov_b64 exec, 1")
        a("buffer_atomic_add v6, v7, s[%d:%d], 0 offen" % (RS, RS + 3))
        a("s_mov_b64 exec, -1")
        a.label(sk)
    def wait(self, line_sgpr, nlines, target):
        a = self.a
        sk = a.new_label("wt"); lp = a.new_label("wtp")
        a("s_cmp_lg_u32 s%d, 0" % S_WAVE); a("s_cbranch_scc1 %s" % sk)
        a("v_min_u32 v6, %d, v2" % (nlines - 1)); a("v_lshlrev_b32 v6, 7, v6"); a("v_add_u32 v6, s%d, v6" % line_sgpr)
        a("s_mov_b32 s59, 0")
        a.label(lp)
        a("buffer_load_dword v7, v6, s[%d:%d], 0 offen sc1" % (RS, RS + 3))
        a("s_add_u32 s59, s59, 1")
        a("s_waitcnt vmcnt(0)")
        a("v_cmp_gt_u32 vcc, %d, v7" % target)
        a("s_cmp_gt_u32 s59, %d" % SPIN_MAX); a("s_cbranch_scc1 %s" % sk)
        a("s_cbranch_vccz %s" % sk)
        a("s_sleep 1")
        a("s_branch %s" % lp)
        a.label(sk)
        a("s_barrier")

    def entry(self, name):
        a = self.a
        kernel_begin(a, name)
        a("s_cmp_ge_u32 s2, 256"); a("s_cbranch_scc1 %s_done" % name)
        if self.diag:
            a("s_memrealtime s[94:95]"); a("s_memtime s[96:97]"); a("v_accvgpr_write_b32 a255, 0")
        a("s_load_dwordx16 s[4:19], s[0:1], 0")
        a("s_load_dwordx8 s[20:27], s[0:1], 64")
        a("s_load_dwordx2 s[28:29], s[0:1], 96")
        a("v_lshrrev_b32 v1, 6, v0")
        a("v_and_b32 v2, 63, v0")
        a("v_readfirstlane_b32 s%d, v1" % S_WAVE)
        a("s_and_b32 s%d, s2, 7" % S_X); a("s_lshr_b32 s%d, s2, 3" % S_J)
        a("s_mov_b32 s%d, 0xffff0000" % S_MASK); a("s_mov_b32 s%d, 0x3727c5ac" % S_EPS)

    def prep(self):
        a = self.a
        a("v_and_b32 v8, 7, v0")
        a("v_lshrrev_b32 v9, 3, v0")
        a("s_lshr_b32 s60, s2, 4")
        a("s_and_b32 s61, s2, 15")
        a("s_lshl_b32 s62, s60, 18"); a("s_lshl_b32 s63, s61, 7"); a("s_add_u32 s62, s62, s63")
        a("v_lshlrev_b32 v3, 13, v9"); a("v_lshl_add_u32 v3, v8, 4, v3"); a("v_add_u32 v3, s62, v3")
        a("v_subrev_u32 v4, 6144, v3")
        a("s_lshl_b32 s63, s61, 9"); a("v_lshlrev_b32 v5, 6, v8"); a("v_add_u32 v5, s63, v5")
        a("s_mov_b32 s64, 4096")
        a("s_lshl_b32 s65, s%d, 5" % S_X); a("s_add_u32 s65, s65, s%d" % S_J)
        a("s_lshl_b32 s66, s65, 2"); a("s_add_u32 s66, s66, s%d" % S_WAVE)
        a("s_mul_i32 s67, s%d, %d" % (S_WAVE, WREG))
        a("s_lshl_b32 s68, s66, 12")
        a("v_lshlrev_b32 v10, 4, v2")
        a("v_lshlrev_b32 v11, 2, v2")
        a("v_add_u32 v12, 196, v10")
        a("s_lshl_b32 s69, s2, 3"); a("s_lshl_b32 s70, s%d, 1" % S_WAVE); a("s_add_u32 s69, s69, s70"); a("s_lshl_b32 s70, s69, 11")
        a("v_lshlrev_b32 v13, 3, v2")
        a("s_waitcnt lgkmcnt(0)")
        self.ws_srd(RS, WS_SYNC, 65536)
        ni = a.new_label("noinit")
        a("s_or_b32 s58, s2, s%d" % S_WAVE); a("s_cmp_lg_u32 s58, 0"); a("s_cbranch_scc1 %s" % ni)
        a("v_lshlrev_b32 v6, 7, v2"); a("v_mov_b32 v7, 0")
        for i in range(5):
            a("s_mov_b32 s58, %d" % (8192 * i))
            a("buffer_store_dword v7, v6, s[%d:%d], s58 offen sc1" % (RS, RS + 3))
        a.label(ni)
        self.in_srd(RA, P_K, 4194304); self.in_srd(RB, P_V, 4194304); self.in_srd(RC, P_SK, 8192)
        KR, VR, SK = 16, 44, 60
        nt = "nt" if "p1nt" in self.opt else ""
        def ld(dst, voff, s, soff, off, fl=""):
            a("buffer_load_dwordx4 v[%d:%d], v%d, s[%d:%d], %s offen%s %s" % (dst, dst + 3, voff, s, s + 3, soff, " offset:%d" % off if off else "", fl))
        for i in range(4): ld(SK + 4 * i, 5, RC, "0", 16 * i)
        ld(KR + 0, 4, RA, "0", 0, nt); ld(KR + 4, 4, RA, "0", 2048, nt); ld(KR + 8, 4, RA, "s64", 0, nt)
        ld(KR + 12, 3, RA, "0", 0, nt); ld(KR + 16, 3, RA, "0", 2048, nt); ld(KR + 20, 3, RA, "s64", 0, nt); ld(KR + 24, 3, RA, "s64", 2048, nt)
        ld(VR + 0, 3, RB, "0", 0, nt); ld(VR + 4, 3, RB, "0", 2048, nt); ld(VR + 8, 3, RB, "s64", 0, nt); ld(VR + 12, 3, RB, "s64", 2048, nt)
        self.in_srd(RD, P_SSMK, 4096, 68)
        for phi in range(4):
            a("v_add_u32 v7, %d, v11" % (4 * phi - 60))
            a("s_add_u32 m0, s67, %d" % (phi * KCOPY))
            a("s_mov_b32 s58, %d" % (4 * phi))
            a("buffer_load_dword v7, s[%d:%d], 0 offen lds" % (RD, RD + 3))
            a("s_add_u32 m0, s67, %d" % (phi * KCOPY + 256))
            a("s_nop 0")
            for i in range(3):
                a("buffer_load_dwordx4 v12, s[%d:%d], s58 offen offset:%d lds" % (RD, RD + 3, 1024 * i))
            a("s_mov_b32 exec_hi, 0x7ffff")
            a("buffer_load_dwordx4 v12, s[%d:%d], s58 offen offset:3072 lds" % (RD, RD + 3))
            a("s_mov_b32 exec_hi, -1")
        self.in_srd(RD, P_Q, 4194304)
        for tok in range(2):
            for i in range(4):
                r = 160 + 8 * tok + 2 * i
                a("buffer_load_dwordx2 a[%d:%d], v13, s[%d:%d], s70 offen offset:%d" % (r, r + 1, RD, RD + 3, 512 * i + 2048 * tok))
        a("s_lshr_b32 s58, s66, 1"); a("s_lshl_b32 s58, s58, 2")
        a("s_load_dword s71, s[%d:%d], s58" % (P_SSMD, P_SSMD + 1))
        self.ws_srd(RC, WS_XRT, 4194304)
        self.in_srd(RE, P_DBG, 256)
        a("v_sub_u32 v6, 31, v9"); a("v_lshlrev_b32 v7, 1, v8"); a("v_xor_b32 v6, v6, v7"); a("v_lshlrev_b32 v6, 3, v6")
        a("v_lshl_add_u32 v6, v8, 11, v6"); a("v_add_u32 v14, %d, v6" % PSTG)
        W, K, V, O = 80, 84, 92, 96
        def unpack(dst, src, hi):
            if hi: a("v_and_b32 v%d, s%d, v%d" % (dst, S_MASK, src))
            else: a("v_lshlrev_b32 v%d, 16, v%d" % (dst, src))
        a("s_waitcnt vmcnt(28)")
        ni = a.new_label("noflag")
        a("s_or_b32 s58, s2, s%d" % S_WAVE); a("s_cmp_lg_u32 s58, 0"); a("s_cbranch_scc1 %s" % ni)
        a("v_mov_b32 v6, 0"); a("v_mov_b32 v7, 1")
        a("s_mov_b64 exec, 1")
        a("buffer_store_dword v7, v6, s[%d:%d], 0 offen sc1" % (RE, RE + 3))
        a("s_mov_b64 exec, -1")
        a.label(ni)
        self.mark(0)
        for c in range(8):
            d, hi = c >> 1, c & 1
            unpack(W + 0, SK + 2 * c, 0); unpack(W + 1, SK + 2 * c, 1); unpack(W + 2, SK + 2 * c + 1, 0); unpack(W + 3, SK + 2 * c + 1, 1)
            for i in range(7): unpack(K + i, KR + 4 * i + d, hi)
            for j in range(4): unpack(V + j, VR + 4 * j + d, hi)
            for j in range(4): a("v_mul_f32 v%d, v%d, v%d" % (O + j, K + j, W + 3))
            for tap in (1, 2, 3):
                for j in range(4): a("v_fmac_f32 v%d, v%d, v%d" % (O + j, K + j + tap, W + 3 - tap))
            for j in range(4): a("v_mul_f32 v%d, v%d, v%d" % (O + j, O + j, V + j))
            P = 100 + 2 * (c & 1)
            a("v_cvt_pk_bf16_f32 v%d, v%d, v%d" % (P, O + 3, O + 2))
            a("v_cvt_pk_bf16_f32 v%d, v%d, v%d" % (P + 1, O + 1, O + 0))
            a("ds_write_b64 v14, v[%d:%d] offset:%d" % (P, P + 1, c * 256))
        a("v_lshrrev_b32 v16, 4, v0"); a("v_and_b32 v17, 15, v0"); a("v_lshrrev_b32 v18, 7, v0")
        a("s_lshl_b32 s62, s61, 18"); a("s_lshl_b32 s63, s60, 8"); a("s_sub_u32 s62, s62, s63"); a("s_add_u32 s62, s62, 3840")
        a("v_lshlrev_b32 v19, 12, v16"); a("v_lshl_add_u32 v19, v17, 4, v19"); a("v_add_u32 v19, s62, v19")
        a("s_waitcnt lgkmcnt(0)")
        a("s_barrier")
        for i in range(4):
            a("v_add_u32 v20, %d, v18" % (2 * i)); a("v_xor_b32 v20, v20, v17"); a("v_lshlrev_b32 v20, 4, v20")
            a("v_lshl_add_u32 v20, v16, 8, v20"); a("v_add_u32 v20, %d, v20" % PSTG)
            a("ds_read_b128 v[%d:%d], v20 offset:%d" % (24 + 4 * i, 27 + 4 * i, i * 4096))
        a("v_mov_b32 v6, 0")
        a("buffer_load_dword v15, v6, s[%d:%d], 0 offen sc1" % (RE, RE + 3))
        for i in range(4):
            a("s_mov_b32 s63, %d" % (i * 16 * 4096))
            a("s_waitcnt lgkmcnt(%d)" % (3 - i))
            a("buffer_store_dwordx4 v[%d:%d], v19, s[%d:%d], s63 offen sc1" % (24 + 4 * i, 27 + 4 * i, RC, RC + 3))
        self.mark(1)
        a("s_lshl_b32 s58, s61, 7"); a("s_add_u32 s60, s58, %d" % (C1 * 128))
        self.arrive(60, check_init=15)
        self.mark(2)

    def conv(self):
        a = self.a
        a("s_add_u32 s58, s68, 0x%x" % WS_XRT)
        a("s_add_u32 s%d, s%d, s58" % (RA, P_WS)); a("s_addc_u32 s%d, s%d, 0" % (RA + 1, P_WS + 1))
        a("s_and_b32 s%d, s%d, 0xffff" % (RA + 1, RA + 1)); a("s_mov_b32 s%d, 4096" % (RA + 2)); a("s_mov_b32 s%d, 0x00020000" % (RA + 3))
        self.ws_srd(RB, WS_YB, 4194304)
        a("v_and_b32 v8, 15, v2"); a("v_lshrrev_b32 v9, 4, v2")
        a("v_and_b32 v3, 3, v8"); a("v_lshrrev_b32 v4, 2, v8")
        a("v_mul_u32_u24 v12, %d, v3" % KCOPY)
        a("v_add_u32 v13, v4, v9"); a("v_lshl_add_u32 v12, v13, 4, v12"); a("v_add_u32 v12, s67, v12")
        a("v_and_b32 v13, 1, v8"); a("v_lshrrev_b32 v14, 1, v8")
        a("v_mul_u32_u24 v15, %d, v13" % XSTR); a("v_lshl_add_u32 v15, v9, 4, v15")
        a("v_lshlrev_b32 v14, 6, v14"); a("v_sub_u32 v15, v15, v14")
        a("s_add_u32 s58, s67, %d" % (XB0 + 64 * 63 - 3584)); a("v_add_u32 v14, s58, v15")
        AD = 60
        a("v_lshlrev_b32 v15, 3, v4"); a("v_lshl_add_u32 v15, v3, 1, v15"); a("v_lshl_add_u32 v15, v9, 3, v15")
        a("s_and_b32 s58, s66, 1"); a("s_lshl_b32 s58, s58, 4"); a("s_lshr_b32 s71, s71, s58"); a("s_and_b32 s71, s71, 0xffff")
        a("v_mov_b32 v1, s71")
        for dd in range(4):
            a("v_cmp_eq_u32 vcc, %d, v15" % (30 - 2 * dd)); a("s_nop 1"); a("v_cndmask_b32 v%d, 0, v1, vcc" % (AD + dd))
        a("s_add_u32 s58, s67, %d" % XB0); a("v_add_u32 v4, s58, v10")
        for r in range(56, 60): a("v_mov_b32 v%d, 0" % r)
        a("s_mov_b64 exec, 0xfffffff")
        a("ds_write_b128 v4, v[56:59] offset:4096"); a("ds_write_b128 v4, v[56:59] offset:%d" % (XSTR + 4096))
        a("s_mov_b64 exec, -1")
        a("v_add_u32 v5, 16, v10")
        a("s_lshr_b32 s58, s65, 4"); a("s_lshl_b32 s58, s58, 7"); a("s_add_u32 s60, s58, %d" % (C1 * 128))
        self.wait(60, 1, 16)
        self.mark(3)
        XD = 16
        for i in range(4):
            a("buffer_load_dwordx4 v[%d:%d], v10, s[%d:%d], 0 offen offset:%d" % (XD + 8 * i, XD + 8 * i + 3, RA, RA + 3, 1024 * i))
        for i in range(4):
            a("buffer_load_dword v%d, v5, s[%d:%d], 0 offen offset:%d" % (XD + 8 * i + 4, RA, RA + 3, 1024 * i))
        for i in range(4):
            d = XD + 8 * i
            a("s_waitcnt vmcnt(%d)" % (7 - i))
            a("ds_write_b128 v4, v[%d:%d] offset:%d" % (d, d + 3, XSTR + 1024 * i))
        for i in range(4):
            d = XD + 8 * i
            a("s_waitcnt vmcnt(%d)" % (3 - i))
            for j in range(4):
                a("v_alignbit_b32 v%d, v%d, v%d, 16" % (48 + j + 4 * (i & 1), d + j + 1, d + j))
            a("ds_write_b128 v4, v[%d:%d] offset:%d" % (48 + 4 * (i & 1), 51 + 4 * (i & 1), 1024 * i))
        if "nopf" not in self.opt:
            a("s_lshl_b32 s58, s%d, 2" % S_J); a("s_add_u32 s58, s58, s%d" % S_WAVE)
            a("s_cmp_lt_u32 s58, 64")
            a("s_cselect_b32 s%d, s%d, s%d" % (RC, P_WG, P_WU)); a("s_cselect_b32 s%d, s%d, s%d" % (RC + 1, P_WG + 1, P_WU + 1))
            a("s_and_b32 s%d, s%d, 0xffff" % (RC + 1, RC + 1)); a("s_mov_b32 s%d, %d" % (RC + 2, 1024 * 7168)); a("s_mov_b32 s%d, 0x00020000" % (RC + 3))
            a("s_and_b32 s58, s58, 63"); a("s_mul_i32 s58, s58, %d" % (16 * 7168))
            a("s_mul_i32 s59, s%d, 896" % S_X); a("s_add_u32 s58, s58, s59")
            a("s_mov_b32 s59, 9363")
            for i in range(2):
                a("v_add_u32 v1, %d, v2" % (64 * i))
                a("v_mul_u32_u24 v3, s59, v1"); a("v_lshrrev_b32 v3, 16, v3")
                a("v_mul_u32_u24 v5, 7, v3"); a("v_sub_u32 v5, v1, v5")
                a("v_mul_u32_u24 v3, 7168, v3"); a("v_lshl_add_u32 v3, v5, 7, v3"); a("v_add_u32 v3, s58, v3")
                if i == 1: a("s_mov_b32 exec_hi, 0xffff")
                a("buffer_load_dword v15, v3, s[%d:%d], 0 offen" % (RC, RC + 3))
                if i == 1: a("s_mov_b32 exec_hi, -1")
        a("s_waitcnt lgkmcnt(0)")
        self.mark(4)
        ACC = 192
        def A(s, i): return 64 + 64 * s + 4 * i
        def B(s, i): return 96 + 64 * s + 4 * i
        def reads(s, rho_off):
            out = []
            for i in range(8):
                out.append("ds_read_b128 v[%d:%d], v14 offset:%d" % (B(s, i), B(s, i) + 3, 3584 - 512 * i + rho_off))
                out.append("ds_read_b128 v[%d:%d], v12 offset:%d" % (A(s, i), A(s, i) + 3, 512 * i + rho_off))
            return out
        def mfmas(s):
            out = []
            for m in range(8):
                for (x, y) in [(i, m) for i in range(m + 1)] + [(m, i) for i in range(m)]:
                    if x + y <= 7:
                        t = ACC + 4 * (x + y)
                        out.append("v_mfma_f32_16x16x32_bf16 v[%d:%d], v[%d:%d], v[%d:%d], v[%d:%d]" % (
                            t, t + 3, A(s, x), A(s, x) + 3, B(s, y), B(s, y) + 3, t, t + 3))
            return out
        for r in reads(0, 0): a(r)
        a("s_waitcnt lgkmcnt(0)")
        for tau in range(8):
            t = ACC + 4 * tau
            a("v_mfma_f32_16x16x32_bf16 v[%d:%d], v[%d:%d], v[%d:%d], 0" % (t, t + 3, AD, AD + 3, B(0, tau), B(0, tau) + 3))
        a("s_mov_b32 s58, 4")
        loop = a.new_label("conv"); a.label(loop)
        for half in range(2):
            rd = reads(1 - half, 64 * (half + 1)); mf = mfmas(half)
            k = 0
            for i, m in enumerate(mf):
                a(m)
                if i % 2 == 0 and k < len(rd): a(rd[k]); k += 1
            a("s_waitcnt lgkmcnt(0)")
        a("v_add_u32 v12, 128, v12"); a("v_add_u32 v14, 128, v14")
        a("s_sub_u32 s58, s58, 1"); a("s_cmp_lg_u32 s58, 0"); a("s_cbranch_scc1 %s" % loop)
        self.mark(5)
        a("v_and_b32 v1, 1, v2")
        a("v_mov_b32 v3, 0x05040100"); a("v_mov_b32 v4, 0x03020706")
        a("v_cmp_eq_u32 vcc, 1, v1")
        a("v_lshrrev_b32 v5, 1, v8"); a("s_nop 0")
        a("v_cndmask_b32 v3, v3, v4, vcc")
        a("v_mul_u32_u24 v6, 272, v5"); a("v_lshl_add_u32 v6, v9, 6, v6"); a("v_lshl_add_u32 v6, v1, 5, v6")
        a("s_lshl_b32 s58, s%d, 2" % S_WAVE); a("s_add_u32 s58, s58, %d" % CSTG); a("v_add_u32 v6, s58, v6")
        a("s_nop 7")
        for tau in range(8):
            t = ACC + 4 * tau; P = 16 + 8 * (tau & 1)
            a("v_cvt_pk_bf16_f32 v%d, v%d, v%d" % (P, t, t + 2)); a("v_cvt_pk_bf16_f32 v%d, v%d, v%d" % (P + 1, t + 1, t + 3))
            a("s_nop 1")
            a("v_mov_b32_dpp v%d, v%d quad_perm:[1,0,3,2] row_mask:0xf bank_mask:0xf" % (P + 2, P))
            a("v_mov_b32_dpp v%d, v%d quad_perm:[1,0,3,2] row_mask:0xf bank_mask:0xf" % (P + 3, P + 1))
            a("v_perm_b32 v%d, v%d, v%d, v3" % (P + 4, P + 2, P)); a("v_perm_b32 v%d, v%d, v%d, v3" % (P + 5, P + 3, P + 1))
            off = tau * (32 * 64 + 8 * 16)
            a("ds_write_b32 v6, v%d offset:%d" % (P + 4, off)); a("ds_write_b32 v6, v%d offset:%d" % (P + 5, off + 16))
        a("v_lshrrev_b32 v1, 2, v0"); a("v_and_b32 v3, 3, v0"); a("v_lshrrev_b32 v4, 4, v0")
        a("v_lshlrev_b32 v5, 6, v1"); a("v_lshl_add_u32 v5, v4, 4, v5"); a("v_lshl_add_u32 v5, v3, 4, v5"); a("v_add_u32 v5, %d, v5" % CSTG)
        a("v_lshlrev_b32 v7, 14, v1"); a("v_lshl_add_u32 v7, v3, 4, v7"); a("s_lshl_b32 s58, s65, 6"); a("v_add_u32 v7, s58, v7")
        a("s_waitcnt lgkmcnt(0)")
        a("s_barrier")
        for i in range(4):
            a("ds_read_b128 v[%d:%d], v5 offset:%d" % (16 + 4 * i, 19 + 4 * i, i * (64 * 64 + 16 * 16)))
        for i in range(4):
            a("s_mov_b32 s58, %d" % (i * 64 * 16384))
            a("s_waitcnt lgkmcnt(%d)" % (3 - i))
            a("buffer_store_dwordx4 v[%d:%d], v7, s[%d:%d], s58 offen sc1" % (16 + 4 * i, 19 + 4 * i, RB, RB + 3))
        a("s_and_b32 s58, s2, 15"); a("s_lshl_b32 s58, s58, 7"); a("s_add_u32 s60, s58, %d" % (C2 * 128))
        self.arrive(60)
        self.mark(6)

    def g1_setup(self):
        a = self.a
        a("s_and_b32 s58, s%d, 7" % S_J); a("s_lshr_b32 s59, s%d, 3" % S_J)
        a("s_lshl_b32 s72, s%d, 2" % S_X); a("s_add_u32 s72, s72, s59")
        a("s_lshl_b32 s73, s58, 4"); a("s_lshl_b32 s59, s%d, 2" % S_WAVE); a("s_add_u32 s73, s73, s59")
        a("s_mov_b32 s83, s58")
        a("s_cmp_lt_u32 s%d, 2" % S_WAVE)
        a("s_cselect_b32 s%d, s%d, s%d" % (RA, P_WG, P_WU)); a("s_cselect_b32 s%d, s%d, s%d" % (RA + 1, P_WG + 1, P_WU + 1))
        a("s_and_b32 s%d, s%d, 0xffff" % (RA + 1, RA + 1)); a("s_mov_b32 s%d, %d" % (RA + 2, 1024 * 7168)); a("s_mov_b32 s%d, 0x00020000" % (RA + 3))
        a("s_and_b32 s58, s%d, 1" % S_WAVE); a("s_lshl_b32 s58, s58, 5")
        a("s_mul_i32 s59, s72, 224")
        a("s_mov_b32 s60, 4682"); a("s_mov_b32 s61, 7168")
        for i in range(7):
            a("v_add_u32 v16, %d, v2" % (64 * i))
            a("v_mul_u32_u24 v17, s60, v16"); a("v_lshrrev_b32 v17, 16, v17")
            a("v_mul_u32_u24 v18, 14, v17"); a("v_sub_u32 v18, v16, v18")
            a("v_bfe_u32 v19, v17, 2, 2"); a("v_lshlrev_b32 v19, 3, v19")
            a("v_lshrrev_b32 v3, 4, v17"); a("v_lshl_add_u32 v19, v3, 2, v19")
            a("v_and_b32 v3, 3, v17"); a("v_add3_u32 v19, v19, v3, s58")
            a("v_mul_u32_u24 v19, s61, v19")
            a("v_lshl_add_u32 v19, v18, 4, v19")
            a("v_add_u32 v%d, s59, v19" % (8 + i))
        a("s_mul_i32 s74, s%d, 7168" % S_WAVE)
        a("s_mov_b32 s75, 0"); a("s_mov_b32 s76, 0"); a("s_mov_b32 s77, 0"); a("s_mov_b32 s78, 0")
        for st in range(2): self.g1_wload_all()
    def g1_dma(self, i):
        fl = "nt" if "g1nt" in self.opt else ""
        return ["s_add_u32 m0, s79, %d" % (1024 * i), "buffer_load_dwordx4 v%d, s[%d:%d], s77 offen %s lds" % (8 + i, RA, RA + 3, fl)]
    def g1_wadv(self):
        return ["s_add_u32 s77, s77, %d" % (64 * 7168), "s_add_u32 s75, s75, %d" % G1_STAGE,
                "s_cmp_eq_u32 s75, %d" % (G1_STAGE * 4), "s_cselect_b32 s75, 0, s75"]
    def g1_wload_all(self):
        a = self.a
        a("s_add_u32 s79, s75, s74")
        for i in range(7):
            d = self.g1_dma(i); a(d[0]); a("s_nop 0"); a(d[1])
        for s in self.g1_wadv(): a(s)

    def reduce4(self, regs, sdst):
        a = self.a
        def step(mod):
            for r in regs: a("v_add_f32_dpp v%d, v%d, v%d %s" % (r, r, r, mod))
        a("s_nop 1")
        step("quad_perm:[1,0,3,2] row_mask:0xf bank_mask:0xf"); step("quad_perm:[2,3,0,1] row_mask:0xf bank_mask:0xf")
        step("row_half_mirror row_mask:0xf bank_mask:0xf"); step("row_mirror row_mask:0xf bank_mask:0xf")
        step("row_bcast:15 row_mask:0xa bank_mask:0xf"); step("row_bcast:31 row_mask:0xc bank_mask:0xf")
        a("s_nop 0")
        for r, s in zip(regs, sdst): a("v_readlane_b32 s%d, v%d, 63" % (s, r))
    def ln_scalars(self, sS, T):
        a = self.a
        t0, t1, t2, t3, t4, t5 = T + 8, T + 9, T + 10, T + 11, T + 12, T + 13
        M = S_MASK
        a("s_nop 1")
        a("v_mul_f32 v%d, s%d, v%d" % (t0, sS[0], T + 14)); a("v_mul_f32 v%d, s%d, v%d" % (t1, sS[2], T + 14))
        a("v_mul_f32 v%d, s%d, v%d" % (t2, sS[1], T + 14)); a("v_mul_f32 v%d, s%d, v%d" % (t3, sS[3], T + 14))
        a("v_fma_f32 v%d, -v%d, v%d, v%d" % (t2, t0, t0, t2)); a("v_fma_f32 v%d, -v%d, v%d, v%d" % (t3, t1, t1, t3))
        a("v_max_f32 v%d, 0, v%d" % (t2, t2)); a("v_max_f32 v%d, 0, v%d" % (t3, t3))
        a("v_cvt_pk_bf16_f32 v%d, v%d, v%d" % (t4, t0, t1)); a("v_cvt_pk_bf16_f32 v%d, v%d, v%d" % (t5, t2, t3))
        a("v_lshlrev_b32 v%d, 16, v%d" % (t0, t4)); a("v_and_b32 v%d, s%d, v%d" % (t1, M, t4))
        a("v_lshlrev_b32 v%d, 16, v%d" % (t2, t5)); a("v_and_b32 v%d, s%d, v%d" % (t3, M, t5))
        a("v_add_f32 v%d, s%d, v%d" % (t2, S_EPS, t2)); a("v_add_f32 v%d, s%d, v%d" % (t3, S_EPS, t3))
        a("v_cvt_pk_bf16_f32 v%d, v%d, v%d" % (t5, t2, t3))
        a("v_lshlrev_b32 v%d, 16, v%d" % (t2, t5)); a("v_and_b32 v%d, s%d, v%d" % (t3, M, t5))
        a("v_sqrt_f32 v%d, v%d" % (t2, t2)); a("v_sqrt_f32 v%d, v%d" % (t3, t3)); a("s_nop 0")
        a("v_cvt_pk_bf16_f32 v%d, v%d, v%d" % (t5, t2, t3))
        a("v_lshlrev_b32 v%d, 16, v%d" % (t2, t5)); a("v_and_b32 v%d, s%d, v%d" % (t3, M, t5))
        a("v_rcp_f32 v%d, v%d" % (T + 0, t2)); a("v_rcp_f32 v%d, v%d" % (T + 4, t3)); a("s_nop 0")
        a("v_mul_f32 v%d, v%d, v%d" % (T + 2, t0, T + 0)); a("v_mul_f32 v%d, v%d, v%d" % (T + 6, t1, T + 4))
        a("v_sub_f32 v%d, 0, v%d" % (T + 2, T + 2)); a("v_sub_f32 v%d, 0, v%d" % (T + 6, T + 6))
    def stats(self, X, acc):
        a = self.a
        for tok in range(2):
            b = X + 16 * tok; S = acc + 4 * tok; Q = S + 2
            a("v_pk_add_f32 v[%d:%d], v[%d:%d], v[%d:%d]" % (S, S + 1, b, b + 1, b + 2, b + 3))
            a("v_pk_mul_f32 v[%d:%d], v[%d:%d], v[%d:%d]" % (Q, Q + 1, b, b + 1, b, b + 1))
        for p in range(1, 8):
            for tok in range(2):
                b = X + 16 * tok + 2 * p; S = acc + 4 * tok; Q = S + 2
                if p >= 2: a("v_pk_add_f32 v[%d:%d], v[%d:%d], v[%d:%d]" % (S, S + 1, S, S + 1, b, b + 1))
                a("v_pk_fma_f32 v[%d:%d], v[%d:%d], v[%d:%d], v[%d:%d]" % (Q, Q + 1, b, b + 1, b, b + 1, Q, Q + 1))
        for r in (0, 2, 4, 6): a("v_add_f32 v%d, v%d, v%d" % (acc + r, acc + r, acc + r + 1))
    def ln(self):
        a = self.a
        M = S_MASK
        X, L1, Y, YR, HP, ACC, T = 32, 64, 96, 128, 144, 160, 168
        LP, U = 128, 96
        a("v_mov_b32 v%d, 0x3a800000" % (T + 14))
        for tok in range(2):
            for p in range(8):
                dst = X + 16 * tok + 2 * p
                a("v_accvgpr_read_b32 v3, a%d" % (160 + 8 * tok + p))
                a("v_lshlrev_b32 v%d, 16, v3" % dst); a("v_and_b32 v%d, s%d, v3" % (dst + 1, M))
        self.stats(X, ACC)
        self.reduce4([ACC, ACC + 2, ACC + 4, ACC + 6], [60, 61, 62, 63])
        self.ln_scalars([60, 61, 62, 63], T)
        for tok in range(2):
            r, c = T + 4 * tok, T + 4 * tok + 2
            for p in range(8):
                x = X + 16 * tok + 2 * p; l = L1 + 16 * tok + 2 * p
                a("v_pk_fma_f32 v[%d:%d], v[%d:%d], v[%d:%d], v[%d:%d] op_sel_hi:[1,0,0]" % (l, l + 1, x, x + 1, r, r + 1, c, c + 1))
        self.ws_srd(RB, WS_YB, 4194304); self.ws_srd(RC, WS_H, 4194304); self.ws_srd(RD, WS_LN2, 4194304)
        a("v_lshlrev_b32 v24, 4, v2")
        a("v_lshlrev_b32 v4, 3, v2")
        a("s_lshl_b32 s58, s%d, 4" % S_WAVE); a("s_add_u32 s58, s58, %d" % PSTG)
        a("v_lshlrev_b32 v5, 6, v2"); a("v_add_u32 v5, s58, v5")
        a("s_lshl_b32 s61, s%d, 12" % S_WAVE); a("s_lshl_b32 s62, s2, 14"); a("s_add_u32 s62, s62, s61")
        a("s_add_u32 s61, s61, %d" % PSTG)
        a("s_mov_b32 s60, %d" % (C2 * 128))
        self.mark(7)
        self.wait(60, 16, 16)
        self.mark(8)
        a("s_mov_b32 m0, s61"); a("s_nop 0")
        for i in range(4):
            a("buffer_load_dwordx4 v24, s[%d:%d], s62 offen offset:%d lds" % (RB, RB + 3, 1024 * i))
        a("s_waitcnt vmcnt(0)")
        a("s_barrier")
        for i in range(4):
            a("ds_read_b128 v[%d:%d], v5 offset:%d" % (YR + 4 * i, YR + 4 * i + 3, 4096 * i))
        for i in range(4):
            a("s_waitcnt lgkmcnt(%d)" % (3 - i))
            for c in range(4):
                a("v_lshlrev_b32 v%d, 16, v%d" % (Y + 4 * i + c, YR + 4 * i + c)); a("v_and_b32 v%d, s%d, v%d" % (Y + 16 + 4 * i + c, M, YR + 4 * i + c))
        for tok in range(2):
            for p in range(8):
                x = X + 16 * tok + 2 * p; y = Y + 16 * tok + 2 * p; l = L1 + 16 * tok + 2 * p
                a("v_pk_fma_f32 v[%d:%d], v[%d:%d], v[%d:%d], v[%d:%d]" % (l, l + 1, l, l + 1, y, y + 1, x, x + 1))
                a("v_cvt_pk_bf16_f32 v%d, v%d, v%d" % (HP + 8 * tok + p, l, l + 1))
        for tok in range(2):
            for i in range(4):
                a("buffer_store_dwordx2 v[%d:%d], v4, s[%d:%d], s70 offen offset:%d sc1" % (HP + 8 * tok + 2 * i, HP + 8 * tok + 2 * i + 1, RC, RC + 3, 512 * i + 2048 * tok))
        for tok in range(2):
            for p in range(8):
                src = HP + 8 * tok + p; dst = X + 16 * tok + 2 * p
                a("v_lshlrev_b32 v%d, 16, v%d" % (dst, src)); a("v_and_b32 v%d, s%d, v%d" % (dst + 1, M, src))
        self.stats(X, ACC)
        self.reduce4([ACC, ACC + 2, ACC + 4, ACC + 6], [60, 61, 62, 63])
        self.ln_scalars([60, 61, 62, 63], T)
        for tok in range(2):
            r, c = T + 4 * tok, T + 4 * tok + 2
            for p in range(8):
                x = X + 16 * tok + 2 * p
                a("v_pk_fma_f32 v[%d:%d], v[%d:%d], v[%d:%d], v[%d:%d] op_sel_hi:[1,0,0]" % (ACC, ACC + 1, x, x + 1, r, r + 1, c, c + 1))
                a("v_cvt_pk_bf16_f32 v%d, v%d, v%d" % (LP + 8 * tok + p, ACC, ACC + 1))
        a("s_mov_b32 vcc_lo, 0x55555555"); a("s_mov_b32 vcc_hi, 0x55555555"); a("s_nop 1")
        for i in range(4):
            for d in range(2):
                a("v_cndmask_b32_dpp v%d, v%d, v%d, vcc quad_perm:[1,0,3,2] row_mask:0xf bank_mask:0xf" % (U + 4 * i + d, LP + 8 + 2 * i + d, LP + 2 * i + d))
        a("s_mov_b32 vcc_lo, 0xaaaaaaaa"); a("s_mov_b32 vcc_hi, 0xaaaaaaaa"); a("s_nop 1")
        for i in range(4):
            for d in range(2):
                a("v_cndmask_b32_dpp v%d, v%d, v%d, vcc quad_perm:[1,0,3,2] row_mask:0xf bank_mask:0xf" % (U + 4 * i + 2 + d, LP + 2 * i + d, LP + 8 + 2 * i + d))
        a("v_lshrrev_b32 v5, 3, v2"); a("v_lshlrev_b32 v5, 10, v5")
        a("v_bfe_u32 v6, v2, 1, 2"); a("v_lshl_add_u32 v5, v6, 8, v5")
        a("v_and_b32 v6, 1, v2"); a("v_lshl_add_u32 v5, v6, 4, v5")
        a("s_lshr_b32 s58, s69, 4"); a("s_lshl_b32 s58, s58, 15")
        a("s_and_b32 s59, s69, 15"); a("s_lshl_b32 s59, s59, 4"); a("s_add_u32 s58, s58, s59")
        for i in range(4):
            a("s_add_u32 s59, s58, %d" % (8192 * i))
            a("buffer_store_dwordx4 v[%d:%d], v5, s[%d:%d], s59 offen sc1" % (U + 4 * i, U + 4 * i + 3, RD, RD + 3))
        self.mark(9)
        a("s_lshl_b32 s58, s73, 15")
        a("v_add_u32 v20, s58, v24")
        for tt in range(1, 4): a("v_add_u32 v%d, %d, v20" % (20 + tt, 32768 * tt))
        a("v_lshrrev_b32 v16, 2, v2"); a("v_mul_u32_u24 v16, 224, v16")
        a("v_and_b32 v17, 3, v2"); a("v_lshl_add_u32 v15, v17, 3, v16")
        for r in range(32, 256): a("v_mov_b32 v%d, 0" % r)
        a("s_lshr_b32 s58, s2, 5"); a("s_lshl_b32 s58, s58, 7"); a("s_add_u32 s60, s58, %d" % (C3 * 128))
        self.arrive(60)
        self.mark(10)

    def g2_setup(self):
        a = self.a
        a("s_and_b32 s86, s%d, 1" % S_X)
        a("s_bfe_u32 s58, s%d, 0x10001" % S_X); a("s_lshl_b32 s58, s58, 3"); a("s_and_b32 s59, s%d, 7" % S_J); a("s_add_u32 s84, s58, s59")
        a("s_lshr_b32 s58, s%d, 2" % S_X); a("s_lshl_b32 s58, s58, 2"); a("s_lshr_b32 s59, s%d, 3" % S_J); a("s_add_u32 s85, s58, s59")
        a("s_lshl_b32 s87, s84, 3"); a("s_lshl_b32 s58, s%d, 1" % S_WAVE); a("s_add_u32 s87, s87, s58")
        self.in_srd(RE, P_WD, 3584 * 2048)
        a("s_mul_i32 s58, s86, 1792"); a("s_lshr_b32 s59, s%d, 1" % S_WAVE); a("s_lshl_b32 s59, s59, 5"); a("s_add_u32 s58, s58, s59")
        a("s_lshl_b32 s58, s58, 11")
        a("s_lshl_b32 s59, s85, 8"); a("s_add_u32 s58, s58, s59")
        a("s_and_b32 s59, s%d, 1" % S_WAVE); a("s_lshl_b32 s59, s59, 7"); a("s_add_u32 s58, s58, s59")
        a("v_lshrrev_b32 v6, 3, v2"); a("v_lshlrev_b32 v6, 11, v6")
        a("v_bfe_u32 v7, v2, 4, 2"); a("v_lshlrev_b32 v7, 1, v7"); a("v_and_b32 v3, 7, v2"); a("v_xor_b32 v7, v7, v3")
        a("v_lshl_add_u32 v6, v7, 4, v6"); a("v_add_u32 v25, s58, v6")
        a("v_lshrrev_b32 v6, 2, v2"); a("v_lshlrev_b32 v6, 7, v6")
        a("v_and_b32 v7, 3, v2"); a("v_lshl_add_u32 v6, v7, 3, v6")
        a("v_bfe_u32 v7, v2, 3, 2")
        for c in range(4):
            a("v_xor_b32 v3, %d, v7" % c); a("v_lshl_add_u32 v%d, v3, 5, v6" % (26 + c))
        a("s_lshl_b32 s88, s%d, 12" % S_WAVE)
        a("s_mov_b32 s89, 0")
        a("s_mov_b32 s90, 0")
    def g2_dma(self, i):
        fl = "nt" if "g2nt" in self.opt else ""
        return (["s_add_u32 m0, s91, %d" % (1024 * i), "s_add_u32 s58, s89, %d" % (16384 * i)],
                "buffer_load_dwordx4 v25, s[%d:%d], s58 offen %s lds" % (RE, RE + 3, fl))
    def g2_wsetup(self): return ["s_add_u32 s91, s90, s88"]
    def g2_wadv(self):
        return ["s_add_u32 s89, s89, %d" % (64 * 2048), "s_add_u32 s90, s90, %d" % G2_STAGE,
                "s_cmp_eq_u32 s90, %d" % (G2_STAGE * G2_NSLOT), "s_cselect_b32 s90, 0, s90"]

    def gemm1(self):
        a = self.a
        ACC, TOK, WF, PD = 32, 0, 128, 5
        def acc(ct, tt): return ACC + (ct * 4 + tt) * 4
        def wreg(F): return WF + 4 * (F % 7)
        def foff(F, jh):
            kk, ct = F // 14, F % 14
            return (ct // 7) * 14336 + kk * 7168 + jh * 3584 + (ct % 7) * 32
        def tokload(slot, j):
            kk, tt = j >> 2, j & 3
            r = TOK + 32 * slot + 16 * kk + 4 * tt
            return "buffer_load_dwordx4 a[%d:%d], v%d, s[%d:%d], s78 offen offset:%d" % (r, r + 3, 20 + tt, RD, RD + 3, 1024 * kk)
        pf = "nopf" not in self.opt
        if pf:
            a("s_mul_i32 s58, s%d, 448" % S_J); a("s_mul_i32 s59, s%d, 112" % S_WAVE); a("s_add_u32 s58, s58, s59")
            a("v_add_u32 v30, s58, v2")
            a("v_lshrrev_b32 v31, 3, v30"); a("v_and_b32 v30, 7, v30"); a("v_lshlrev_b32 v30, 7, v30"); a("v_lshl_add_u32 v30, v31, 11, v30")
            a("s_mul_i32 s58, s86, %d" % (1792 * 2048)); a("s_lshr_b32 s59, s85, 2"); a("s_lshl_b32 s59, s59, 10"); a("s_add_u32 s58, s58, s59")
            a("s_sub_u32 s58, s58, 10240")
            a("v_add_u32 v30, s58, v30")
            a("v_cmp_gt_u32 vcc, 40, v2"); a("v_mov_b32 v31, 0x7fffffff"); a("s_nop 0"); a("v_cndmask_b32 v30, v31, v30, vcc")
        self.ws_srd(RB, WS_HH, 128 * 112 * 1024)
        a("s_lshl_b32 s58, s83, 7"); a("s_add_u32 s60, s58, %d" % (C3 * 128))
        self.wait(60, 1, 32)
        self.mark(11)
        for st in range(2):
            for j in range(8): a(tokload(st, j))
            a("s_add_u32 s78, s78, 2048")
        a("v_mov_b32 v16, v15")
        for F in range(PD):
            for jh in range(2):
                a("ds_read_b64_tr_b16 a[%d:%d], v16 offset:%d" % (wreg(F) + 2 * jh, wreg(F) + 2 * jh + 1, foff(F, jh)))
        a("s_waitcnt vmcnt(8)")
        self.mark(12)
        def stage(u, loads, bwait, last=False, extra=None, pfop=False):
            vm = []
            if loads:
                for i in range(7):
                    d = self.g1_dma(i); vm.append(([d[0]], d[1]))
                for j in range(8): vm.append(([], tokload((u + 2) % 4, j)))
                if pfop: vm.append((["v_add_u32 v30, 10240, v30"], "buffer_load_dword v31, v30, s[%d:%d], 0 offen" % (RE, RE + 3)))
            if extra: vm = vm + extra
            for F in range(28):
                kk, ct = F // 14, F % 14
                w = wreg(F)
                def mf(tt):
                    t = TOK + 32 * u + 16 * kk + 4 * tt
                    c = acc(ct, tt)
                    a("v_mfma_f32_16x16x32_bf16 v[%d:%d], a[%d:%d], a[%d:%d], v[%d:%d]" % (c, c + 3, w, w + 3, t, t + 3, c, c + 3))
                if F == 0 and loads: a("s_add_u32 s79, s75, s74")
                if F == 28 - PD and not last:
                    a("s_waitcnt vmcnt(%d)" % bwait)
                    a("s_barrier")
                    a("s_add_u32 s76, s76, %d" % G1_STAGE); a("s_cmp_eq_u32 s76, %d" % (G1_STAGE * 4)); a("s_cselect_b32 s76, 0, s76")
                    a("v_add_u32 v16, s76, v15")
                rd = not (last and F >= 28 - PD)
                if rd: a("s_waitcnt lgkmcnt(%d)" % (2 * (PD - 1)))
                else: a("s_waitcnt lgkmcnt(%d)" % (2 * (27 - F)))
                Fn = (F + PD) % 28
                mf(0)
                if rd: a("ds_read_b64_tr_b16 a[%d:%d], v16 offset:%d" % (wreg(F + PD), wreg(F + PD) + 1, foff(Fn, 0)))
                mf(1)
                if rd: a("ds_read_b64_tr_b16 a[%d:%d], v16 offset:%d" % (wreg(F + PD) + 2, wreg(F + PD) + 3, foff(Fn, 1)))
                if F < len(vm):
                    for s in vm[F][0]: a(s)
                mf(2)
                if F < len(vm): a(vm[F][1])
                mf(3)
                if F == 16 and loads:
                    for s in self.g1_wadv(): a(s)
                    a("s_add_u32 s78, s78, 2048")
        a("s_mov_b32 s80, 3")
        loop = a.new_label("g1"); a.label(loop)
        for u in range(4):
            p = pf and u == 0
            stage(u, True, 16 if (pf and u < 2) else 15, pfop=p)
        a("s_sub_u32 s80, s80, 1"); a("s_cmp_lg_u32 s80, 0"); a("s_cbranch_scc1 %s" % loop)
        self.mark(13)
        stage(0, True, 15); stage(1, True, 15); stage(2, False, 0)
        ex = []
        for st in range(3):
            for i in range(4):
                pre, op = self.g2_dma(i)
                if i == 0: pre = self.g2_wsetup() + pre
                ex.append((pre, op))
            ex.append((self.g2_wadv()[:-1], self.g2_wadv()[-1]))
        stage(3, False, 0, last=True, extra=ex)
        self.mark(14)
        a("s_mul_i32 s58, s73, %d" % (112 * 1024))
        a("s_mul_i32 s59, s72, 7"); a("s_add_u32 s60, s59, 1"); a("s_lshr_b32 s60, s60, 1")
        a("s_lshl_b32 s60, s60, 10"); a("s_add_u32 s60, s60, s58")
        a("s_and_b32 s61, s72, 1")
        odd = a.new_label("odd"); fin = a.new_label("fin")
        a("s_nop 7")
        a("s_cmp_eq_u32 s61, 1"); a("s_cbranch_scc1 %s" % odd)
        for par in range(2):
            if par == 1: a.label(odd)
            cs = 0 if par else 6
            for tt in range(4):
                for c in range(7):
                    g, u = acc(c, tt), acc(7 + c, tt)
                    for i in range(4): a("v_mul_f32 v%d, v%d, v%d" % (g + i, g + i, u + i))
                a("s_add_u32 s61, s60, %d" % (tt * 112 * 1024))
                for j in range(3):
                    c = par + 2 * j
                    g0, g1, u = acc(c, tt), acc(c + 1, tt), acc(7 + c, tt)
                    a("v_cvt_pk_bf16_f32 v%d, v%d, v%d" % (u, g0, g0 + 1)); a("v_cvt_pk_bf16_f32 v%d, v%d, v%d" % (u + 1, g0 + 2, g0 + 3))
                    a("v_cvt_pk_bf16_f32 v%d, v%d, v%d" % (u + 2, g1, g1 + 1)); a("v_cvt_pk_bf16_f32 v%d, v%d, v%d" % (u + 3, g1 + 2, g1 + 3))
                    a("buffer_store_dwordx4 v[%d:%d], v24, s[%d:%d], s61 offen offset:%d sc1" % (u, u + 3, RB, RB + 3, 1024 * j))
                g, u = acc(cs, tt), acc(7 + cs, tt)
                a("v_cvt_pk_bf16_f32 v%d, v%d, v%d" % (u, g, g + 1)); a("v_cvt_pk_bf16_f32 v%d, v%d, v%d" % (u + 1, g + 2, g + 3))
                if par == 0:
                    a("buffer_store_dwordx2 v[%d:%d], v24, s[%d:%d], s61 offen offset:3072 sc1" % (u, u + 1, RB, RB + 3))
                else:
                    a("s_sub_u32 s62, s61, 1024")
                    a("buffer_store_dwordx2 v[%d:%d], v24, s[%d:%d], s62 offen offset:8 sc1" % (u, u + 1, RB, RB + 3))
            if par == 0: a("s_branch %s" % fin)
        a.label(fin)
        self.mark(15)
        a("s_lshl_b32 s58, s83, 1"); a("s_lshr_b32 s59, s72, 4"); a("s_add_u32 s58, s58, s59"); a("s_lshl_b32 s58, s58, 7")
        a("s_add_u32 s60, s58, %d" % (C4 * 128))
        self.g2_pre()
        self.arrive(60)
        self.mark(16)

    def g2_pre(self):
        a = self.a
        a("s_add_u32 s58, s87, s86"); a("s_mul_i32 s58, s58, %d" % (112 * 1024)); a("s_mul_i32 s59, s86, %d" % (56 * 1024)); a("s_add_u32 s58, s58, s59")
        a("v_add_u32 v20, s58, v24")
        a("s_xor_b32 s58, s86, 1"); a("s_add_u32 s58, s58, s87"); a("s_mul_i32 s58, s58, %d" % (112 * 1024)); a("s_add_u32 s58, s58, s59")
        a("v_add_u32 v21, s58, v24")
        a("v_and_b32 v3, 15, v2"); a("v_lshlrev_b32 v3, 11, v3")
        a("v_lshrrev_b32 v4, 4, v2"); a("v_lshl_add_u32 v3, v4, 3, v3")
        a("s_add_u32 s58, s87, s86"); a("s_lshl_b32 s58, s58, 15"); a("s_lshl_b32 s59, s85, 8"); a("s_add_u32 s58, s58, s59")
        a("v_add_u32 v22, s58, v3")
        self.in_srd(RD, P_OUT, 4194304)
        self.ws_srd(RA, WS_XCH, 256 * 32768)
        a("s_mov_b32 s78, 0"); a("s_mov_b32 s76, 0")
    def gemm2(self):
        a = self.a
        ACC, HR, TOK, WF, PD, NST = 32, 96, 0, 64, 7, 28
        def acc(ct, tt): return ACC + (ct * 2 + tt) * 4
        def tokload(slot, j):
            kk, tt = j >> 1, j & 1
            r = TOK + 16 * slot + 8 * kk + 4 * tt
            return "buffer_load_dwordx4 a[%d:%d], v%d, s[%d:%d], s78 offen offset:%d" % (r, r + 3, 20 + tt, RB, RB + 3, 1024 * kk)
        def fread(F, jh):
            kk, ct = F // 8, F % 8
            r = WF + 4 * (F % 8) + 2 * jh
            return "ds_read_b64_tr_b16 a[%d:%d], v%d offset:%d" % (r, r + 1, 16 + (ct & 3), (2 * kk + (ct >> 2)) * 4096 + jh * 2048)
        for r in range(ACC, ACC + 64): a("v_mov_b32 v%d, 0" % r)
        for c in range(4): a("v_mov_b32 v%d, v%d" % (16 + c, 26 + c))
        a("s_lshr_b32 s58, s84, 1"); a("s_lshl_b32 s58, s58, 1"); a("s_add_u32 s58, s58, s86"); a("s_lshl_b32 s58, s58, 7")
        a("s_add_u32 s60, s58, %d" % (C4 * 128))
        self.wait(60, 1, 16)
        self.mark(17)
        for st in range(3):
            for j in range(4): a(tokload(st, j))
            a("s_add_u32 s78, s78, 2048")
        for ct in range(8):
            a("buffer_load_dwordx2 v[%d:%d], v22, s[%d:%d], 0 offen offset:%d" % (HR + 2 * ct, HR + 2 * ct + 1, RC, RC + 3, 32 * ct))
        for F in range(PD):
            for jh in range(2): a(fread(F, jh))
        a("s_waitcnt vmcnt(16)")
        self.mark(18)
        a("s_mov_b32 s80, %d" % (NST // 4)); a("s_mov_b32 s81, 3")
        loop = a.new_label("g2"); a.label(loop)
        for u in range(4):
            vm = [self.g2_dma(i) for i in range(4)] + [([], tokload((u + 3) % 4, j)) for j in range(4)]
            for F in range(16):
                kk, ct = F // 8, F % 8
                w = WF + 4 * (F % 8)
                def mf(tt):
                    t = TOK + 16 * u + 8 * kk + 4 * tt
                    c = acc(ct, tt)
                    a("v_mfma_f32_16x16x32_bf16 v[%d:%d], a[%d:%d], a[%d:%d], v[%d:%d]" % (c, c + 3, w, w + 3, t, t + 3, c, c + 3))
                if F == 0:
                    for s in self.g2_wsetup(): a(s)
                    a("s_cmp_lt_u32 s81, %d" % NST)
                    a("s_cselect_b32 s%d, %d, 0" % (RE + 2, 3584 * 2048)); a("s_cselect_b32 s%d, %d, 0" % (RB + 2, 128 * 112 * 1024))
                if F == 16 - PD:
                    for s in self.g2_wadv(): a(s)
                    a("s_add_u32 s78, s78, 2048"); a("s_add_u32 s81, s81, 1")
                    a("s_waitcnt vmcnt(16)")
                    a("s_barrier")
                    a("s_add_u32 s76, s76, %d" % G2_STAGE); a("s_cmp_eq_u32 s76, %d" % (G2_STAGE * G2_NSLOT)); a("s_cselect_b32 s76, 0, s76")
                    for c in range(4): a("v_add_u32 v%d, s76, v%d" % (16 + c, 26 + c))
                a("s_waitcnt lgkmcnt(%d)" % (2 * (PD - 1)))
                Fn = (F + PD) % 16
                if F < 8:
                    for s in vm[F][0]: a(s)
                mf(0)
                a(fread(Fn, 0))
                if F < 8: a(vm[F][1])
                mf(1)
                a(fread(Fn, 1))
        a("s_sub_u32 s80, s80, 1"); a("s_cmp_lg_u32 s80, 0"); a("s_cbranch_scc1 %s" % loop)
        self.mark(19)
        a("s_lshl_b32 s58, s2, 15"); a("s_lshl_b32 s59, s%d, 13" % S_WAVE); a("s_add_u32 s61, s58, s59")
        a("s_xor_b32 s58, s2, 1"); a("s_lshl_b32 s58, s58, 15"); a("s_add_u32 s62, s58, s59")
        a("s_waitcnt lgkmcnt(0)")
        a("s_nop 7")
        for ct in range(8):
            c = acc(ct, 1)
            a("s_add_u32 s58, s61, %d" % (4096 * (ct >> 2)))
            a("buffer_store_dwordx4 v[%d:%d], v24, s[%d:%d], s58 offen offset:%d sc1" % (c, c + 3, RA, RA + 3, 1024 * (ct & 3)))
        for ct in range(8):
            c = acc(ct, 0); r = HR + 2 * ct
            a("v_lshlrev_b32 v4, 16, v%d" % r); a("v_and_b32 v5, s%d, v%d" % (S_MASK, r))
            a("v_lshlrev_b32 v6, 16, v%d" % (r + 1)); a("v_and_b32 v7, s%d, v%d" % (S_MASK, r + 1))
            for i in range(4): a("v_add_f32 v%d, v%d, v%d" % (c + i, c + i, 4 + i))
        a("s_lshl_b32 s58, s2, 7"); a("s_add_u32 s60, s58, %d" % (XF * 128))
        self.arrive(60)
        self.mark(20)
        a("s_xor_b32 s58, s2, 1"); a("s_lshl_b32 s58, s58, 7"); a("s_add_u32 s60, s58, %d" % (XF * 128))
        self.wait(60, 1, 1)
        self.mark(21)
        R = 112
        for ct in range(8):
            a("s_add_u32 s58, s62, %d" % (4096 * (ct >> 2)))
            a("buffer_load_dwordx4 v[%d:%d], v24, s[%d:%d], s58 offen offset:%d" % (R + 4 * ct, R + 4 * ct + 3, RA, RA + 3, 1024 * (ct & 3)))
        for ct in range(8):
            c = acc(ct, 0); r = R + 4 * ct
            a("s_waitcnt vmcnt(7)")
            for i in range(4): a("v_add_f32 v%d, v%d, v%d" % (c + i, c + i, r + i))
            a("v_cvt_pk_bf16_f32 v%d, v%d, v%d" % (r, c, c + 1)); a("v_cvt_pk_bf16_f32 v%d, v%d, v%d" % (r + 1, c + 2, c + 3))
            a("buffer_store_dwordx2 v[%d:%d], v22, s[%d:%d], 0 offen offset:%d" % (r, r + 1, RD, RD + 3, 32 * ct))
        self.mark(22)

    def finish(self, name):
        a = self.a
        if self.diag:
            a("s_waitcnt vmcnt(0) lgkmcnt(0)")
            self.mark(23)
            a("s_memrealtime s[92:93]"); a("s_waitcnt lgkmcnt(0)")
            a("v_accvgpr_read_b32 v1, a255"); a("s_nop 1")
            for i, s in enumerate((94, 95, 96, 97, 92, 93)):
                a("v_writelane_b32 v1, s%d, %d" % (s, 56 + i))
            self.ws_srd(RA, STAMP, 256 * 1024)
            a("s_lshl_b32 s58, s2, 10"); a("s_lshl_b32 s59, s%d, 8" % S_WAVE); a("s_add_u32 s58, s58, s59")
            a("v_lshlrev_b32 v3, 2, v2")
            a("buffer_store_dword v1, v3, s[%d:%d], s58 offen" % (RA, RA + 3))
        a.label(name + "_done")
        a("s_endpgm")
    def build(self, upto=5):
        name = KNAME + "_kernel"
        self.entry(name)
        self.prep()
        if upto >= 2: self.conv()
        if upto >= 3:
            self.g1_setup(); self.g2_setup(); self.ln()
        if upto >= 4: self.gemm1()
        if upto >= 5: self.gemm2()
        self.finish(name)
        hdr = "; persistent single-launch kernel generated by gen/fused.py (hand-written generator)\n"
        hdr += "; @launch grid=(256,1,1) block=(256,1,1) lds=%d\n" % LDS_TOTAL
        hdr += '.amdgcn_target "amdgcn-amd-amdhsa--gfx950"\n'
        return hdr + self.a.text() + kernel_desc(name, 512, 102, 256)

if __name__ == "__main__":
    import sys
    out = sys.argv[1]
    opt = sys.argv[2] if len(sys.argv) > 2 else ""
    diag = "diag" in opt.split(",")
    upto = 5
    for t in opt.split(","):
        if t.startswith("upto"): upto = int(t[4:])
    open(out, "w").write(Gen(opt, diag).build(upto))
```

```python
from asmlib import *
from layout import *

P_Q, P_K, P_V, P_SK, P_SSMK, P_SSMD, P_WG, P_WU, P_WD, P_OUT, P_DBG, P_WS = 4, 6, 8, 10, 12, 14, 18, 20, 22, 24, 26, 28
S_WAVE, S_X, S_J = 30, 31, 3
RA, RB, RC, RD, RE, RS = 32, 36, 40, 44, 48, 52
S_MASK, S_EPS = 56, 57
SPIN_MAX = 1 << 17

KCOPY = 4160; XB0 = 4 * KCOPY; XSTR = 4576; WREG = 25856
CSTG = 4 * WREG
PSTG = CSTG + 17408
G1_STAGE = 28672; G1_NSLOT = 5
G2_SW = [75, 76, 77, 79, 80]
G2_STAGE = 16384; G2_NSLOT = 5; G2_BASE = G1_STAGE
LDS_TOTAL = G1_STAGE * G1_NSLOT

class Gen:
    def __init__(self, opt="", diag=False):
        self.a = Asm(); self.opt = set(opt.split(",")); self.diag = diag; self.stashed = {}
    def mark(self, i):
        if not self.diag: return
        a = self.a
        a("s_memtime s[98:99]"); a("s_waitcnt lgkmcnt(0)")
        a("v_accvgpr_read_b32 v1, a255"); a("s_nop 1")
        a("v_writelane_b32 v1, s98, %d" % (2 * i)); a("v_writelane_b32 v1, s99, %d" % (2 * i + 1))
        a("s_nop 1"); a("v_accvgpr_write_b32 a255, v1")
    def stash(self, name, v):
        idx = self.stashed.setdefault(name, 176 + len(self.stashed)); assert idx < 250
        self.a("v_accvgpr_write_b32 a%d, v%d" % (idx, v))
    def unstash(self, name, v):
        self.a("v_accvgpr_read_b32 v%d, a%d" % (v, self.stashed[name]))
    def ws_srd(self, dst, off, size):
        a = self.a
        a("s_add_u32 s%d, s%d, 0x%x" % (dst, P_WS, off)); a("s_addc_u32 s%d, s%d, 0" % (dst + 1, P_WS + 1))
        a("s_and_b32 s%d, s%d, 0xffff" % (dst + 1, dst + 1)); a("s_mov_b32 s%d, 0x%x" % (dst + 2, size)); a("s_mov_b32 s%d, 0x00020000" % (dst + 3))
    def in_srd(self, dst, ptr, size, soff=None):
        a = self.a
        if soff is None:
            srd(a, dst, ptr, size)
        else:
            a("s_add_u32 s%d, s%d, s%d" % (dst, ptr, soff)); a("s_addc_u32 s%d, s%d, 0" % (dst + 1, ptr + 1))
            a("s_and_b32 s%d, s%d, 0xffff" % (dst + 1, dst + 1)); a("s_mov_b32 s%d, 0x%x" % (dst + 2, size)); a("s_mov_b32 s%d, 0x00020000" % (dst + 3))
    def arrive(self, addr, nlanes=1, vm=0, check_init=None, init_target=1):
        a = self.a
        for s in addr: a(s)
        a("s_waitcnt vmcnt(%d)" % vm)
        a("s_barrier")
        sk = a.new_label("arr")
        a("s_cmp_lg_u32 s%d, 0" % S_WAVE); a("s_cbranch_scc1 %s" % sk)
        if check_init is not None:
            ok = a.new_label("ini"); lp = a.new_label("inip")
            a("s_mov_b32 s59, 0")
            a.label(lp)
            a("v_readfirstlane_b32 s58, v%d" % check_init)
            a("s_cmp_ge_u32 s58, %d" % init_target); a("s_cbranch_scc1 %s" % ok)
            a("s_add_u32 s59, s59, 1"); a("s_cmp_gt_u32 s59, %d" % SPIN_MAX); a("s_cbranch_scc1 %s" % ok)
            a("v_mov_b32 v6, 0")
            a("buffer_load_dword v%d, v6, s[%d:%d], 0 offen sc1" % (check_init, RE, RE + 3))
            a("s_waitcnt vmcnt(0)")
            a("s_branch %s" % lp)
            a.label(ok)
        a("v_mov_b32 v6, 1")
        a("s_mov_b64 exec, 0x%x" % ((1 << nlanes) - 1))
        a("buffer_atomic_add v6, v7, s[%d:%d], 0 offen" % (RS, RS + 3))
        a("s_mov_b64 exec, -1")
        a.label(sk)
    def wait(self, line_sgpr, nlines, target, shadow=None):
        a = self.a
        sk = a.new_label("wt"); lp = a.new_label("wtp"); s0 = a.new_label("wt0")
        mask = "0x%x" % ((1 << nlines) - 1)
        a("s_cmp_lg_u32 s%d, 0" % S_WAVE); a("s_cbranch_scc1 %s" % s0)
        a("v_min_u32 v6, %d, v2" % (nlines - 1)); a("v_lshlrev_b32 v6, 7, v6"); a("v_add_u32 v6, s%d, v6" % line_sgpr)
        a("s_mov_b64 exec, %s" % mask)
        a("buffer_load_dword v7, v6, s[%d:%d], 0 offen sc1" % (RS, RS + 3))
        a("s_mov_b64 exec, -1")
        a.label(s0)
        if shadow: shadow()
        a("s_cmp_lg_u32 s%d, 0" % S_WAVE); a("s_cbranch_scc1 %s" % sk)
        a("s_mov_b32 s59, 0")
        a("s_mov_b64 exec, %s" % mask)
        a.label(lp)
        a("s_waitcnt vmcnt(0)")
        a("v_cmp_gt_u32 vcc, %d, v7" % target)
        a("s_add_u32 s59, s59, 1")
        a("s_cmp_gt_u32 s59, %d" % SPIN_MAX); a("s_cbranch_scc1 %s" % (sk + "x"))
        a("s_cbranch_vccz %s" % (sk + "x"))
        a("buffer_load_dword v7, v6, s[%d:%d], 0 offen sc1" % (RS, RS + 3))
        a("s_branch %s" % lp)
        a.label(sk + "x")
        a("s_mov_b64 exec, -1")
        a.label(sk)
        a("s_barrier")

    def entry(self, name):
        a = self.a
        kernel_begin(a, name)
        a("s_cmp_ge_u32 s2, 256"); a("s_cbranch_scc1 %s_done" % name)
        if self.diag:
            a("s_memrealtime s[94:95]"); a("s_memtime s[96:97]"); a("v_accvgpr_write_b32 a255, 0")
        a("s_load_dwordx16 s[4:19], s[0:1], 0")
        a("s_load_dwordx8 s[20:27], s[0:1], 64")
        a("s_load_dwordx2 s[28:29], s[0:1], 96")
        a("v_lshrrev_b32 v1, 6, v0")
        a("v_and_b32 v2, 63, v0")
        a("v_readfirstlane_b32 s%d, v1" % S_WAVE)
        a("s_and_b32 s%d, s2, 7" % S_X); a("s_lshr_b32 s%d, s2, 3" % S_J)
        a("s_mov_b32 s%d, 0xffff0000" % S_MASK); a("s_mov_b32 s%d, 0x3727c5ac" % S_EPS)

    def prep(self):
        a = self.a
        a("v_and_b32 v8, 7, v0")
        a("v_lshrrev_b32 v9, 3, v0")
        a("s_lshr_b32 s60, s2, 4")
        a("s_and_b32 s61, s2, 15")
        a("s_lshl_b32 s62, s60, 18"); a("s_lshl_b32 s63, s61, 7"); a("s_add_u32 s62, s62, s63")
        a("v_lshlrev_b32 v3, 13, v9"); a("v_lshl_add_u32 v3, v8, 4, v3"); a("v_add_u32 v3, s62, v3")
        a("v_subrev_u32 v4, 6144, v3")
        a("s_lshl_b32 s63, s61, 9"); a("v_lshlrev_b32 v5, 6, v8"); a("v_add_u32 v5, s63, v5")
        a("s_mov_b32 s64, 4096")
        a("s_lshl_b32 s65, s%d, 5" % S_X); a("s_add_u32 s65, s65, s%d" % S_J)
        a("s_lshl_b32 s66, s65, 2"); a("s_add_u32 s66, s66, s%d" % S_WAVE)
        a("s_mul_i32 s67, s%d, %d" % (S_WAVE, WREG))
        a("s_lshl_b32 s68, s66, 12")
        a("v_lshlrev_b32 v10, 4, v2")
        a("v_lshlrev_b32 v11, 2, v2")
        a("v_add_u32 v12, 196, v10")
        a("s_lshl_b32 s69, s2, 3"); a("s_lshl_b32 s70, s%d, 1" % S_WAVE); a("s_add_u32 s69, s69, s70"); a("s_lshl_b32 s70, s69, 11")
        a("v_lshlrev_b32 v13, 3, v2")
        a("s_waitcnt lgkmcnt(0)")
        self.ws_srd(RS, WS_SYNC, NLINES * 128)
        NCLR = NLINES // 64
        ni = a.new_label("noinit")
        a("s_lshl_b32 s58, s%d, 8" % S_WAVE); a("s_or_b32 s58, s58, s2"); a("s_cmp_ge_u32 s58, %d" % NCLR); a("s_cbranch_scc1 %s" % ni)
        a("v_lshlrev_b32 v6, 7, v2"); a("v_mov_b32 v7, 0"); a("s_lshl_b32 s58, s2, 13")
        a("buffer_store_dword v7, v6, s[%d:%d], s58 offen sc1" % (RS, RS + 3))
        a.label(ni)
        self.in_srd(RA, P_K, 4194304); self.in_srd(RB, P_V, 4194304); self.in_srd(RC, P_SK, 8192)
        KR, VR, SK = 16, 44, 60
        nt = "" if "p1nont" in self.opt else "nt"
        def ld(dst, voff, s, soff, off, fl=""):
            a("buffer_load_dwordx4 v[%d:%d], v%d, s[%d:%d], %s offen%s %s" % (dst, dst + 3, voff, s, s + 3, soff, " offset:%d" % off if off else "", fl))
        for i in range(4): ld(SK + 4 * i, 5, RC, "0", 16 * i)
        ld(KR + 0, 4, RA, "0", 0, nt); ld(KR + 4, 4, RA, "0", 2048, nt); ld(KR + 8, 4, RA, "s64", 0, nt)
        ld(KR + 12, 3, RA, "0", 0, nt); ld(KR + 16, 3, RA, "0", 2048, nt); ld(KR + 20, 3, RA, "s64", 0, nt); ld(KR + 24, 3, RA, "s64", 2048, nt)
        ld(VR + 0, 3, RB, "0", 0, nt); ld(VR + 4, 3, RB, "0", 2048, nt); ld(VR + 8, 3, RB, "s64", 0, nt); ld(VR + 12, 3, RB, "s64", 2048, nt)
        self.in_srd(RE, P_DBG, 256)
        ni = a.new_label("noflag")
        a("s_lshl_b32 s58, s%d, 8" % S_WAVE); a("s_or_b32 s58, s58, s2"); a("s_cmp_ge_u32 s58, %d" % NCLR); a("s_cbranch_scc1 %s" % ni)
        a("s_waitcnt vmcnt(15)")
        a("v_mov_b32 v6, 0"); a("v_mov_b32 v7, 1")
        a("s_mov_b64 exec, 1")
        a("buffer_atomic_add v7, v6, s[%d:%d], 0 offen" % (RE, RE + 3))
        a("s_mov_b64 exec, -1")
        a.label(ni)
        self.in_srd(RD, P_SSMK, 4096, 68)
        sknt = "" if "sknont" in self.opt else "nt"
        for i in range(16):
            a("buffer_load_dword v%d, v11, s[%d:%d], 0 offen offset:%d %s" % (128 + i, RD, RD + 3, 256 * i, sknt))
        a("s_lshr_b32 s58, s66, 1"); a("s_lshl_b32 s58, s58, 2")
        a("s_load_dword s71, s[%d:%d], s58" % (P_SSMD, P_SSMD + 1))
        self.ws_srd(RC, WS_XRT, 4194304)
        a("v_sub_u32 v6, 31, v9"); a("v_lshlrev_b32 v7, 1, v8"); a("v_xor_b32 v6, v6, v7"); a("v_lshlrev_b32 v6, 3, v6")
        a("v_lshl_add_u32 v6, v8, 11, v6"); a("v_add_u32 v14, %d, v6" % PSTG)
        W, K, V, O = 80, 84, 92, 96
        def unpack(dst, src, hi):
            if hi: a("v_and_b32 v%d, s%d, v%d" % (dst, S_MASK, src))
            else: a("v_lshlrev_b32 v%d, 16, v%d" % (dst, src))
        self.shadow()
        a("s_waitcnt vmcnt(16)")
        self.mark(0)
        for c in range(8):
            d, hi = c >> 1, c & 1
            unpack(W + 0, SK + 2 * c, 0); unpack(W + 1, SK + 2 * c, 1); unpack(W + 2, SK + 2 * c + 1, 0); unpack(W + 3, SK + 2 * c + 1, 1)
            for i in range(7): unpack(K + i, KR + 4 * i + d, hi)
            for j in range(4): unpack(V + j, VR + 4 * j + d, hi)
            for j in range(4): a("v_mul_f32 v%d, v%d, v%d" % (O + j, K + j, W + 3))
            for tap in (1, 2, 3):
                for j in range(4): a("v_fmac_f32 v%d, v%d, v%d" % (O + j, K + j + tap, W + 3 - tap))
            for j in range(4): a("v_mul_f32 v%d, v%d, v%d" % (O + j, O + j, V + j))
            P = 100 + 2 * (c & 1)
            a("v_cvt_pk_bf16_f32 v%d, v%d, v%d" % (P, O + 3, O + 2))
            a("v_cvt_pk_bf16_f32 v%d, v%d, v%d" % (P + 1, O + 1, O + 0))
            a("ds_write_b64 v14, v[%d:%d] offset:%d" % (P, P + 1, c * 256))
        a("v_lshrrev_b32 v16, 4, v0"); a("v_and_b32 v17, 15, v0"); a("v_lshrrev_b32 v18, 7, v0")
        a("s_lshl_b32 s62, s61, 18"); a("s_lshl_b32 s63, s60, 8"); a("s_sub_u32 s62, s62, s63"); a("s_add_u32 s62, s62, 3840")
        a("v_lshlrev_b32 v19, 12, v16"); a("v_lshl_add_u32 v19, v17, 4, v19"); a("v_add_u32 v19, s62, v19")
        a("s_waitcnt lgkmcnt(0)")
        a("s_barrier")
        for i in range(4):
            a("v_add_u32 v20, %d, v18" % (2 * i)); a("v_xor_b32 v20, v20, v17"); a("v_lshlrev_b32 v20, 4, v20")
            a("v_lshl_add_u32 v20, v16, 8, v20"); a("v_add_u32 v20, %d, v20" % PSTG)
            a("ds_read_b128 v[%d:%d], v20 offset:%d" % (24 + 4 * i, 27 + 4 * i, i * 4096))
        a("v_mov_b32 v6, 0")
        a("buffer_load_dword v15, v6, s[%d:%d], 0 offen sc1" % (RE, RE + 3))
        for i in range(4):
            a("s_mov_b32 s63, %d" % (i * 16 * 4096))
            a("s_waitcnt lgkmcnt(%d)" % (3 - i))
            a("buffer_store_dwordx4 v[%d:%d], v19, s[%d:%d], s63 offen sc1" % (24 + 4 * i, 27 + 4 * i, RC, RC + 3))
        nyoung = 0
        if "qw1" in self.opt:
            self.q_loads(); nyoung += 8
        self.mark(1)
        self.arrive(["s_lshl_b32 s58, s61, 7", "s_add_u32 s60, s58, %d" % (C1 * 128), "v_mov_b32 v7, s60"], vm=nyoung, check_init=15, init_target=NCLR)
        self.mark(2)

    def q_loads(self):
        a = self.a
        self.in_srd(RD, P_Q, 4194304)
        qf = "" if "qnont" in self.opt else "nt"
        a("v_lshlrev_b32 v13, 3, v2")
        for tok in range(2):
            for i in range(4):
                r = 160 + 8 * tok + 2 * i
                a("buffer_load_dwordx2 a[%d:%d], v13, s[%d:%d], s70 offen offset:%d %s" % (r, r + 1, RD, RD + 3, 512 * i + 2048 * tok, qf))

    def conv(self):
        a = self.a
        a("s_add_u32 s58, s68, 0x%x" % WS_XRT)
        a("s_add_u32 s%d, s%d, s58" % (RA, P_WS)); a("s_addc_u32 s%d, s%d, 0" % (RA + 1, P_WS + 1))
        a("s_and_b32 s%d, s%d, 0xffff" % (RA + 1, RA + 1)); a("s_mov_b32 s%d, 4096" % (RA + 2)); a("s_mov_b32 s%d, 0x00020000" % (RA + 3))
        self.ws_srd(RB, WS_YB, 4194304)
        a("v_and_b32 v8, 15, v2"); a("v_lshrrev_b32 v9, 4, v2")
        a("v_and_b32 v3, 3, v8"); a("v_lshrrev_b32 v4, 2, v8")
        a("v_mul_u32_u24 v12, %d, v3" % KCOPY)
        a("v_add_u32 v13, v4, v9"); a("v_lshl_add_u32 v12, v13, 4, v12"); a("v_add_u32 v12, s67, v12")
        a("v_and_b32 v13, 1, v8"); a("v_lshrrev_b32 v14, 1, v8")
        a("v_mul_u32_u24 v15, %d, v13" % XSTR); a("v_lshl_add_u32 v15, v9, 4, v15")
        a("v_lshlrev_b32 v14, 6, v14"); a("v_sub_u32 v15, v15, v14")
        a("s_add_u32 s58, s67, %d" % (XB0 + 64 * 63 - 3584)); a("v_add_u32 v14, s58, v15")
        AD = 60
        a("v_lshlrev_b32 v15, 3, v4"); a("v_lshl_add_u32 v15, v3, 1, v15"); a("v_lshl_add_u32 v15, v9, 3, v15")
        a("s_and_b32 s58, s66, 1"); a("s_lshl_b32 s58, s58, 4"); a("s_lshr_b32 s71, s71, s58"); a("s_and_b32 s71, s71, 0xffff")
        a("v_mov_b32 v1, s71")
        for dd in range(4):
            a("v_cmp_eq_u32 vcc, %d, v15" % (30 - 2 * dd)); a("s_nop 1"); a("v_cndmask_b32 v%d, 0, v1, vcc" % (AD + dd))
        a("v_lshrrev_b32 v4, 4, v2"); a("v_mul_u32_u24 v4, %d, v4" % KCOPY); a("v_and_b32 v5, 15, v2"); a("v_lshl_add_u32 v4, v5, 2, v4")
        a("v_add_u32 v4, s67, v4"); a("v_mov_b32 v5, 0")
        a("ds_write_b32 v4, v5")
        a("s_add_u32 s58, s67, 60"); a("v_add_u32 v4, s58, v11")
        for phi in range(4):
            if phi: a("v_add_u32 v4, %d, v4" % (KCOPY - 4))
            for i in range(8):
                a("ds_write2st64_b32 v4, v%d, v%d offset0:%d offset1:%d" % (128 + 2 * i, 129 + 2 * i, 2 * i, 2 * i + 1))
        a("s_add_u32 s58, s67, %d" % XB0); a("v_add_u32 v4, s58, v10")
        for r in range(56, 60): a("v_mov_b32 v%d, 0" % r)
        a("s_mov_b64 exec, 0xfffffff")
        a("ds_write_b128 v4, v[56:59] offset:4096"); a("ds_write_b128 v4, v[56:59] offset:%d" % (XSTR + 4096))
        a("s_mov_b64 exec, -1")
        a("v_add_u32 v5, 16, v10")
        a("s_lshr_b32 s58, s65, 4"); a("s_lshl_b32 s58, s58, 7"); a("s_add_u32 s60, s58, %d" % (C1 * 128))
        self.wait(60, 1, 16)
        self.mark(3)
        XD = 16
        for i in range(4):
            a("buffer_load_dwordx4 v[%d:%d], v10, s[%d:%d], 0 offen offset:%d" % (XD + 8 * i, XD + 8 * i + 3, RA, RA + 3, 1024 * i))
        for i in range(4):
            a("buffer_load_dword v%d, v5, s[%d:%d], 0 offen offset:%d" % (XD + 8 * i + 4, RA, RA + 3, 1024 * i))
        for i in range(4):
            d = XD + 8 * i
            a("s_waitcnt vmcnt(%d)" % (7 - i))
            a("ds_write_b128 v4, v[%d:%d] offset:%d" % (d, d + 3, XSTR + 1024 * i))
        for i in range(4):
            d = XD + 8 * i
            a("s_waitcnt vmcnt(%d)" % (3 - i))
            for j in range(4):
                a("v_alignbit_b32 v%d, v%d, v%d, 16" % (48 + j + 4 * (i & 1), d + j + 1, d + j))
            a("ds_write_b128 v4, v[%d:%d] offset:%d" % (48 + 4 * (i & 1), 51 + 4 * (i & 1), 1024 * i))
        a("s_cmp_lt_u32 s%d, 2" % S_WAVE)
        a("s_cselect_b32 s%d, s%d, s%d" % (RC, P_WG, P_WU)); a("s_cselect_b32 s%d, s%d, s%d" % (RC + 1, P_WG + 1, P_WU + 1))
        a("s_and_b32 s%d, s%d, 0xffff" % (RC + 1, RC + 1)); a("s_mov_b32 s%d, %d" % (RC + 2, 1024 * 7168)); a("s_mov_b32 s%d, 0x00020000" % (RC + 3))
        a("s_waitcnt lgkmcnt(0)")
        self.mark(4)
        ACC = 192
        def A(s, i): return 64 + 64 * s + 4 * i
        def B(s, i): return 96 + 64 * s + 4 * i
        def reads(s, rho_off):
            out = []
            for i in range(8):
                out.append("ds_read_b128 v[%d:%d], v14 offset:%d" % (B(s, i), B(s, i) + 3, 3584 - 512 * i + rho_off))
                out.append("ds_read_b128 v[%d:%d], v12 offset:%d" % (A(s, i), A(s, i) + 3, 512 * i + rho_off))
            return out
        def mfmas(s):
            out = []
            for m in range(8):
                for (x, y) in [(i, m) for i in range(m + 1)] + [(m, i) for i in range(m)]:
                    if x + y <= 7:
                        t = ACC + 4 * (x + y)
                        out.append("v_mfma_f32_16x16x32_bf16 v[%d:%d], v[%d:%d], v[%d:%d], v[%d:%d]" % (
                            t, t + 3, A(s, x), A(s, x) + 3, B(s, y), B(s, y) + 3, t, t + 3))
            return out
        for r in reads(0, 0): a(r)
        a("s_waitcnt lgkmcnt(0)")
        for tau in range(8):
            t = ACC + 4 * tau
            a("v_mfma_f32_16x16x32_bf16 v[%d:%d], v[%d:%d], v[%d:%d], 0" % (t, t + 3, AD, AD + 3, B(0, tau), B(0, tau) + 3))
        a("s_mov_b32 s58, 4")
        loop = a.new_label("conv"); a.label(loop)
        if "qw1" not in self.opt:
            nq = a.new_label("noq")
            a("s_cmp_lg_u32 s58, 3"); a("s_cbranch_scc1 %s" % nq)
            self.q_loads()
            a.label(nq)
        for half in range(2):
            if "nopf1" not in self.opt:
                a("buffer_load_dword v15, v224, s[%d:%d], 0 offen" % (RC, RC + 3))
                a("v_add_u32 v224, %d, v224" % (64 * 7168))
            rd = reads(1 - half, 64 * (half + 1)); mf = mfmas(half)
            k = 0
            for i, m in enumerate(mf):
                a(m)
                if i % 2 == 0 and k < len(rd): a(rd[k]); k += 1
            a("s_waitcnt lgkmcnt(0)")
        a("v_add_u32 v12, 128, v12"); a("v_add_u32 v14, 128, v14")
        a("s_sub_u32 s58, s58, 1"); a("s_cmp_lg_u32 s58, 0"); a("s_cbranch_scc1 %s" % loop)
        self.mark(5)
        a("s_nop 7")
        for tau in range(8):
            t = ACC + 4 * tau; P = 16 + 8 * (tau & 1)
            a("v_cvt_pk_bf16_f32 v%d, v%d, v%d" % (P, t, t + 2)); a("v_cvt_pk_bf16_f32 v%d, v%d, v%d" % (P + 1, t + 1, t + 3))
            a("s_nop 1")
            a("v_mov_b32_dpp v%d, v%d quad_perm:[1,0,3,2] row_mask:0xf bank_mask:0xf" % (P + 2, P))
            a("v_mov_b32_dpp v%d, v%d quad_perm:[1,0,3,2] row_mask:0xf bank_mask:0xf" % (P + 3, P + 1))
            a("v_perm_b32 v%d, v%d, v%d, v226" % (P + 4, P + 2, P)); a("v_perm_b32 v%d, v%d, v%d, v226" % (P + 5, P + 3, P + 1))
            off = tau * (32 * 64 + 8 * 16)
            a("ds_write_b32 v227, v%d offset:%d" % (P + 4, off)); a("ds_write_b32 v227, v%d offset:%d" % (P + 5, off + 16))
        a("s_waitcnt lgkmcnt(0)")
        a("s_barrier")
        for i in range(4):
            a("ds_read_b128 v[%d:%d], v228 offset:%d" % (16 + 4 * i, 19 + 4 * i, i * (64 * 64 + 16 * 16)))
        for i in range(4):
            a("s_mov_b32 s58, %d" % (i * 64 * 16384))
            a("s_waitcnt lgkmcnt(%d)" % (3 - i))
            a("buffer_store_dwordx4 v[%d:%d], v229, s[%d:%d], s58 offen sc1" % (16 + 4 * i, 19 + 4 * i, RB, RB + 3))
        self.arrive(["s_and_b32 s58, s2, 15", "s_lshl_b32 s58, s58, 7", "s_add_u32 s60, s58, %d" % (C2 * 128),
                     "v_lshlrev_b32 v7, 11, v2", "v_add_u32 v7, s60, v7"], nlanes=16)
        self.mark(6)

    def shadow(self):
        a = self.a
        T = 104
        a("s_and_b32 s83, s%d, 7" % S_J); a("s_lshr_b32 s59, s%d, 3" % S_J)
        a("s_lshl_b32 s72, s%d, 2" % S_X); a("s_add_u32 s72, s72, s59")
        a("s_lshl_b32 s73, s83, 4"); a("s_lshl_b32 s59, s%d, 2" % S_WAVE); a("s_add_u32 s73, s73, s59")
        a("s_mul_i32 s74, s%d, 7168" % S_WAVE)
        a("s_mov_b32 s75, 0"); a("s_mov_b32 s76, 0"); a("s_mov_b32 s77, 0"); a("s_mov_b32 s78, 0")
        a("s_lshr_b32 s58, s%d, 3" % S_J); a("s_add_u32 s58, s58, s%d" % S_J); a("s_and_b32 s58, s58, 3")
        a("s_mov_b32 s82, %s" % ("0" if "norot1" in self.opt else "s58")); a("s_mov_b32 s64, 0")
        a("s_lshr_b32 s58, s%d, 3" % S_J); a("s_and_b32 s59, s%d, 7" % S_J); a("s_add_u32 s93, s58, s59")
        for i in range(2):
            a("s_sub_u32 s58, s93, 5"); a("s_cmp_ge_u32 s93, 5"); a("s_cselect_b32 s93, s58, s93")
        if "norot2" in self.opt: a("s_mov_b32 s93, 0")
        a("s_sub_u32 s58, s93, 3"); a("s_cmp_ge_u32 s93, 3"); a("s_cselect_b32 s59, s58, s93")
        for t in range(3):
            a("s_lshl_b32 s%d, s59, 17" % (89 + t))
            if t < 2: a("s_add_u32 s59, s59, 1"); a("s_cmp_eq_u32 s59, 3"); a("s_cselect_b32 s59, 0, s59")
        a("s_and_b32 s58, s%d, 1" % S_WAVE); a("s_lshl_b32 s58, s58, 5")
        a("s_mul_i32 s59, s72, 224")
        a("s_mov_b32 s62, 4682"); a("s_mov_b32 s63, 7168")
        for i in range(7):
            a("v_add_u32 v%d, %d, v2" % (T, 64 * i))
            a("v_mul_u32_u24 v%d, s62, v%d" % (T + 1, T)); a("v_lshrrev_b32 v%d, 16, v%d" % (T + 1, T + 1))
            a("v_mul_u32_u24 v%d, 14, v%d" % (T + 2, T + 1)); a("v_sub_u32 v%d, v%d, v%d" % (T + 2, T, T + 2))
            a("v_bfe_u32 v%d, v%d, 2, 2" % (T + 3, T + 1)); a("v_lshlrev_b32 v%d, 3, v%d" % (T + 3, T + 3))
            a("v_lshrrev_b32 v%d, 4, v%d" % (T + 4, T + 1)); a("v_lshl_add_u32 v%d, v%d, 2, v%d" % (T + 3, T + 4, T + 3))
            a("v_and_b32 v%d, 3, v%d" % (T + 4, T + 1)); a("v_add3_u32 v%d, v%d, v%d, s58" % (T + 3, T + 3, T + 4))
            a("v_mul_u32_u24 v%d, s63, v%d" % (T + 3, T + 3))
            a("v_lshl_add_u32 v%d, v%d, 4, v%d" % (T + 3, T + 2, T + 3))
            a("v_add_u32 v%d, s59, v%d" % (T + 3, T + 3))
            self.stash("g1w%d" % i, T + 3)
        a("v_lshlrev_b32 v%d, 4, v2" % T)
        a("s_lshl_b32 s58, s73, 15"); a("v_add_u32 v%d, s58, v%d" % (T + 1, T)); self.stash("g1t", T + 1)
        a("v_lshrrev_b32 v%d, 2, v2" % (T + 1)); a("v_mul_u32_u24 v%d, 224, v%d" % (T + 1, T + 1))
        a("v_and_b32 v%d, 3, v2" % (T + 2)); a("v_lshl_add_u32 v%d, v%d, 3, v%d" % (T + 1, T + 2, T + 1)); self.stash("g1f", T + 1)
        a("v_and_b32 v%d, 15, v2" % (T + 1)); a("v_lshlrev_b32 v%d, 4, v%d" % (T + 1, T + 1)); a("v_lshrrev_b32 v%d, 5, v2" % (T + 2))
        a("v_lshl_add_u32 v%d, v%d, 8, v%d" % (T + 1, T + 2, T + 1)); a("v_bfe_u32 v%d, v2, 4, 1" % (T + 2))
        a("v_lshl_add_u32 v%d, v%d, 9, v%d" % (T + 3, T + 2, T + 1)); self.stash("g1ep", T + 3)
        a("v_mul_u32_u24 v%d, %d, v%d" % (T + 2, 112 * 1024, T + 2)); a("v_add_u32 v%d, v%d, v%d" % (T + 3, T + 2, T + 1)); self.stash("g1es", T + 3)
        a("s_and_b32 s86, s%d, 1" % S_X)
        a("s_bfe_u32 s58, s%d, 0x10001" % S_X); a("s_lshl_b32 s58, s58, 3"); a("s_and_b32 s59, s%d, 7" % S_J); a("s_add_u32 s84, s58, s59")
        a("s_lshr_b32 s58, s%d, 2" % S_X); a("s_lshl_b32 s58, s58, 2"); a("s_lshr_b32 s59, s%d, 3" % S_J); a("s_add_u32 s85, s58, s59")
        a("s_lshl_b32 s87, s84, 3"); a("s_lshl_b32 s58, s%d, 1" % S_WAVE); a("s_add_u32 s87, s87, s58")
        a("s_mul_i32 s58, s86, 1792"); a("s_lshr_b32 s59, s%d, 1" % S_WAVE); a("s_lshl_b32 s59, s59, 5"); a("s_add_u32 s58, s58, s59")
        a("s_lshl_b32 s58, s58, 11")
        a("s_lshl_b32 s59, s85, 8"); a("s_add_u32 s58, s58, s59")
        a("s_and_b32 s59, s%d, 1" % S_WAVE); a("s_lshl_b32 s59, s59, 7"); a("s_add_u32 s58, s58, s59")
        a("v_lshrrev_b32 v%d, 5, v2" % T); a("v_lshlrev_b32 v%d, 3, v%d" % (T, T)); a("v_bfe_u32 v%d, v2, 3, 2" % (T + 1))
        a("v_add_u32 v%d, v%d, v%d" % (T, T, T + 1)); a("v_lshlrev_b32 v%d, 11, v%d" % (T, T))
        a("v_bfe_u32 v%d, v2, 4, 2" % (T + 1)); a("v_lshlrev_b32 v%d, 1, v%d" % (T + 1, T + 1)); a("v_and_b32 v%d, 7, v2" % (T + 2))
        a("v_xor_b32 v%d, v%d, v%d" % (T + 1, T + 1, T + 2))
        a("v_lshl_add_u32 v%d, v%d, 4, v%d" % (T, T + 1, T)); a("v_add_u32 v%d, s58, v%d" % (T, T)); self.stash("g2w", T)
        a("v_lshrrev_b32 v%d, 2, v2" % T); a("v_lshlrev_b32 v%d, 7, v%d" % (T, T))
        a("v_and_b32 v%d, 3, v2" % (T + 1)); a("v_lshl_add_u32 v%d, v%d, 3, v%d" % (T, T + 1, T))
        a("v_bfe_u32 v%d, v2, 3, 2" % (T + 1))
        for c in range(4):
            a("v_xor_b32 v%d, %d, v%d" % (T + 2, c, T + 1)); a("v_lshl_add_u32 v%d, v%d, 5, v%d" % (T + 2, T + 2, T)); self.stash("g2f%d" % c, T + 2)
        a("s_lshl_b32 s88, s%d, 12" % S_WAVE)
        a("v_lshlrev_b32 v%d, 4, v2" % T)
        a("s_add_u32 s58, s87, s86"); a("s_mul_i32 s58, s58, %d" % (112 * 1024)); a("s_mul_i32 s59, s86, %d" % (56 * 1024)); a("s_add_u32 s58, s58, s59")
        a("v_add_u32 v%d, s58, v%d" % (T + 1, T)); self.stash("g2t0", T + 1)
        a("s_xor_b32 s58, s86, 1"); a("s_add_u32 s58, s58, s87"); a("s_mul_i32 s58, s58, %d" % (112 * 1024)); a("s_add_u32 s58, s58, s59")
        a("v_add_u32 v%d, s58, v%d" % (T + 1, T)); self.stash("g2t1", T + 1)
        a("v_and_b32 v%d, 15, v2" % T); a("v_lshlrev_b32 v%d, 11, v%d" % (T, T))
        a("v_lshrrev_b32 v%d, 4, v2" % (T + 1)); a("v_lshl_add_u32 v%d, v%d, 3, v%d" % (T, T + 1, T))
        a("s_add_u32 s58, s87, s86"); a("s_lshl_b32 s58, s58, 15"); a("s_lshl_b32 s59, s85, 8"); a("s_add_u32 s58, s58, s59")
        a("v_add_u32 v%d, s58, v%d" % (T, T)); self.stash("g2o", T)
        a("v_mov_b32 v%d, 0x7fffffff" % (T + 3))
        a("s_lshl_b32 s58, s%d, 1" % S_J); a("s_and_b32 s59, s%d, 1" % S_WAVE); a("s_add_u32 s58, s58, s59")
        a("s_mul_i32 s62, s58, 7168"); a("s_mul_i32 s59, s%d, 896" % S_X); a("s_add_u32 s62, s62, s59")
        a("v_lshlrev_b32 v%d, 7, v2" % T); a("v_add_u32 v%d, s62, v%d" % (T + 1, T))
        a("v_cmp_gt_u32 vcc, 7, v2"); a("s_nop 1"); a("v_cndmask_b32 v224, v%d, v%d, vcc" % (T + 3, T + 1))
        a("s_lshl_b32 s58, s58, 2"); a("s_add_u32 s58, s58, 512"); a("s_mul_i32 s58, s58, 7168"); a("s_add_u32 s58, s58, s59")
        a("s_mov_b32 s62, 9363")
        a("v_mul_u32_u24 v%d, s62, v2" % T); a("v_lshrrev_b32 v%d, 16, v%d" % (T, T))
        a("v_mul_u32_u24 v%d, 7, v%d" % (T + 1, T)); a("v_sub_u32 v%d, v2, v%d" % (T + 1, T + 1))
        a("v_mul_u32_u24 v%d, 7168, v%d" % (T, T)); a("v_lshl_add_u32 v%d, v%d, 7, v%d" % (T, T + 1, T)); a("v_add_u32 v%d, s58, v%d" % (T, T))
        a("v_cmp_gt_u32 vcc, 28, v2"); a("s_nop 1"); a("v_cndmask_b32 v%d, v%d, v%d, vcc" % (T, T + 3, T)); self.stash("pfw", T)
        a("s_lshl_b32 s58, s%d, 2" % S_J); a("s_add_u32 s58, s58, s%d" % S_WAVE); a("s_mul_i32 s58, s58, 5"); a("s_add_u32 s58, s58, 1152")
        a("s_mul_i32 s59, s86, 1792"); a("s_add_u32 s58, s58, s59"); a("s_lshl_b32 s58, s58, 11")
        a("s_lshr_b32 s59, s85, 2"); a("s_lshl_b32 s59, s59, 10"); a("s_add_u32 s58, s58, s59")
        a("v_lshrrev_b32 v%d, 3, v2" % T); a("v_lshlrev_b32 v%d, 11, v%d" % (T, T)); a("v_and_b32 v%d, 7, v2" % (T + 1))
        a("v_lshl_add_u32 v%d, v%d, 7, v%d" % (T, T + 1, T)); a("v_add_u32 v%d, s58, v%d" % (T, T))
        a("v_cmp_gt_u32 vcc, 40, v2"); a("s_nop 1"); a("v_cndmask_b32 v%d, v%d, v%d, vcc" % (T, T + 3, T)); self.stash("pfd", T)
        a("s_and_b32 s92, s%d, 3" % S_J)
        a("v_and_b32 v%d, 1, v2" % T); a("v_lshrrev_b32 v%d, 1, v2" % (T + 1))
        a("v_lshlrev_b32 v%d, 11, v%d" % (T + 2, T)); a("v_lshl_add_u32 v%d, v%d, 4, v%d" % (T + 2, T + 1, T + 2)); self.stash("lnh", T + 2)
        a("s_lshl_b32 s58, s%d, 4" % S_WAVE); a("s_add_u32 s58, s58, %d" % PSTG)
        a("v_lshlrev_b32 v%d, 6, v2" % (T + 2)); a("v_add_u32 v%d, s58, v%d" % (T + 2, T + 2)); self.stash("lny", T + 2)
        a("s_lshl_b32 s58, s%d, 5" % S_WAVE); a("s_add_u32 s58, s58, %d" % CSTG)
        a("v_lshlrev_b32 v%d, 7, v%d" % (T + 2, T + 1)); a("v_lshl_add_u32 v%d, v%d, 4, v%d" % (T + 2, T, T + 2)); a("v_add_u32 v%d, s58, v%d" % (T + 2, T + 2))
        self.stash("lnw", T + 2)
        a("v_lshlrev_b32 v%d, 4, v0" % (T + 2)); a("v_add_u32 v%d, %d, v%d" % (T + 2, CSTG, T + 2)); self.stash("lnr", T + 2)
        a("v_lshrrev_b32 v%d, 5, v0" % (T + 2)); a("v_lshlrev_b32 v%d, 10, v%d" % (T + 2, T + 2))
        a("v_bfe_u32 v%d, v0, 3, 2" % (T + 3)); a("v_lshl_add_u32 v%d, v%d, 8, v%d" % (T + 2, T + 3, T + 2))
        a("v_and_b32 v%d, 7, v0" % (T + 3)); a("v_lshl_add_u32 v%d, v%d, 4, v%d" % (T + 2, T + 3, T + 2)); self.stash("lng", T + 2)
        a("v_and_b32 v%d, 1, v2" % T)
        a("v_mov_b32 v226, 0x05040100"); a("v_mov_b32 v%d, 0x03020706" % (T + 1))
        a("v_cmp_eq_u32 vcc, 1, v%d" % T); a("s_nop 1"); a("v_cndmask_b32 v226, v226, v%d, vcc" % (T + 1))
        a("v_bfe_u32 v%d, v2, 1, 3" % (T + 1)); a("v_lshrrev_b32 v%d, 4, v2" % (T + 2))
        a("v_mul_u32_u24 v227, 272, v%d" % (T + 1)); a("v_lshl_add_u32 v227, v%d, 6, v227" % (T + 2)); a("v_lshl_add_u32 v227, v%d, 5, v227" % T)
        a("s_lshl_b32 s58, s%d, 2" % S_WAVE); a("s_add_u32 s58, s58, %d" % CSTG); a("v_add_u32 v227, s58, v227")
        a("v_lshrrev_b32 v%d, 2, v0" % T); a("v_and_b32 v%d, 3, v0" % (T + 1)); a("v_lshrrev_b32 v%d, 4, v0" % (T + 2))
        a("v_lshlrev_b32 v228, 6, v%d" % T); a("v_lshl_add_u32 v228, v%d, 4, v228" % (T + 2)); a("v_lshl_add_u32 v228, v%d, 4, v228" % (T + 1))
        a("v_add_u32 v228, %d, v228" % CSTG)
        a("v_lshlrev_b32 v229, 14, v%d" % T); a("v_lshl_add_u32 v229, v%d, 4, v229" % (T + 1)); a("s_lshl_b32 s58, s65, 6"); a("v_add_u32 v229, s58, v229")

    def g1_setup(self):
        a = self.a
        a("s_cmp_lt_u32 s%d, 2" % S_WAVE)
        a("s_cselect_b32 s%d, s%d, s%d" % (RA, P_WG, P_WU)); a("s_cselect_b32 s%d, s%d, s%d" % (RA + 1, P_WG + 1, P_WU + 1))
        a("s_and_b32 s%d, s%d, 0xffff" % (RA + 1, RA + 1)); a("s_mov_b32 s%d, %d" % (RA + 2, 1024 * 7168)); a("s_mov_b32 s%d, 0x00020000" % (RA + 3))
        for i in range(7): self.unstash("g1w%d" % i, 8 + i)
        for st in range(3): self.g1_wload_all()
        self.in_srd(RE, P_WD, 3584 * 2048)
    def g1_dma(self, i):
        fl = "nt" if "g1nt" in self.opt else "sc1" if "g1sc1" in self.opt else "sc0" if "g1sc0" in self.opt else "sc0 sc1" if "g1sc01" in self.opt else ""
        return ["s_add_u32 m0, s79, %d" % (1024 * i), "buffer_load_dwordx4 v%d, s[%d:%d], s77 offen %s lds" % (8 + i, RA, RA + 3, fl)]
    def g1_wadv(self):
        return ["s_add_u32 s82, s82, 1", "s_and_b32 s82, s82, 3", "s_add_u32 s75, s75, %d" % G1_STAGE,
                "s_cmp_eq_u32 s75, %d" % (G1_STAGE * G1_NSLOT), "s_cselect_b32 s75, 0, s75"]
    def g1_wload_all(self):
        a = self.a
        a("s_add_u32 s79, s75, s74"); a("s_mul_i32 s77, s82, %d" % (64 * 7168))
        for i in range(7):
            d = self.g1_dma(i); a(d[0]); a("s_nop 0"); a(d[1])
        for s in self.g1_wadv(): a(s)

    def reduce4(self, regs, sdst):
        a = self.a
        def step(mod):
            for r in regs: a("v_add_f32_dpp v%d, v%d, v%d %s" % (r, r, r, mod))
        a("s_nop 1")
        step("quad_perm:[1,0,3,2] row_mask:0xf bank_mask:0xf"); step("quad_perm:[2,3,0,1] row_mask:0xf bank_mask:0xf")
        step("row_half_mirror row_mask:0xf bank_mask:0xf"); step("row_mirror row_mask:0xf bank_mask:0xf")
        step("row_bcast:15 row_mask:0xa bank_mask:0xf"); step("row_bcast:31 row_mask:0xc bank_mask:0xf")
        a("s_nop 0")
        for r, s in zip(regs, sdst): a("v_readlane_b32 s%d, v%d, 63" % (s, r))
    def ln_scalars(self, sS, T):
        a = self.a
        t0, t1, t2, t3, t4, t5 = T + 8, T + 9, T + 10, T + 11, T + 12, T + 13
        M = S_MASK
        a("s_nop 1")
        a("v_mul_f32 v%d, s%d, v%d" % (t0, sS[0], T + 14)); a("v_mul_f32 v%d, s%d, v%d" % (t1, sS[2], T + 14))
        a("v_mul_f32 v%d, s%d, v%d" % (t2, sS[1], T + 14)); a("v_mul_f32 v%d, s%d, v%d" % (t3, sS[3], T + 14))
        a("v_fma_f32 v%d, -v%d, v%d, v%d" % (t2, t0, t0, t2)); a("v_fma_f32 v%d, -v%d, v%d, v%d" % (t3, t1, t1, t3))
        a("v_max_f32 v%d, 0, v%d" % (t2, t2)); a("v_max_f32 v%d, 0, v%d" % (t3, t3))
        a("v_cvt_pk_bf16_f32 v%d, v%d, v%d" % (t4, t0, t1)); a("v_cvt_pk_bf16_f32 v%d, v%d, v%d" % (t5, t2, t3))
        a("v_lshlrev_b32 v%d, 16, v%d" % (t0, t4)); a("v_and_b32 v%d, s%d, v%d" % (t1, M, t4))
        a("v_lshlrev_b32 v%d, 16, v%d" % (t2, t5)); a("v_and_b32 v%d, s%d, v%d" % (t3, M, t5))
        a("v_add_f32 v%d, s%d, v%d" % (t2, S_EPS, t2)); a("v_add_f32 v%d, s%d, v%d" % (t3, S_EPS, t3))
        a("v_cvt_pk_bf16_f32 v%d, v%d, v%d" % (t5, t2, t3))
        a("v_lshlrev_b32 v%d, 16, v%d" % (t2, t5)); a("v_and_b32 v%d, s%d, v%d" % (t3, M, t5))
        a("v_sqrt_f32 v%d, v%d" % (t2, t2)); a("v_sqrt_f32 v%d, v%d" % (t3, t3)); a("s_nop 0")
        a("v_cvt_pk_bf16_f32 v%d, v%d, v%d" % (t5, t2, t3))
        a("v_lshlrev_b32 v%d, 16, v%d" % (t2, t5)); a("v_and_b32 v%d, s%d, v%d" % (t3, M, t5))
        a("v_rcp_f32 v%d, v%d" % (T + 0, t2)); a("v_rcp_f32 v%d, v%d" % (T + 4, t3)); a("s_nop 0")
        a("v_mul_f32 v%d, v%d, v%d" % (T + 2, t0, T + 0)); a("v_mul_f32 v%d, v%d, v%d" % (T + 6, t1, T + 4))
        a("v_sub_f32 v%d, 0, v%d" % (T + 2, T + 2)); a("v_sub_f32 v%d, 0, v%d" % (T + 6, T + 6))
    def stats(self, X, acc):
        a = self.a
        for tok in range(2):
            b = X + 16 * tok; S = acc + 4 * tok; Q = S + 2
            a("v_pk_add_f32 v[%d:%d], v[%d:%d], v[%d:%d]" % (S, S + 1, b, b + 1, b + 2, b + 3))
            a("v_pk_mul_f32 v[%d:%d], v[%d:%d], v[%d:%d]" % (Q, Q + 1, b, b + 1, b, b + 1))
        for p in range(1, 8):
            for tok in range(2):
                b = X + 16 * tok + 2 * p; S = acc + 4 * tok; Q = S + 2
                if p >= 2: a("v_pk_add_f32 v[%d:%d], v[%d:%d], v[%d:%d]" % (S, S + 1, S, S + 1, b, b + 1))
                a("v_pk_fma_f32 v[%d:%d], v[%d:%d], v[%d:%d], v[%d:%d]" % (Q, Q + 1, b, b + 1, b, b + 1, Q, Q + 1))
        for r in (0, 2, 4, 6): a("v_add_f32 v%d, v%d, v%d" % (acc + r, acc + r, acc + r + 1))
    def ln(self):
        a = self.a
        M = S_MASK
        X, L1, Y, YR, HP, ACC, T = 32, 64, 96, 128, 144, 160, 168
        LP, U = 128, 96
        a("v_mov_b32 v%d, 0x3a800000" % (T + 14))
        for tok in range(2):
            for p in range(8):
                dst = X + 16 * tok + 2 * p
                a("v_accvgpr_read_b32 v3, a%d" % (160 + 8 * tok + p))
                a("v_lshlrev_b32 v%d, 16, v3" % dst); a("v_and_b32 v%d, s%d, v3" % (dst + 1, M))
        self.stats(X, ACC)
        self.reduce4([ACC, ACC + 2, ACC + 4, ACC + 6], [60, 61, 62, 63])
        self.ln_scalars([60, 61, 62, 63], T)
        for tok in range(2):
            r, c = T + 4 * tok, T + 4 * tok + 2
            for p in range(8):
                x = X + 16 * tok + 2 * p; l = L1 + 16 * tok + 2 * p
                a("v_pk_fma_f32 v[%d:%d], v[%d:%d], v[%d:%d], v[%d:%d] op_sel_hi:[1,0,0]" % (l, l + 1, x, x + 1, r, r + 1, c, c + 1))
        self.ws_srd(RB, WS_YB, 4194304); self.ws_srd(RC, WS_H, 4194304); self.ws_srd(RD, WS_LN2, 4194304)
        a("v_lshlrev_b32 v24, 4, v2")
        self.unstash("lnh", 4); self.unstash("lny", 5); self.unstash("lnw", 16); self.unstash("lnr", 17); self.unstash("lng", 18)
        a("s_lshl_b32 s61, s%d, 12" % S_WAVE); a("s_lshl_b32 s62, s2, 14"); a("s_add_u32 s62, s62, s61")
        a("s_add_u32 s61, s61, %d" % PSTG)
        a("s_and_b32 s60, s2, 15"); a("s_lshl_b32 s60, s60, 11"); a("s_add_u32 s60, s60, %d" % (C2 * 128))
        self.mark(7)
        self.wait(60, 16, 16)
        self.mark(8)
        a("s_mov_b32 m0, s61"); a("s_nop 0")
        for i in range(4):
            a("buffer_load_dwordx4 v24, s[%d:%d], s62 offen offset:%d lds" % (RB, RB + 3, 1024 * i))
        a("s_waitcnt vmcnt(0)")
        a("s_barrier")
        for i in range(4):
            a("ds_read_b128 v[%d:%d], v5 offset:%d" % (YR + 4 * i, YR + 4 * i + 3, 4096 * i))
        for i in range(4):
            a("s_waitcnt lgkmcnt(%d)" % (3 - i))
            for c in range(4):
                a("v_lshlrev_b32 v%d, 16, v%d" % (Y + 4 * i + c, YR + 4 * i + c)); a("v_and_b32 v%d, s%d, v%d" % (Y + 16 + 4 * i + c, M, YR + 4 * i + c))
        for tok in range(2):
            for p in range(8):
                x = X + 16 * tok + 2 * p; y = Y + 16 * tok + 2 * p; l = L1 + 16 * tok + 2 * p
                a("v_pk_fma_f32 v[%d:%d], v[%d:%d], v[%d:%d], v[%d:%d]" % (l, l + 1, l, l + 1, y, y + 1, x, x + 1))
                a("v_cvt_pk_bf16_f32 v%d, v%d, v%d" % (HP + 8 * tok + p, l, l + 1))
        HU = 184
        a("s_mov_b32 vcc_lo, 0x55555555"); a("s_mov_b32 vcc_hi, 0x55555555"); a("s_nop 1")
        for i in range(4):
            for d in range(2):
                a("v_cndmask_b32_dpp v%d, v%d, v%d, vcc quad_perm:[1,0,3,2] row_mask:0xf bank_mask:0xf" % (HU + 4 * i + d, HP + 8 + 2 * i + d, HP + 2 * i + d))
        a("s_mov_b32 vcc_lo, 0xaaaaaaaa"); a("s_mov_b32 vcc_hi, 0xaaaaaaaa"); a("s_nop 1")
        for i in range(4):
            for d in range(2):
                a("v_cndmask_b32_dpp v%d, v%d, v%d, vcc quad_perm:[1,0,3,2] row_mask:0xf bank_mask:0xf" % (HU + 4 * i + 2 + d, HP + 2 * i + d, HP + 8 + 2 * i + d))
        for i in range(4):
            a("buffer_store_dwordx4 v[%d:%d], v4, s[%d:%d], s70 offen offset:%d sc1" % (HU + 4 * i, HU + 4 * i + 3, RC, RC + 3, 512 * i))
        for tok in range(2):
            for p in range(8):
                src = HP + 8 * tok + p; dst = X + 16 * tok + 2 * p
                a("v_lshlrev_b32 v%d, 16, v%d" % (dst, src)); a("v_and_b32 v%d, s%d, v%d" % (dst + 1, M, src))
        self.stats(X, ACC)
        self.reduce4([ACC, ACC + 2, ACC + 4, ACC + 6], [60, 61, 62, 63])
        self.ln_scalars([60, 61, 62, 63], T)
        for tok in range(2):
            r, c = T + 4 * tok, T + 4 * tok + 2
            for p in range(8):
                x = X + 16 * tok + 2 * p
                a("v_pk_fma_f32 v[%d:%d], v[%d:%d], v[%d:%d], v[%d:%d] op_sel_hi:[1,0,0]" % (ACC, ACC + 1, x, x + 1, r, r + 1, c, c + 1))
                a("v_cvt_pk_bf16_f32 v%d, v%d, v%d" % (LP + 8 * tok + p, ACC, ACC + 1))
        a("s_mov_b32 vcc_lo, 0x55555555"); a("s_mov_b32 vcc_hi, 0x55555555"); a("s_nop 1")
        for i in range(4):
            for d in range(2):
                a("v_cndmask_b32_dpp v%d, v%d, v%d, vcc quad_perm:[1,0,3,2] row_mask:0xf bank_mask:0xf" % (U + 4 * i + d, LP + 8 + 2 * i + d, LP + 2 * i + d))
        a("s_mov_b32 vcc_lo, 0xaaaaaaaa"); a("s_mov_b32 vcc_hi, 0xaaaaaaaa"); a("s_nop 1")
        for i in range(4):
            for d in range(2):
                a("v_cndmask_b32_dpp v%d, v%d, v%d, vcc quad_perm:[1,0,3,2] row_mask:0xf bank_mask:0xf" % (U + 4 * i + 2 + d, LP + 2 * i + d, LP + 8 + 2 * i + d))
        for i in range(4):
            a("ds_write_b128 v16, v[%d:%d] offset:%d" % (U + 4 * i, U + 4 * i + 3, 4096 * i))
        a("s_lshr_b32 s58, s2, 1"); a("s_lshl_b32 s58, s58, 15"); a("s_and_b32 s59, s2, 1"); a("s_lshl_b32 s59, s59, 7"); a("s_add_u32 s58, s58, s59")
        a("s_waitcnt lgkmcnt(0)")
        a("s_barrier")
        for i in range(4):
            a("ds_read_b128 v[%d:%d], v17 offset:%d" % (LP + 4 * i, LP + 4 * i + 3, 4096 * i))
        for i in range(4):
            a("s_add_u32 s59, s58, %d" % (8192 * i))
            a("s_waitcnt lgkmcnt(%d)" % (3 - i))
            a("buffer_store_dwordx4 v[%d:%d], v18, s[%d:%d], s59 offen sc1" % (LP + 4 * i, LP + 4 * i + 3, RD, RD + 3))
        self.mark(9)
        self.unstash("g1t", 20); self.unstash("g1f", 15); self.unstash("g2w", 25)
        for c in range(4): self.unstash("g2f%d" % c, 26 + c)
        self.unstash("pfd", 30); self.unstash("pfw", 31)
        for tt in range(1, 4): a("v_add_u32 v%d, %d, v20" % (20 + tt, 32768 * tt))
        self.arrive(["s_lshr_b32 s58, s2, 5", "s_lshl_b32 s58, s58, 4", "s_and_b32 s59, s2, 1", "s_add_u32 s58, s58, s59", "s_lshl_b32 s58, s58, 7",
                     "s_add_u32 s60, s58, %d" % (C3 * 128), "v_lshlrev_b32 v7, 8, v2", "v_add_u32 v7, s60, v7"], nlanes=8)
        self.mark(10)

    def g2_dma(self, i, soff):
        fl = "nt" if "g2nt" in self.opt else "sc1" if "g2sc1" in self.opt else ""
        return "buffer_load_dwordx4 v%d, s[%d:%d], s%d offen offset:%d %s lds" % (8 + i, RE, RE + 3, soff, 1024 * i, fl)
    def g2_voffs(self):
        return ["v_add_u32 v%d, %d, v25" % (8 + i, 2048 * (16 * (i & 1) + 4 * (i >> 1)) - 1024 * i) for i in range(4)]

    def gemm1(self):
        a = self.a
        ACC, TOK, WF, PD = 32, 0, 128, 5
        def acc(ct, tt): return ACC + (ct * 4 + tt) * 4
        def wreg(F): return WF + 4 * (F % 7)
        def foff(F, jh):
            kk, ct = F // 14, F % 14
            return (ct // 7) * 14336 + kk * 7168 + jh * 3584 + (ct % 7) * 32
        def tokload(slot, j):
            kk, tt = j >> 2, j & 3
            r = TOK + 32 * slot + 16 * kk + 4 * tt
            fl = "sc1" if "g1tsc1" in self.opt else "nt" if "g1tnt" in self.opt else ""
            return "buffer_load_dwordx4 a[%d:%d], v%d, s[%d:%d], s78 offen offset:%d %s" % (r, r + 3, 20 + tt, RD, RD + 3, 1024 * kk, fl)
        pf = "nopf2" not in self.opt
        def pfops():
            return [([], "buffer_load_dword v19, v30, s[%d:%d], 0 offen" % (RE, RE + 3)),
                    ([], "buffer_load_dword v19, v31, s[%d:%d], 0 offen" % (RC, RC + 3))]
        def pfturn(u):
            return ["s_cmp_eq_u32 s92, %d" % u, "s_cselect_b32 s%d, %d, 0" % (RE + 2, 3584 * 2048), "s_cselect_b32 s%d, %d, 0" % (RC + 2, 1024 * 7168)]
        if pf:
            for i in range(4): a("s_mov_b32 s%d, s%d" % (RC + i, RA + i))
            a("s_mov_b32 s%d, 0" % (RC + 2)); a("s_mov_b32 s%d, 0" % (RE + 2))
        self.ws_srd(RB, WS_HH, 128 * 112 * 1024)
        a("s_lshl_b32 s58, s83, 4"); a("s_lshl_b32 s59, s%d, 1" % S_X); a("s_add_u32 s58, s58, s59"); a("s_lshl_b32 s58, s58, 7")
        a("s_add_u32 s60, s58, %d" % (C3 * 128))
        def zero_acc():
            for r in range(32, 256): a("v_mov_b32 v%d, 0" % r)
        self.wait(60, 2, 16, shadow=zero_acc)
        self.mark(11)
        for st in range(3):
            a("s_add_u32 s58, s82, %d" % (st + 1)); a("s_and_b32 s58, s58, 3"); a("s_lshl_b32 s78, s58, 11")
            for j in range(8): a(tokload(st, j))
        if pf:
            for pre, op in pfops():
                for x in pre: a(x)
                a(op)
        a("v_mov_b32 v16, v15")
        for F in range(PD):
            for jh in range(2):
                a("ds_read_b64_tr_b16 a[%d:%d], v16 offset:%d" % (wreg(F) + 2 * jh, wreg(F) + 2 * jh + 1, foff(F, jh)))
        a("s_waitcnt vmcnt(%d)" % (10 if pf else 8))
        self.mark(12)
        def stage(u, loads, bwait, last=False, extra=None, pfop=False):
            vm = []
            if loads:
                for i in range(7):
                    d = self.g1_dma(i); vm.append(([d[0]], d[1]))
                for j in range(8): vm.append(([], tokload((u + 3) % 4, j)))
                if pfop: vm += pfops()
            if extra: vm = vm + extra
            for F in range(28):
                kk, ct = F // 14, F % 14
                w = wreg(F)
                def mf(tt):
                    t = TOK + 32 * u + 16 * kk + 4 * tt
                    c = acc(ct, tt)
                    a("v_mfma_f32_16x16x32_bf16 v[%d:%d], a[%d:%d], a[%d:%d], v[%d:%d]" % (c, c + 3, w, w + 3, t, t + 3, c, c + 3))
                if F == 0 and loads:
                    a("s_add_u32 s79, s75, s74"); a("s_add_u32 s58, s64, s82"); a("s_mul_i32 s77, s58, %d" % (64 * 7168)); a("s_lshl_b32 s78, s58, 11")
                if F == 1 and pfop:
                    for x in pfturn(u): a(x)
                if F == 28 - PD and not last:
                    a("s_waitcnt vmcnt(%d)" % bwait)
                    a("s_barrier")
                    a("s_add_u32 s76, s76, %d" % G1_STAGE); a("s_cmp_eq_u32 s76, %d" % (G1_STAGE * G1_NSLOT)); a("s_cselect_b32 s76, 0, s76")
                    a("v_add_u32 v16, s76, v15")
                rd = not (last and F >= 28 - PD)
                if rd: a("s_waitcnt lgkmcnt(%d)" % (2 * (PD - 1)))
                else: a("s_waitcnt lgkmcnt(%d)" % (2 * (27 - F)))
                Fn = (F + PD) % 28
                mf(0)
                if rd: a("ds_read_b64_tr_b16 a[%d:%d], v16 offset:%d" % (wreg(F + PD), wreg(F + PD) + 1, foff(Fn, 0)))
                mf(1)
                if rd: a("ds_read_b64_tr_b16 a[%d:%d], v16 offset:%d" % (wreg(F + PD) + 2, wreg(F + PD) + 3, foff(Fn, 1)))
                if F < len(vm):
                    for s in vm[F][0]: a(s)
                mf(2)
                if F < len(vm): a(vm[F][1])
                mf(3)
                if F == 18 and loads:
                    for s in self.g1_wadv(): a(s)
                    if u == 0: a("s_add_u32 s64, s64, 4")
                if F == 19 and pfop and u == 3:
                    a("v_add_u32 v30, %d, v30" % (-640 * 2048)); a("v_add_u32 v31, %d, v31" % (256 * 7168))
        a("s_mov_b32 s80, 3")
        loop = a.new_label("g1"); a.label(loop)
        for u in range(4):
            stage(u, True, 36 if pf else 30, pfop=pf)
        a("s_sub_u32 s80, s80, 1"); a("s_cmp_lg_u32 s80, 0"); a("s_cbranch_scc1 %s" % loop)
        self.mark(13)
        a("s_mov_b32 s%d, %d" % (RE + 2, 3584 * 2048))
        stage(0, True, 34 if pf else 30); stage(1, False, 17 if pf else 15); stage(2, False, 0)
        for x in self.g2_voffs(): a(x)
        ex = []
        for st in range(3):
            for i in range(4):
                ex.append((["s_add_u32 m0, s88, %d" % (G2_BASE + st * G2_STAGE)] if i == 0 else [], self.g2_dma(i, 89 + st)))
        stage(3, False, 0, last=True, extra=ex)
        self.mark(14)
        a("s_mul_i32 s58, s73, %d" % (112 * 1024))
        a("s_mul_i32 s59, s72, 7"); a("s_add_u32 s60, s59, 1"); a("s_lshr_b32 s60, s60, 1")
        a("s_lshl_b32 s60, s60, 10"); a("s_add_u32 s60, s60, s58")
        a("s_and_b32 s61, s72, 1")
        odd = a.new_label("odd"); fin = a.new_label("fin")
        self.unstash("g1ep", 3); self.unstash("g1es", 4)
        a("s_nop 7")
        a("s_cmp_eq_u32 s61, 1"); a("s_cbranch_scc1 %s" % odd)
        for par in range(2):
            if par == 1: a.label(odd)
            cs = 0 if par else 6
            for tt in range(4):
                for c in range(7):
                    g, u = acc(c, tt), acc(7 + c, tt)
                    for i in range(4): a("v_mul_f32 v%d, v%d, v%d" % (g + i, g + i, u + i))
                a("s_add_u32 s61, s60, %d" % (tt * 112 * 1024))
                for j in range(3):
                    c = par + 2 * j
                    g0, g1, u = acc(c, tt), acc(c + 1, tt), acc(7 + c, tt)
                    a("v_cvt_pk_bf16_f32 v%d, v%d, v%d" % (u, g0, g0 + 1)); a("v_cvt_pk_bf16_f32 v%d, v%d, v%d" % (u + 1, g0 + 2, g0 + 3))
                    a("v_cvt_pk_bf16_f32 v%d, v%d, v%d" % (u + 2, g1, g1 + 1)); a("v_cvt_pk_bf16_f32 v%d, v%d, v%d" % (u + 3, g1 + 2, g1 + 3))
                g, u = acc(cs, tt), acc(7 + cs, tt & ~1) + 2 * (tt & 1)
                a("v_cvt_pk_bf16_f32 v%d, v%d, v%d" % (u, g, g + 1)); a("v_cvt_pk_bf16_f32 v%d, v%d, v%d" % (u + 1, g + 2, g + 3))
                for j in range(3):
                    u = acc(7 + par + 2 * j, tt)
                    a("v_permlane16_swap_b32 v%d, v%d" % (u, u + 2)); a("v_permlane16_swap_b32 v%d, v%d" % (u + 1, u + 3))
                    a("buffer_store_dwordx4 v[%d:%d], v3, s[%d:%d], s61 offen offset:%d sc1" % (u, u + 3, RB, RB + 3, 1024 * j))
                if tt & 1:
                    u = acc(7 + cs, tt & ~1)
                    a("s_add_u32 s62, s60, %d" % ((tt & ~1) * 112 * 1024 + (3072 if par == 0 else -512)))
                    a("v_permlane16_swap_b32 v%d, v%d" % (u, u + 2)); a("v_permlane16_swap_b32 v%d, v%d" % (u + 1, u + 3))
                    a("buffer_store_dwordx4 v[%d:%d], v4, s[%d:%d], s62 offen sc1" % (u, u + 3, RB, RB + 3))
            if par == 0: a("s_branch %s" % fin)
        a.label(fin)
        self.mark(15)
        self.g2_pre()
        self.arrive(["s_lshl_b32 s58, s83, 1", "s_lshr_b32 s59, s72, 4", "s_add_u32 s58, s58, s59", "s_lshl_b32 s58, s58, 8",
                     "s_add_u32 s60, s58, %d" % (C4 * 128), "v_lshlrev_b32 v7, 7, v2", "v_add_u32 v7, s60, v7"], nlanes=2)
        self.mark(16)

    def g2_pre(self):
        a = self.a
        self.unstash("g2t0", 20); self.unstash("g2t1", 21); self.unstash("g2o", 22)
        self.in_srd(RD, P_OUT, 4194304)
        self.ws_srd(RA, WS_XCH, 256 * 32768)
        self.ws_srd(RC, WS_H, 4194304)
        for u, sw in enumerate(G2_SW):
            a("s_add_u32 s58, s93, %d" % u); a("s_sub_u32 s59, s58, 5"); a("s_cmp_ge_u32 s58, 5"); a("s_cselect_b32 s58, s59, s58")
            a("s_add_u32 s58, s58, 3"); a("s_lshl_b32 s%d, s58, 17" % sw)
    def gemm2(self):
        a = self.a
        ACC, HR, TOK, WF, PD, NST = 32, 96, 0, 80, 7, 28
        def acc(ct, tt): return ACC + (ct * 2 + tt) * 4
        def tokload(slot, j):
            kk, tt = j >> 1, j & 1
            r = TOK + 16 * slot + 8 * kk + 4 * tt
            fl = "nt" if "g2tnt" in self.opt else "" if "g2tpl" in self.opt else "sc1"
            return "buffer_load_dwordx4 a[%d:%d], v%d, s[%d:%d], s78 offen offset:%d %s" % (r, r + 3, 20 + tt, RB, RB + 3, 1024 * kk, fl)
        def fread(slot, F, jh):
            kk, ct = F // 8, F % 8
            r = WF + 4 * (F % 8) + 2 * jh
            base, so = (26, slot) if slot < 3 else (12, slot - 3)
            return "ds_read_b64_tr_b16 a[%d:%d], v%d offset:%d" % (r, r + 1, base + (ct & 3), so * G2_STAGE + (2 * kk + (ct >> 2)) * 4096 + jh * 2048)
        a("s_lshr_b32 s58, s84, 1"); a("s_lshl_b32 s58, s58, 1"); a("s_add_u32 s58, s58, s86"); a("s_lshl_b32 s58, s58, 1")
        a("s_lshr_b32 s59, s%d, 2" % S_X); a("s_add_u32 s58, s58, s59"); a("s_lshl_b32 s58, s58, 7")
        a("s_add_u32 s60, s58, %d" % (C4 * 128))
        def zero_acc():
            for r in range(ACC, ACC + 64): a("v_mov_b32 v%d, 0" % r)
            for c in range(4):
                a("v_add_u32 v%d, %d, v%d" % (12 + c, G2_BASE + 3 * G2_STAGE, 26 + c)); a("v_add_u32 v%d, %d, v%d" % (26 + c, G2_BASE, 26 + c))
        self.wait(60, 1, 16, shadow=zero_acc)
        self.mark(17)
        for st in range(3):
            a("s_lshr_b32 s78, s%d, 6" % (89 + st))
            for j in range(4): a(tokload(st, j))
        for F in range(PD):
            for jh in range(2): a(fread(0, F, jh))
        a("s_add_u32 m0, s88, %d" % (G2_BASE + 3 * G2_STAGE))
        a("s_waitcnt vmcnt(4) lgkmcnt(10)")
        self.mark(18)
        def stage(u, loads, bwait, last=False, extra=None, tailops=None):
            G = [[] for _ in range(32)]
            nods = "x2nods" in self.opt
            for F in range(16):
                Fn = F + PD
                if not nods and not (last and Fn >= 16):
                    sl = u if Fn < 16 else (u + 1) % 5
                    G[2 * F].append(fread(sl, Fn % 16, 0)); G[2 * F + 1].append(fread(sl, Fn % 16, 1))
                if F & 1:
                    if not last: G[2 * F + 1].append("s_waitcnt lgkmcnt(10)")
                    elif F < 15:
                        issued = min(F + PD, 15); need = F + 2
                        G[2 * F + 1].append("s_waitcnt lgkmcnt(%d)" % max(0, 2 * (issued - need)))
            vm = []
            if loads:
                sw = G2_SW[u]
                vm = [self.g2_dma(i, sw) for i in range(4)] + [tokload((u + 3) % 5, j) for j in range(4)]
                if "x2nodma" in self.opt: vm[:4] = ["s_nop 0"] * 4
                if "x2notok" in self.opt: vm[4:] = ["s_nop 0"] * 4
                G[1].append("s_lshr_b32 s78, s%d, 6" % sw)
                G[9].append("s_add_u32 s%d, s%d, %d" % (sw, sw, 5 << 17))
                G[29].append("s_add_u32 m0, s88, %d" % (G2_BASE + ((u + 4) % 5) * G2_STAGE))
            if extra: vm = extra
            for i, x in enumerate(vm): G[2 * i].append(x)
            if not last:
                G[16].append("s_waitcnt vmcnt(%d)" % bwait); G[17].append("s_barrier")
            if tailops:
                for g, x in tailops: G[g].append(x)
            k = 0
            for F in range(16):
                kk, ct = F // 8, F % 8
                w = WF + 4 * (F % 8)
                for tt in range(2):
                    t = TOK + 16 * u + 8 * kk + 4 * tt; c = acc(ct, tt)
                    if "x2nomfma" not in self.opt:
                        a("v_mfma_f32_16x16x32_bf16 v[%d:%d], a[%d:%d], a[%d:%d], v[%d:%d]" % (c, c + 3, w, w + 3, t, t + 3, c, c + 3))
                    for x in G[k]: a(x)
                    k += 1
        a("s_mov_b32 s81, 5")
        loop = a.new_label("g2"); a.label(loop)
        for u in range(5):
            stage(u, True, 16, tailops=[(21, "s_sub_u32 s81, s81, 1"), (30, "s_cmp_lg_u32 s81, 0")] if u == 4 else None)
        a("s_cbranch_scc1 %s" % loop)
        hl = ["buffer_load_dwordx2 v[%d:%d], v22, s[%d:%d], 0 offen offset:%d sc1" % (HR + 2 * ct, HR + 2 * ct + 1, RC, RC + 3, 32 * ct) for ct in range(8)]
        stage(0, False, 16, extra=hl); stage(1, False, 8); stage(2, False, 0, last=True)
        self.mark(19)
        a("s_lshl_b32 s58, s2, 15"); a("s_lshl_b32 s59, s%d, 13" % S_WAVE); a("s_add_u32 s61, s58, s59")
        a("s_xor_b32 s58, s2, 1"); a("s_lshl_b32 s58, s58, 15"); a("s_add_u32 s62, s58, s59")
        a("s_waitcnt lgkmcnt(0)")
        a("s_nop 7")
        for ct in range(8):
            c = acc(ct, 1)
            a("s_add_u32 s58, s61, %d" % (4096 * (ct >> 2)))
            a("buffer_store_dwordx4 v[%d:%d], v24, s[%d:%d], s58 offen offset:%d sc1" % (c, c + 3, RA, RA + 3, 1024 * (ct & 3)))
        a("s_waitcnt vmcnt(8)")
        for ct in range(8):
            c = acc(ct, 0); r = HR + 2 * ct
            a("v_lshlrev_b32 v4, 16, v%d" % r); a("v_and_b32 v5, s%d, v%d" % (S_MASK, r))
            a("v_lshlrev_b32 v6, 16, v%d" % (r + 1)); a("v_and_b32 v7, s%d, v%d" % (S_MASK, r + 1))
            for i in range(4): a("v_add_f32 v%d, v%d, v%d" % (c + i, c + i, 4 + i))
        self.arrive(["s_lshl_b32 s58, s2, 7", "s_add_u32 s60, s58, %d" % (XF * 128), "v_mov_b32 v7, s60"])
        self.mark(20)
        a("s_xor_b32 s58, s2, 1"); a("s_lshl_b32 s58, s58, 7"); a("s_add_u32 s60, s58, %d" % (XF * 128))
        self.wait(60, 1, 1)
        self.mark(21)
        R = 112
        for ct in range(8):
            a("s_add_u32 s58, s62, %d" % (4096 * (ct >> 2)))
            a("buffer_load_dwordx4 v[%d:%d], v24, s[%d:%d], s58 offen offset:%d" % (R + 4 * ct, R + 4 * ct + 3, RA, RA + 3, 1024 * (ct & 3)))
        for ct in range(8):
            c = acc(ct, 0); r = R + 4 * ct
            a("s_waitcnt vmcnt(7)")
            for i in range(4): a("v_add_f32 v%d, v%d, v%d" % (c + i, c + i, r + i))
            a("v_cvt_pk_bf16_f32 v%d, v%d, v%d" % (r, c, c + 1)); a("v_cvt_pk_bf16_f32 v%d, v%d, v%d" % (r + 1, c + 2, c + 3))
            a("buffer_store_dwordx2 v[%d:%d], v22, s[%d:%d], 0 offen offset:%d" % (r, r + 1, RD, RD + 3, 32 * ct))
        self.mark(22)

    def finish(self, name):
        a = self.a
        if self.diag:
            a("s_waitcnt vmcnt(0) lgkmcnt(0)")
            self.mark(23)
            a("s_memrealtime s[92:93]"); a("s_waitcnt lgkmcnt(0)")
            a("v_accvgpr_read_b32 v1, a255"); a("s_nop 1")
            for i, s in enumerate((94, 95, 96, 97, 92, 93)):
                a("v_writelane_b32 v1, s%d, %d" % (s, 56 + i))
            self.ws_srd(RA, STAMP, 256 * 1024)
            a("s_lshl_b32 s58, s2, 10"); a("s_lshl_b32 s59, s%d, 8" % S_WAVE); a("s_add_u32 s58, s58, s59")
            a("v_lshlrev_b32 v3, 2, v2")
            a("buffer_store_dword v1, v3, s[%d:%d], s58 offen" % (RA, RA + 3))
        a.label(name + "_done")
        a("s_endpgm")
    def build(self, upto=5):
        name = KNAME + "_kernel"
        self.entry(name)
        self.prep()
        if upto >= 2: self.conv()
        if upto >= 3:
            self.g1_setup(); self.ln()
        if upto >= 4: self.gemm1()
        if upto >= 5: self.gemm2()
        self.finish(name)
        hdr = "; persistent single-launch kernel generated by gen/fused.py (hand-written generator)\n"
        hdr += "; @launch grid=(256,1,1) block=(256,1,1) lds=%d\n" % LDS_TOTAL
        hdr += '.amdgcn_target "amdgcn-amd-amdhsa--gfx950"\n'
        return hdr + self.a.text() + kernel_desc(name, 512, 102, 256)

if __name__ == "__main__":
    import sys
    out = sys.argv[1]
    opt = sys.argv[2] if len(sys.argv) > 2 else ""
    diag = "diag" in opt.split(",")
    upto = 5
    for t in opt.split(","):
        if t.startswith("upto"): upto = int(t[4:])
    open(out, "w").write(Gen(opt, diag).build(upto))
```

```python
from asmlib import *
from layout import *

P_Q, P_K, P_V, P_SK, P_SSMK, P_SSMD, P_WG, P_WU, P_WD, P_OUT, P_DBG, P_WS = 4, 6, 8, 10, 12, 14, 18, 20, 22, 24, 26, 28
S_WAVE, S_X, S_J = 30, 31, 3
RA, RB, RC, RD, RE, RS = 32, 36, 40, 44, 48, 52
S_MASK, S_EPS = 56, 57
SPIN_MAX = 1 << 17

KCOPY = 4160; XB0 = 4 * KCOPY; XSTR = 4576; WREG = 25856
CSTG = 4 * WREG
PSTG = CSTG + 17408
G1_STAGE = 28672; G1_NSLOT = 5
G2_SW = [75, 76, 77, 79, 80]
G2_STAGE = 16384; G2_NSLOT = 5; G2_BASE = G1_STAGE
LDS_TOTAL = G1_STAGE * G1_NSLOT

class Gen:
    def __init__(self, opt="", diag=False):
        self.a = Asm(); self.opt = set(opt.split(",")); self.diag = diag; self.stashed = {}
    def mark(self, i):
        if not self.diag: return
        a = self.a
        a("s_memtime s[98:99]"); a("s_waitcnt lgkmcnt(0)")
        a("v_accvgpr_read_b32 v1, a255"); a("s_nop 1")
        a("v_writelane_b32 v1, s98, %d" % (2 * i)); a("v_writelane_b32 v1, s99, %d" % (2 * i + 1))
        a("s_nop 1"); a("v_accvgpr_write_b32 a255, v1")
    def stash(self, name, v):
        idx = self.stashed.setdefault(name, 176 + len(self.stashed)); assert idx < 250
        self.a("v_accvgpr_write_b32 a%d, v%d" % (idx, v))
    def unstash(self, name, v):
        self.a("v_accvgpr_read_b32 v%d, a%d" % (v, self.stashed[name]))
    def ws_srd(self, dst, off, size):
        a = self.a
        a("s_add_u32 s%d, s%d, 0x%x" % (dst, P_WS, off)); a("s_addc_u32 s%d, s%d, 0" % (dst + 1, P_WS + 1))
        a("s_and_b32 s%d, s%d, 0xffff" % (dst + 1, dst + 1)); a("s_mov_b32 s%d, 0x%x" % (dst + 2, size)); a("s_mov_b32 s%d, 0x00020000" % (dst + 3))
    def in_srd(self, dst, ptr, size, soff=None):
        a = self.a
        if soff is None:
            srd(a, dst, ptr, size)
        else:
            a("s_add_u32 s%d, s%d, s%d" % (dst, ptr, soff)); a("s_addc_u32 s%d, s%d, 0" % (dst + 1, ptr + 1))
            a("s_and_b32 s%d, s%d, 0xffff" % (dst + 1, dst + 1)); a("s_mov_b32 s%d, 0x%x" % (dst + 2, size)); a("s_mov_b32 s%d, 0x00020000" % (dst + 3))
    def arrive(self, addr, nlanes=1, vm=0, check_init=None, init_target=1):
        a = self.a
        for s in addr: a(s)
        a("s_waitcnt vmcnt(%d)" % vm)
        a("s_barrier")
        sk = a.new_label("arr")
        a("s_cmp_lg_u32 s%d, 0" % S_WAVE); a("s_cbranch_scc1 %s" % sk)
        if check_init is not None:
            ok = a.new_label("ini"); lp = a.new_label("inip")
            a("s_mov_b32 s59, 0")
            a.label(lp)
            a("v_readfirstlane_b32 s58, v%d" % check_init)
            a("s_cmp_ge_u32 s58, %d" % init_target); a("s_cbranch_scc1 %s" % ok)
            a("s_add_u32 s59, s59, 1"); a("s_cmp_gt_u32 s59, %d" % SPIN_MAX); a("s_cbranch_scc1 %s" % ok)
            a("v_mov_b32 v6, 0")
            a("buffer_load_dword v%d, v6, s[%d:%d], 0 offen sc1" % (check_init, RE, RE + 3))
            a("s_waitcnt vmcnt(0)")
            a("s_branch %s" % lp)
            a.label(ok)
        a("v_mov_b32 v6, 1")
        a("s_mov_b64 exec, 0x%x" % ((1 << nlanes) - 1))
        a("buffer_atomic_add v6, v7, s[%d:%d], 0 offen" % (RS, RS + 3))
        a("s_mov_b64 exec, -1")
        a.label(sk)
    def wait(self, line_sgpr, nlines, target, shadow=None):
        a = self.a
        sk = a.new_label("wt"); lp = a.new_label("wtp"); s0 = a.new_label("wt0")
        mask = "0x%x" % ((1 << nlines) - 1)
        a("s_cmp_lg_u32 s%d, 0" % S_WAVE); a("s_cbranch_scc1 %s" % s0)
        a("v_min_u32 v6, %d, v2" % (nlines - 1)); a("v_lshlrev_b32 v6, 7, v6"); a("v_add_u32 v6, s%d, v6" % line_sgpr)
        a("s_mov_b64 exec, %s" % mask)
        a("buffer_load_dword v7, v6, s[%d:%d], 0 offen sc1" % (RS, RS + 3))
        a("s_mov_b64 exec, -1")
        a.label(s0)
        if shadow: shadow()
        a("s_cmp_lg_u32 s%d, 0" % S_WAVE); a("s_cbranch_scc1 %s" % sk)
        a("s_mov_b32 s59, 0")
        a("s_mov_b64 exec, %s" % mask)
        a.label(lp)
        a("s_waitcnt vmcnt(0)")
        a("v_cmp_gt_u32 vcc, %d, v7" % target)
        a("s_add_u32 s59, s59, 1")
        a("s_cmp_gt_u32 s59, %d" % SPIN_MAX); a("s_cbranch_scc1 %s" % (sk + "x"))
        a("s_cbranch_vccz %s" % (sk + "x"))
        a("buffer_load_dword v7, v6, s[%d:%d], 0 offen sc1" % (RS, RS + 3))
        a("s_branch %s" % lp)
        a.label(sk + "x")
        a("s_mov_b64 exec, -1")
        a.label(sk)
        a("s_barrier")

    def entry(self, name):
        a = self.a
        kernel_begin(a, name)
        a("s_cmp_ge_u32 s2, 256"); a("s_cbranch_scc1 %s_done" % name)
        if self.diag:
            a("s_memrealtime s[94:95]"); a("s_memtime s[96:97]"); a("v_accvgpr_write_b32 a255, 0")
        a("s_load_dwordx16 s[4:19], s[0:1], 0")
        a("s_load_dwordx8 s[20:27], s[0:1], 64")
        a("s_load_dwordx2 s[28:29], s[0:1], 96")
        a("v_lshrrev_b32 v1, 6, v0")
        a("v_and_b32 v2, 63, v0")
        a("v_readfirstlane_b32 s%d, v1" % S_WAVE)
        a("s_and_b32 s%d, s2, 7" % S_X); a("s_lshr_b32 s%d, s2, 3" % S_J)
        a("s_mov_b32 s%d, 0xffff0000" % S_MASK); a("s_mov_b32 s%d, 0x3727c5ac" % S_EPS)

    def prep(self):
        a = self.a
        a("v_and_b32 v8, 7, v0")
        a("v_lshrrev_b32 v9, 3, v0")
        a("s_lshr_b32 s60, s2, 4")
        a("s_and_b32 s61, s2, 15")
        a("s_lshl_b32 s62, s60, 18"); a("s_lshl_b32 s63, s61, 7"); a("s_add_u32 s62, s62, s63")
        a("v_lshlrev_b32 v3, 13, v9"); a("v_lshl_add_u32 v3, v8, 4, v3"); a("v_add_u32 v3, s62, v3")
        a("v_subrev_u32 v4, 6144, v3")
        a("s_lshl_b32 s63, s61, 9"); a("v_lshlrev_b32 v5, 6, v8"); a("v_add_u32 v5, s63, v5")
        a("s_mov_b32 s64, 4096")
        a("s_lshl_b32 s65, s%d, 5" % S_X); a("s_add_u32 s65, s65, s%d" % S_J)
        a("s_lshl_b32 s66, s65, 2"); a("s_add_u32 s66, s66, s%d" % S_WAVE)
        a("s_mul_i32 s67, s%d, %d" % (S_WAVE, WREG))
        a("s_lshl_b32 s68, s66, 12")
        a("v_lshlrev_b32 v10, 4, v2")
        a("v_lshlrev_b32 v11, 2, v2")
        a("v_add_u32 v12, 196, v10")
        a("s_lshl_b32 s69, s2, 3"); a("s_lshl_b32 s70, s%d, 1" % S_WAVE); a("s_add_u32 s69, s69, s70"); a("s_lshl_b32 s70, s69, 11")
        a("v_lshlrev_b32 v13, 3, v2")
        a("s_waitcnt lgkmcnt(0)")
        self.ws_srd(RS, WS_SYNC, NLINES * 128)
        NCLR = NLINES // 64
        ni = a.new_label("noinit")
        a("s_lshl_b32 s58, s%d, 8" % S_WAVE); a("s_or_b32 s58, s58, s2"); a("s_cmp_ge_u32 s58, %d" % NCLR); a("s_cbranch_scc1 %s" % ni)
        a("v_lshlrev_b32 v6, 7, v2"); a("v_mov_b32 v7, 0"); a("s_lshl_b32 s58, s2, 13")
        a("buffer_store_dword v7, v6, s[%d:%d], s58 offen sc1" % (RS, RS + 3))
        a.label(ni)
        self.in_srd(RA, P_K, 4194304); self.in_srd(RB, P_V, 4194304); self.in_srd(RC, P_SK, 8192)
        KR, VR, SK = 16, 44, 60
        nt = "" if "p1nont" in self.opt else "nt"
        def ld(dst, voff, s, soff, off, fl=""):
            a("buffer_load_dwordx4 v[%d:%d], v%d, s[%d:%d], %s offen%s %s" % (dst, dst + 3, voff, s, s + 3, soff, " offset:%d" % off if off else "", fl))
        for i in range(4): ld(SK + 4 * i, 5, RC, "0", 16 * i)
        ld(KR + 0, 4, RA, "0", 0, nt); ld(KR + 4, 4, RA, "0", 2048, nt); ld(KR + 8, 4, RA, "s64", 0, nt)
        ld(KR + 12, 3, RA, "0", 0, nt); ld(KR + 16, 3, RA, "0", 2048, nt); ld(KR + 20, 3, RA, "s64", 0, nt); ld(KR + 24, 3, RA, "s64", 2048, nt)
        ld(VR + 0, 3, RB, "0", 0, nt); ld(VR + 4, 3, RB, "0", 2048, nt); ld(VR + 8, 3, RB, "s64", 0, nt); ld(VR + 12, 3, RB, "s64", 2048, nt)
        self.in_srd(RE, P_DBG, 256)
        ni = a.new_label("noflag")
        a("s_lshl_b32 s58, s%d, 8" % S_WAVE); a("s_or_b32 s58, s58, s2"); a("s_cmp_ge_u32 s58, %d" % NCLR); a("s_cbranch_scc1 %s" % ni)
        a("s_waitcnt vmcnt(15)")
        a("v_mov_b32 v6, 0"); a("v_mov_b32 v7, 1")
        a("s_mov_b64 exec, 1")
        a("buffer_atomic_add v7, v6, s[%d:%d], 0 offen" % (RE, RE + 3))
        a("s_mov_b64 exec, -1")
        a.label(ni)
        self.in_srd(RD, P_SSMK, 4096, 68)
        sknt = "" if "sknont" in self.opt else "nt"
        for i in range(16):
            a("buffer_load_dword v%d, v11, s[%d:%d], 0 offen offset:%d %s" % (128 + i, RD, RD + 3, 256 * i, sknt))
        a("s_lshr_b32 s58, s66, 1"); a("s_lshl_b32 s58, s58, 2")
        a("s_load_dword s71, s[%d:%d], s58" % (P_SSMD, P_SSMD + 1))
        self.ws_srd(RC, WS_XRT, 4194304)
        a("v_sub_u32 v6, 31, v9"); a("v_lshlrev_b32 v7, 1, v8"); a("v_xor_b32 v6, v6, v7"); a("v_lshlrev_b32 v6, 3, v6")
        a("v_lshl_add_u32 v6, v8, 11, v6"); a("v_add_u32 v14, %d, v6" % PSTG)
        W, K, V, O = 80, 84, 92, 96
        def unpack(dst, src, hi):
            if hi: a("v_and_b32 v%d, s%d, v%d" % (dst, S_MASK, src))
            else: a("v_lshlrev_b32 v%d, 16, v%d" % (dst, src))
        self.shadow()
        a("s_waitcnt vmcnt(16)")
        self.mark(0)
        for c in range(8):
            d, hi = c >> 1, c & 1
            unpack(W + 0, SK + 2 * c, 0); unpack(W + 1, SK + 2 * c, 1); unpack(W + 2, SK + 2 * c + 1, 0); unpack(W + 3, SK + 2 * c + 1, 1)
            for i in range(7): unpack(K + i, KR + 4 * i + d, hi)
            for j in range(4): unpack(V + j, VR + 4 * j + d, hi)
            for j in range(4): a("v_mul_f32 v%d, v%d, v%d" % (O + j, K + j, W + 3))
            for tap in (1, 2, 3):
                for j in range(4): a("v_fmac_f32 v%d, v%d, v%d" % (O + j, K + j + tap, W + 3 - tap))
            for j in range(4): a("v_mul_f32 v%d, v%d, v%d" % (O + j, O + j, V + j))
            P = 100 + 2 * (c & 1)
            a("v_cvt_pk_bf16_f32 v%d, v%d, v%d" % (P, O + 3, O + 2))
            a("v_cvt_pk_bf16_f32 v%d, v%d, v%d" % (P + 1, O + 1, O + 0))
            a("ds_write_b64 v14, v[%d:%d] offset:%d" % (P, P + 1, c * 256))
        a("v_lshrrev_b32 v16, 4, v0"); a("v_and_b32 v17, 15, v0"); a("v_lshrrev_b32 v18, 7, v0")
        a("s_lshl_b32 s62, s61, 18"); a("s_lshl_b32 s63, s60, 8"); a("s_sub_u32 s62, s62, s63"); a("s_add_u32 s62, s62, 3840")
        a("v_lshlrev_b32 v19, 12, v16"); a("v_lshl_add_u32 v19, v17, 4, v19"); a("v_add_u32 v19, s62, v19")
        a("s_waitcnt lgkmcnt(0)")
        a("s_barrier")
        for i in range(4):
            a("v_add_u32 v20, %d, v18" % (2 * i)); a("v_xor_b32 v20, v20, v17"); a("v_lshlrev_b32 v20, 4, v20")
            a("v_lshl_add_u32 v20, v16, 8, v20"); a("v_add_u32 v20, %d, v20" % PSTG)
            a("ds_read_b128 v[%d:%d], v20 offset:%d" % (24 + 4 * i, 27 + 4 * i, i * 4096))
        a("v_mov_b32 v6, 0")
        a("buffer_load_dword v15, v6, s[%d:%d], 0 offen sc1" % (RE, RE + 3))
        for i in range(4):
            a("s_mov_b32 s63, %d" % (i * 16 * 4096))
            a("s_waitcnt lgkmcnt(%d)" % (3 - i))
            a("buffer_store_dwordx4 v[%d:%d], v19, s[%d:%d], s63 offen sc1" % (24 + 4 * i, 27 + 4 * i, RC, RC + 3))
        nyoung = 0
        if "qw1" in self.opt:
            self.q_loads(); nyoung += 8
        self.mark(1)
        self.arrive(["s_lshl_b32 s58, s61, 7", "s_add_u32 s60, s58, %d" % (C1 * 128), "v_mov_b32 v7, s60"], vm=nyoung, check_init=15, init_target=NCLR)
        self.mark(2)

    def q_loads(self):
        a = self.a
        self.in_srd(RD, P_Q, 4194304)
        qf = "" if "qnont" in self.opt else "nt"
        a("v_lshlrev_b32 v13, 3, v2")
        for tok in range(2):
            for i in range(4):
                r = 160 + 8 * tok + 2 * i
                a("buffer_load_dwordx2 a[%d:%d], v13, s[%d:%d], s70 offen offset:%d %s" % (r, r + 1, RD, RD + 3, 512 * i + 2048 * tok, qf))

    def conv(self):
        a = self.a
        a("s_add_u32 s58, s68, 0x%x" % WS_XRT)
        a("s_add_u32 s%d, s%d, s58" % (RA, P_WS)); a("s_addc_u32 s%d, s%d, 0" % (RA + 1, P_WS + 1))
        a("s_and_b32 s%d, s%d, 0xffff" % (RA + 1, RA + 1)); a("s_mov_b32 s%d, 4096" % (RA + 2)); a("s_mov_b32 s%d, 0x00020000" % (RA + 3))
        self.ws_srd(RB, WS_YB, 4194304)
        a("v_and_b32 v8, 15, v2"); a("v_lshrrev_b32 v9, 4, v2")
        a("v_and_b32 v3, 3, v8"); a("v_lshrrev_b32 v4, 2, v8")
        a("v_mul_u32_u24 v12, %d, v3" % KCOPY)
        a("v_add_u32 v13, v4, v9"); a("v_lshl_add_u32 v12, v13, 4, v12"); a("v_add_u32 v12, s67, v12")
        a("v_and_b32 v13, 1, v8"); a("v_lshrrev_b32 v14, 1, v8")
        a("v_mul_u32_u24 v15, %d, v13" % XSTR); a("v_lshl_add_u32 v15, v9, 4, v15")
        a("v_lshlrev_b32 v14, 6, v14"); a("v_sub_u32 v15, v15, v14")
        a("s_add_u32 s58, s67, %d" % (XB0 + 64 * 63 - 3584)); a("v_add_u32 v14, s58, v15")
        AD = 60
        a("v_lshlrev_b32 v15, 3, v4"); a("v_lshl_add_u32 v15, v3, 1, v15"); a("v_lshl_add_u32 v15, v9, 3, v15")
        a("s_and_b32 s58, s66, 1"); a("s_lshl_b32 s58, s58, 4"); a("s_lshr_b32 s71, s71, s58"); a("s_and_b32 s71, s71, 0xffff")
        a("v_mov_b32 v1, s71")
        for dd in range(4):
            a("v_cmp_eq_u32 vcc, %d, v15" % (30 - 2 * dd)); a("s_nop 1"); a("v_cndmask_b32 v%d, 0, v1, vcc" % (AD + dd))
        a("v_lshrrev_b32 v4, 4, v2"); a("v_mul_u32_u24 v4, %d, v4" % KCOPY); a("v_and_b32 v5, 15, v2"); a("v_lshl_add_u32 v4, v5, 2, v4")
        a("v_add_u32 v4, s67, v4"); a("v_mov_b32 v5, 0")
        a("ds_write_b32 v4, v5")
        a("s_add_u32 s58, s67, 60"); a("v_add_u32 v4, s58, v11")
        for phi in range(4):
            if phi: a("v_add_u32 v4, %d, v4" % (KCOPY - 4))
            for i in range(8):
                a("ds_write2st64_b32 v4, v%d, v%d offset0:%d offset1:%d" % (128 + 2 * i, 129 + 2 * i, 2 * i, 2 * i + 1))
        a("s_add_u32 s58, s67, %d" % XB0); a("v_add_u32 v4, s58, v10")
        for r in range(56, 60): a("v_mov_b32 v%d, 0" % r)
        a("s_mov_b64 exec, 0xfffffff")
        a("ds_write_b128 v4, v[56:59] offset:4096"); a("ds_write_b128 v4, v[56:59] offset:%d" % (XSTR + 4096))
        a("s_mov_b64 exec, -1")
        a("v_add_u32 v5, 16, v10")
        a("s_lshr_b32 s58, s65, 4"); a("s_lshl_b32 s58, s58, 7"); a("s_add_u32 s60, s58, %d" % (C1 * 128))
        self.wait(60, 1, 16)
        self.mark(3)
        XD = 16
        for i in range(4):
            a("buffer_load_dwordx4 v[%d:%d], v10, s[%d:%d], 0 offen offset:%d" % (XD + 8 * i, XD + 8 * i + 3, RA, RA + 3, 1024 * i))
        for i in range(4):
            a("buffer_load_dword v%d, v5, s[%d:%d], 0 offen offset:%d" % (XD + 8 * i + 4, RA, RA + 3, 1024 * i))
        for i in range(4):
            d = XD + 8 * i
            a("s_waitcnt vmcnt(%d)" % (7 - i))
            a("ds_write_b128 v4, v[%d:%d] offset:%d" % (d, d + 3, XSTR + 1024 * i))
        for i in range(4):
            d = XD + 8 * i
            a("s_waitcnt vmcnt(%d)" % (3 - i))
            for j in range(4):
                a("v_alignbit_b32 v%d, v%d, v%d, 16" % (48 + j + 4 * (i & 1), d + j + 1, d + j))
            a("ds_write_b128 v4, v[%d:%d] offset:%d" % (48 + 4 * (i & 1), 51 + 4 * (i & 1), 1024 * i))
        a("s_cmp_lt_u32 s%d, 2" % S_WAVE)
        a("s_cselect_b32 s%d, s%d, s%d" % (RC, P_WG, P_WU)); a("s_cselect_b32 s%d, s%d, s%d" % (RC + 1, P_WG + 1, P_WU + 1))
        a("s_and_b32 s%d, s%d, 0xffff" % (RC + 1, RC + 1)); a("s_mov_b32 s%d, %d" % (RC + 2, 1024 * 7168)); a("s_mov_b32 s%d, 0x00020000" % (RC + 3))
        a("s_waitcnt lgkmcnt(0)")
        self.mark(4)
        ACC = 192
        def A(s, i): return 64 + 64 * s + 4 * i
        def B(s, i): return 96 + 64 * s + 4 * i
        def reads(s, rho_off):
            out = []
            for i in range(8):
                out.append("ds_read_b128 v[%d:%d], v14 offset:%d" % (B(s, i), B(s, i) + 3, 3584 - 512 * i + rho_off))
                out.append("ds_read_b128 v[%d:%d], v12 offset:%d" % (A(s, i), A(s, i) + 3, 512 * i + rho_off))
            return out
        def mfmas(s):
            out = []
            for m in range(8):
                for (x, y) in [(i, m) for i in range(m + 1)] + [(m, i) for i in range(m)]:
                    if x + y <= 7:
                        t = ACC + 4 * (x + y)
                        out.append("v_mfma_f32_16x16x32_bf16 v[%d:%d], v[%d:%d], v[%d:%d], v[%d:%d]" % (
                            t, t + 3, A(s, x), A(s, x) + 3, B(s, y), B(s, y) + 3, t, t + 3))
            return out
        for r in reads(0, 0): a(r)
        a("s_waitcnt lgkmcnt(0)")
        for tau in range(8):
            t = ACC + 4 * tau
            a("v_mfma_f32_16x16x32_bf16 v[%d:%d], v[%d:%d], v[%d:%d], 0" % (t, t + 3, AD, AD + 3, B(0, tau), B(0, tau) + 3))
        a("s_mov_b32 s58, 4")
        loop = a.new_label("conv"); a.label(loop)
        if "qw1" not in self.opt:
            nq = a.new_label("noq")
            a("s_cmp_lg_u32 s58, 3"); a("s_cbranch_scc1 %s" % nq)
            self.q_loads()
            a.label(nq)
        for half in range(2):
            if "nopf1" not in self.opt:
                a("buffer_load_dword v15, v224, s[%d:%d], 0 offen" % (RC, RC + 3))
                a("v_add_u32 v224, %d, v224" % (64 * 7168))
            rd = reads(1 - half, 64 * (half + 1)); mf = mfmas(half)
            k = 0
            for i, m in enumerate(mf):
                a(m)
                if i % 2 == 0 and k < len(rd): a(rd[k]); k += 1
            a("s_waitcnt lgkmcnt(0)")
        a("v_add_u32 v12, 128, v12"); a("v_add_u32 v14, 128, v14")
        a("s_sub_u32 s58, s58, 1"); a("s_cmp_lg_u32 s58, 0"); a("s_cbranch_scc1 %s" % loop)
        self.mark(5)
        a("s_nop 7")
        for tau in range(8):
            t = ACC + 4 * tau; P = 16 + 8 * (tau & 1)
            a("v_cvt_pk_bf16_f32 v%d, v%d, v%d" % (P, t, t + 2)); a("v_cvt_pk_bf16_f32 v%d, v%d, v%d" % (P + 1, t + 1, t + 3))
            a("s_nop 1")
            a("v_mov_b32_dpp v%d, v%d quad_perm:[1,0,3,2] row_mask:0xf bank_mask:0xf" % (P + 2, P))
            a("v_mov_b32_dpp v%d, v%d quad_perm:[1,0,3,2] row_mask:0xf bank_mask:0xf" % (P + 3, P + 1))
            a("v_perm_b32 v%d, v%d, v%d, v226" % (P + 4, P + 2, P)); a("v_perm_b32 v%d, v%d, v%d, v226" % (P + 5, P + 3, P + 1))
            off = tau * (32 * 64 + 8 * 16)
            a("ds_write_b32 v227, v%d offset:%d" % (P + 4, off)); a("ds_write_b32 v227, v%d offset:%d" % (P + 5, off + 16))
        a("s_waitcnt lgkmcnt(0)")
        a("s_barrier")
        for i in range(4):
            a("ds_read_b128 v[%d:%d], v228 offset:%d" % (16 + 4 * i, 19 + 4 * i, i * (64 * 64 + 16 * 16)))
        for i in range(4):
            a("s_mov_b32 s58, %d" % (i * 64 * 16384))
            a("s_waitcnt lgkmcnt(%d)" % (3 - i))
            a("buffer_store_dwordx4 v[%d:%d], v229, s[%d:%d], s58 offen sc1" % (16 + 4 * i, 19 + 4 * i, RB, RB + 3))
        self.arrive(["s_and_b32 s58, s2, 15", "s_lshl_b32 s58, s58, 7", "s_add_u32 s60, s58, %d" % (C2 * 128),
                     "v_lshlrev_b32 v7, 11, v2", "v_add_u32 v7, s60, v7"], nlanes=16)
        self.mark(6)

    def shadow(self):
        a = self.a
        T = 104
        a("s_and_b32 s83, s%d, 7" % S_J); a("s_lshr_b32 s59, s%d, 3" % S_J)
        a("s_lshl_b32 s72, s%d, 2" % S_X); a("s_add_u32 s72, s72, s59")
        a("s_lshl_b32 s73, s83, 4"); a("s_lshl_b32 s59, s%d, 2" % S_WAVE); a("s_add_u32 s73, s73, s59")
        a("s_mul_i32 s74, s%d, 7168" % S_WAVE)
        a("s_mov_b32 s75, 0"); a("s_mov_b32 s76, 0"); a("s_mov_b32 s77, 0"); a("s_mov_b32 s78, 0")
        a("s_lshr_b32 s58, s%d, 3" % S_J); a("s_add_u32 s58, s58, s%d" % S_J); a("s_and_b32 s58, s58, 3")
        a("s_mov_b32 s82, %s" % ("0" if "norot1" in self.opt else "s58")); a("s_mov_b32 s64, 0")
        a("s_lshr_b32 s58, s%d, 3" % S_J); a("s_and_b32 s59, s%d, 7" % S_J); a("s_add_u32 s93, s58, s59")
        for i in range(2):
            a("s_sub_u32 s58, s93, 5"); a("s_cmp_ge_u32 s93, 5"); a("s_cselect_b32 s93, s58, s93")
        if "norot2" in self.opt: a("s_mov_b32 s93, 0")
        a("s_sub_u32 s58, s93, 3"); a("s_cmp_ge_u32 s93, 3"); a("s_cselect_b32 s59, s58, s93")
        for t in range(3):
            a("s_lshl_b32 s%d, s59, 17" % (89 + t))
            if t < 2: a("s_add_u32 s59, s59, 1"); a("s_cmp_eq_u32 s59, 3"); a("s_cselect_b32 s59, 0, s59")
        a("s_and_b32 s58, s%d, 1" % S_WAVE); a("s_lshl_b32 s58, s58, 5")
        a("s_mul_i32 s59, s72, 224")
        a("s_mov_b32 s62, 4682"); a("s_mov_b32 s63, 7168")
        for i in range(7):
            a("v_add_u32 v%d, %d, v2" % (T, 64 * i))
            a("v_mul_u32_u24 v%d, s62, v%d" % (T + 1, T)); a("v_lshrrev_b32 v%d, 16, v%d" % (T + 1, T + 1))
            a("v_mul_u32_u24 v%d, 14, v%d" % (T + 2, T + 1)); a("v_sub_u32 v%d, v%d, v%d" % (T + 2, T, T + 2))
            a("v_bfe_u32 v%d, v%d, 2, 2" % (T + 3, T + 1)); a("v_lshlrev_b32 v%d, 3, v%d" % (T + 3, T + 3))
            a("v_lshrrev_b32 v%d, 4, v%d" % (T + 4, T + 1)); a("v_lshl_add_u32 v%d, v%d, 2, v%d" % (T + 3, T + 4, T + 3))
            a("v_and_b32 v%d, 3, v%d" % (T + 4, T + 1)); a("v_add3_u32 v%d, v%d, v%d, s58" % (T + 3, T + 3, T + 4))
            a("v_mul_u32_u24 v%d, s63, v%d" % (T + 3, T + 3))
            a("v_lshl_add_u32 v%d, v%d, 4, v%d" % (T + 3, T + 2, T + 3))
            a("v_add_u32 v%d, s59, v%d" % (T + 3, T + 3))
            self.stash("g1w%d" % i, T + 3)
        a("v_lshlrev_b32 v%d, 4, v2" % T)
        a("s_lshl_b32 s58, s73, 15"); a("v_add_u32 v%d, s58, v%d" % (T + 1, T)); self.stash("g1t", T + 1)
        a("v_lshrrev_b32 v%d, 2, v2" % (T + 1)); a("v_mul_u32_u24 v%d, 224, v%d" % (T + 1, T + 1))
        a("v_and_b32 v%d, 3, v2" % (T + 2)); a("v_lshl_add_u32 v%d, v%d, 3, v%d" % (T + 1, T + 2, T + 1)); self.stash("g1f", T + 1)
        a("v_and_b32 v%d, 15, v2" % (T + 1)); a("v_lshlrev_b32 v%d, 4, v%d" % (T + 1, T + 1)); a("v_lshrrev_b32 v%d, 5, v2" % (T + 2))
        a("v_lshl_add_u32 v%d, v%d, 8, v%d" % (T + 1, T + 2, T + 1)); a("v_bfe_u32 v%d, v2, 4, 1" % (T + 2))
        a("v_lshl_add_u32 v%d, v%d, 9, v%d" % (T + 3, T + 2, T + 1)); self.stash("g1ep", T + 3)
        a("v_mul_u32_u24 v%d, %d, v%d" % (T + 2, 112 * 1024, T + 2)); a("v_add_u32 v%d, v%d, v%d" % (T + 3, T + 2, T + 1)); self.stash("g1es", T + 3)
        a("s_and_b32 s86, s%d, 1" % S_X)
        a("s_bfe_u32 s58, s%d, 0x10001" % S_X); a("s_lshl_b32 s58, s58, 3"); a("s_and_b32 s59, s%d, 7" % S_J); a("s_add_u32 s84, s58, s59")
        a("s_lshr_b32 s58, s%d, 2" % S_X); a("s_lshl_b32 s58, s58, 2"); a("s_lshr_b32 s59, s%d, 3" % S_J); a("s_add_u32 s85, s58, s59")
        a("s_lshl_b32 s87, s84, 3"); a("s_lshl_b32 s58, s%d, 1" % S_WAVE); a("s_add_u32 s87, s87, s58")
        a("s_mul_i32 s58, s86, 1792"); a("s_lshr_b32 s59, s%d, 1" % S_WAVE); a("s_lshl_b32 s59, s59, 5"); a("s_add_u32 s58, s58, s59")
        a("s_lshl_b32 s58, s58, 11")
        a("s_lshl_b32 s59, s85, 8"); a("s_add_u32 s58, s58, s59")
        a("s_and_b32 s59, s%d, 1" % S_WAVE); a("s_lshl_b32 s59, s59, 7"); a("s_add_u32 s58, s58, s59")
        a("v_lshrrev_b32 v%d, 5, v2" % T); a("v_lshlrev_b32 v%d, 3, v%d" % (T, T)); a("v_bfe_u32 v%d, v2, 3, 2" % (T + 1))
        a("v_add_u32 v%d, v%d, v%d" % (T, T, T + 1)); a("v_lshlrev_b32 v%d, 11, v%d" % (T, T))
        a("v_bfe_u32 v%d, v2, 4, 2" % (T + 1)); a("v_lshlrev_b32 v%d, 1, v%d" % (T + 1, T + 1)); a("v_and_b32 v%d, 7, v2" % (T + 2))
        a("v_xor_b32 v%d, v%d, v%d" % (T + 1, T + 1, T + 2))
        a("v_lshl_add_u32 v%d, v%d, 4, v%d" % (T, T + 1, T)); a("v_add_u32 v%d, s58, v%d" % (T, T)); self.stash("g2w", T)
        a("v_lshrrev_b32 v%d, 2, v2" % T); a("v_lshlrev_b32 v%d, 7, v%d" % (T, T))
        a("v_and_b32 v%d, 3, v2" % (T + 1)); a("v_lshl_add_u32 v%d, v%d, 3, v%d" % (T, T + 1, T))
        a("v_bfe_u32 v%d, v2, 3, 2" % (T + 1))
        for c in range(4):
            a("v_xor_b32 v%d, %d, v%d" % (T + 2, c, T + 1)); a("v_lshl_add_u32 v%d, v%d, 5, v%d" % (T + 2, T + 2, T)); self.stash("g2f%d" % c, T + 2)
        a("s_lshl_b32 s88, s%d, 12" % S_WAVE)
        a("v_lshlrev_b32 v%d, 4, v2" % T)
        a("s_add_u32 s58, s87, s86"); a("s_mul_i32 s58, s58, %d" % (112 * 1024)); a("s_mul_i32 s59, s86, %d" % (56 * 1024)); a("s_add_u32 s58, s58, s59")
        a("v_add_u32 v%d, s58, v%d" % (T + 1, T)); self.stash("g2t0", T + 1)
        a("s_xor_b32 s58, s86, 1"); a("s_add_u32 s58, s58, s87"); a("s_mul_i32 s58, s58, %d" % (112 * 1024)); a("s_add_u32 s58, s58, s59")
        a("v_add_u32 v%d, s58, v%d" % (T + 1, T)); self.stash("g2t1", T + 1)
        a("v_and_b32 v%d, 15, v2" % T); a("v_lshlrev_b32 v%d, 11, v%d" % (T, T))
        a("v_lshrrev_b32 v%d, 4, v2" % (T + 1)); a("v_lshl_add_u32 v%d, v%d, 3, v%d" % (T, T + 1, T))
        a("s_add_u32 s58, s87, s86"); a("s_lshl_b32 s58, s58, 15"); a("s_lshl_b32 s59, s85, 8"); a("s_add_u32 s58, s58, s59")
        a("v_add_u32 v%d, s58, v%d" % (T, T)); self.stash("g2o", T)
        a("v_mov_b32 v%d, 0x7fffffff" % (T + 3))
        a("s_lshl_b32 s58, s%d, 1" % S_J); a("s_and_b32 s59, s%d, 1" % S_WAVE); a("s_add_u32 s58, s58, s59")
        a("s_mul_i32 s62, s58, 7168"); a("s_mul_i32 s59, s%d, 896" % S_X); a("s_add_u32 s62, s62, s59")
        a("v_lshlrev_b32 v%d, 7, v2" % T); a("v_add_u32 v%d, s62, v%d" % (T + 1, T))
        a("v_cmp_gt_u32 vcc, 7, v2"); a("s_nop 1"); a("v_cndmask_b32 v224, v%d, v%d, vcc" % (T + 3, T + 1))
        a("s_lshl_b32 s58, s58, 2"); a("s_add_u32 s58, s58, 512"); a("s_mul_i32 s58, s58, 7168"); a("s_add_u32 s58, s58, s59")
        a("s_mov_b32 s62, 9363")
        a("v_mul_u32_u24 v%d, s62, v2" % T); a("v_lshrrev_b32 v%d, 16, v%d" % (T, T))
        a("v_mul_u32_u24 v%d, 7, v%d" % (T + 1, T)); a("v_sub_u32 v%d, v2, v%d" % (T + 1, T + 1))
        a("v_mul_u32_u24 v%d, 7168, v%d" % (T, T)); a("v_lshl_add_u32 v%d, v%d, 7, v%d" % (T, T + 1, T)); a("v_add_u32 v%d, s58, v%d" % (T, T))
        a("v_cmp_gt_u32 vcc, 28, v2"); a("s_nop 1"); a("v_cndmask_b32 v%d, v%d, v%d, vcc" % (T, T + 3, T)); self.stash("pfw", T)
        a("s_lshl_b32 s58, s%d, 2" % S_J); a("s_add_u32 s58, s58, s%d" % S_WAVE); a("s_mul_i32 s58, s58, 5"); a("s_add_u32 s58, s58, 1152")
        a("s_mul_i32 s59, s86, 1792"); a("s_add_u32 s58, s58, s59"); a("s_lshl_b32 s58, s58, 11")
        a("s_lshr_b32 s59, s85, 2"); a("s_lshl_b32 s59, s59, 10"); a("s_add_u32 s58, s58, s59")
        a("v_lshrrev_b32 v%d, 3, v2" % T); a("v_lshlrev_b32 v%d, 11, v%d" % (T, T)); a("v_and_b32 v%d, 7, v2" % (T + 1))
        a("v_lshl_add_u32 v%d, v%d, 7, v%d" % (T, T + 1, T)); a("v_add_u32 v%d, s58, v%d" % (T, T))
        a("v_cmp_gt_u32 vcc, 40, v2"); a("s_nop 1"); a("v_cndmask_b32 v%d, v%d, v%d, vcc" % (T, T + 3, T)); self.stash("pfd", T)
        a("s_and_b32 s92, s%d, 3" % S_J)
        a("v_and_b32 v%d, 1, v2" % T); a("v_lshrrev_b32 v%d, 1, v2" % (T + 1))
        a("v_lshlrev_b32 v%d, 11, v%d" % (T + 2, T)); a("v_lshl_add_u32 v%d, v%d, 4, v%d" % (T + 2, T + 1, T + 2)); self.stash("lnh", T + 2)
        a("s_lshl_b32 s58, s%d, 4" % S_WAVE); a("s_add_u32 s58, s58, %d" % PSTG)
        a("v_lshlrev_b32 v%d, 6, v2" % (T + 2)); a("v_add_u32 v%d, s58, v%d" % (T + 2, T + 2)); self.stash("lny", T + 2)
        a("s_lshl_b32 s58, s%d, 5" % S_WAVE); a("s_add_u32 s58, s58, %d" % CSTG)
        a("v_lshlrev_b32 v%d, 7, v%d" % (T + 2, T + 1)); a("v_lshl_add_u32 v%d, v%d, 4, v%d" % (T + 2, T, T + 2)); a("v_add_u32 v%d, s58, v%d" % (T + 2, T + 2))
        self.stash("lnw", T + 2)
        a("v_lshlrev_b32 v%d, 4, v0" % (T + 2)); a("v_add_u32 v%d, %d, v%d" % (T + 2, CSTG, T + 2)); self.stash("lnr", T + 2)
        a("v_lshrrev_b32 v%d, 5, v0" % (T + 2)); a("v_lshlrev_b32 v%d, 10, v%d" % (T + 2, T + 2))
        a("v_bfe_u32 v%d, v0, 3, 2" % (T + 3)); a("v_lshl_add_u32 v%d, v%d, 8, v%d" % (T + 2, T + 3, T + 2))
        a("v_and_b32 v%d, 7, v0" % (T + 3)); a("v_lshl_add_u32 v%d, v%d, 4, v%d" % (T + 2, T + 3, T + 2)); self.stash("lng", T + 2)
        a("v_and_b32 v%d, 1, v2" % T)
        a("v_mov_b32 v226, 0x05040100"); a("v_mov_b32 v%d, 0x03020706" % (T + 1))
        a("v_cmp_eq_u32 vcc, 1, v%d" % T); a("s_nop 1"); a("v_cndmask_b32 v226, v226, v%d, vcc" % (T + 1))
        a("v_bfe_u32 v%d, v2, 1, 3" % (T + 1)); a("v_lshrrev_b32 v%d, 4, v2" % (T + 2))
        a("v_mul_u32_u24 v227, 272, v%d" % (T + 1)); a("v_lshl_add_u32 v227, v%d, 6, v227" % (T + 2)); a("v_lshl_add_u32 v227, v%d, 5, v227" % T)
        a("s_lshl_b32 s58, s%d, 2" % S_WAVE); a("s_add_u32 s58, s58, %d" % CSTG); a("v_add_u32 v227, s58, v227")
        a("v_lshrrev_b32 v%d, 2, v0" % T); a("v_and_b32 v%d, 3, v0" % (T + 1)); a("v_lshrrev_b32 v%d, 4, v0" % (T + 2))
        a("v_lshlrev_b32 v228, 6, v%d" % T); a("v_lshl_add_u32 v228, v%d, 4, v228" % (T + 2)); a("v_lshl_add_u32 v228, v%d, 4, v228" % (T + 1))
        a("v_add_u32 v228, %d, v228" % CSTG)
        a("v_lshlrev_b32 v229, 14, v%d" % T); a("v_lshl_add_u32 v229, v%d, 4, v229" % (T + 1)); a("s_lshl_b32 s58, s65, 6"); a("v_add_u32 v229, s58, v229")

    def g1_setup(self):
        a = self.a
        a("s_cmp_lt_u32 s%d, 2" % S_WAVE)
        a("s_cselect_b32 s%d, s%d, s%d" % (RA, P_WG, P_WU)); a("s_cselect_b32 s%d, s%d, s%d" % (RA + 1, P_WG + 1, P_WU + 1))
        a("s_and_b32 s%d, s%d, 0xffff" % (RA + 1, RA + 1)); a("s_mov_b32 s%d, %d" % (RA + 2, 1024 * 7168)); a("s_mov_b32 s%d, 0x00020000" % (RA + 3))
        for i in range(7): self.unstash("g1w%d" % i, 8 + i)
        for st in range(3): self.g1_wload_all()
        self.in_srd(RE, P_WD, 3584 * 2048)
    def g1_dma(self, i):
        fl = "nt" if "g1nt" in self.opt else "sc1" if "g1sc1" in self.opt else "sc0" if "g1sc0" in self.opt else "sc0 sc1" if "g1sc01" in self.opt else ""
        return ["s_add_u32 m0, s79, %d" % (1024 * i), "buffer_load_dwordx4 v%d, s[%d:%d], s77 offen %s lds" % (8 + i, RA, RA + 3, fl)]
    def g1_wadv(self):
        return ["s_add_u32 s82, s82, 1", "s_and_b32 s82, s82, 3", "s_add_u32 s75, s75, %d" % G1_STAGE,
                "s_cmp_eq_u32 s75, %d" % (G1_STAGE * G1_NSLOT), "s_cselect_b32 s75, 0, s75"]
    def g1_wload_all(self):
        a = self.a
        a("s_add_u32 s79, s75, s74"); a("s_mul_i32 s77, s82, %d" % (64 * 7168))
        for i in range(7):
            d = self.g1_dma(i); a(d[0]); a("s_nop 0"); a(d[1])
        for s in self.g1_wadv(): a(s)

    def reduce4(self, regs, sdst):
        a = self.a
        def step(mod):
            for r in regs: a("v_add_f32_dpp v%d, v%d, v%d %s" % (r, r, r, mod))
        a("s_nop 1")
        step("quad_perm:[1,0,3,2] row_mask:0xf bank_mask:0xf"); step("quad_perm:[2,3,0,1] row_mask:0xf bank_mask:0xf")
        step("row_half_mirror row_mask:0xf bank_mask:0xf"); step("row_mirror row_mask:0xf bank_mask:0xf")
        step("row_bcast:15 row_mask:0xa bank_mask:0xf"); step("row_bcast:31 row_mask:0xc bank_mask:0xf")
        a("s_nop 0")
        for r, s in zip(regs, sdst): a("v_readlane_b32 s%d, v%d, 63" % (s, r))
    def ln_scalars(self, sS, T):
        a = self.a
        t0, t1, t2, t3, t4, t5 = T + 8, T + 9, T + 10, T + 11, T + 12, T + 13
        M = S_MASK
        a("s_nop 1")
        a("v_mul_f32 v%d, s%d, v%d" % (t0, sS[0], T + 14)); a("v_mul_f32 v%d, s%d, v%d" % (t1, sS[2], T + 14))
        a("v_mul_f32 v%d, s%d, v%d" % (t2, sS[1], T + 14)); a("v_mul_f32 v%d, s%d, v%d" % (t3, sS[3], T + 14))
        a("v_fma_f32 v%d, -v%d, v%d, v%d" % (t2, t0, t0, t2)); a("v_fma_f32 v%d, -v%d, v%d, v%d" % (t3, t1, t1, t3))
        a("v_max_f32 v%d, 0, v%d" % (t2, t2)); a("v_max_f32 v%d, 0, v%d" % (t3, t3))
        a("v_cvt_pk_bf16_f32 v%d, v%d, v%d" % (t4, t0, t1)); a("v_cvt_pk_bf16_f32 v%d, v%d, v%d" % (t5, t2, t3))
        a("v_lshlrev_b32 v%d, 16, v%d" % (t0, t4)); a("v_and_b32 v%d, s%d, v%d" % (t1, M, t4))
        a("v_lshlrev_b32 v%d, 16, v%d" % (t2, t5)); a("v_and_b32 v%d, s%d, v%d" % (t3, M, t5))
        a("v_add_f32 v%d, s%d, v%d" % (t2, S_EPS, t2)); a("v_add_f32 v%d, s%d, v%d" % (t3, S_EPS, t3))
        a("v_cvt_pk_bf16_f32 v%d, v%d, v%d" % (t5, t2, t3))
        a("v_lshlrev_b32 v%d, 16, v%d" % (t2, t5)); a("v_and_b32 v%d, s%d, v%d" % (t3, M, t5))
        a("v_sqrt_f32 v%d, v%d" % (t2, t2)); a("v_sqrt_f32 v%d, v%d" % (t3, t3)); a("s_nop 0")
        a("v_cvt_pk_bf16_f32 v%d, v%d, v%d" % (t5, t2, t3))
        a("v_lshlrev_b32 v%d, 16, v%d" % (t2, t5)); a("v_and_b32 v%d, s%d, v%d" % (t3, M, t5))
        a("v_rcp_f32 v%d, v%d" % (T + 0, t2)); a("v_rcp_f32 v%d, v%d" % (T + 4, t3)); a("s_nop 0")
        a("v_mul_f32 v%d, v%d, v%d" % (T + 2, t0, T + 0)); a("v_mul_f32 v%d, v%d, v%d" % (T + 6, t1, T + 4))
        a("v_sub_f32 v%d, 0, v%d" % (T + 2, T + 2)); a("v_sub_f32 v%d, 0, v%d" % (T + 6, T + 6))
    def stats(self, X, acc):
        a = self.a
        for tok in range(2):
            b = X + 16 * tok; S = acc + 4 * tok; Q = S + 2
            a("v_pk_add_f32 v[%d:%d], v[%d:%d], v[%d:%d]" % (S, S + 1, b, b + 1, b + 2, b + 3))
            a("v_pk_mul_f32 v[%d:%d], v[%d:%d], v[%d:%d]" % (Q, Q + 1, b, b + 1, b, b + 1))
        for p in range(1, 8):
            for tok in range(2):
                b = X + 16 * tok + 2 * p; S = acc + 4 * tok; Q = S + 2
                if p >= 2: a("v_pk_add_f32 v[%d:%d], v[%d:%d], v[%d:%d]" % (S, S + 1, S, S + 1, b, b + 1))
                a("v_pk_fma_f32 v[%d:%d], v[%d:%d], v[%d:%d], v[%d:%d]" % (Q, Q + 1, b, b + 1, b, b + 1, Q, Q + 1))
        for r in (0, 2, 4, 6): a("v_add_f32 v%d, v%d, v%d" % (acc + r, acc + r, acc + r + 1))
    def ln(self):
        a = self.a
        M = S_MASK
        X, L1, Y, YR, HP, ACC, T = 32, 64, 96, 128, 144, 160, 168
        LP, U = 128, 96
        a("v_mov_b32 v%d, 0x3a800000" % (T + 14))
        for tok in range(2):
            for p in range(8):
                dst = X + 16 * tok + 2 * p
                a("v_accvgpr_read_b32 v3, a%d" % (160 + 8 * tok + p))
                a("v_lshlrev_b32 v%d, 16, v3" % dst); a("v_and_b32 v%d, s%d, v3" % (dst + 1, M))
        self.stats(X, ACC)
        self.reduce4([ACC, ACC + 2, ACC + 4, ACC + 6], [60, 61, 62, 63])
        self.ln_scalars([60, 61, 62, 63], T)
        for tok in range(2):
            r, c = T + 4 * tok, T + 4 * tok + 2
            for p in range(8):
                x = X + 16 * tok + 2 * p; l = L1 + 16 * tok + 2 * p
                a("v_pk_fma_f32 v[%d:%d], v[%d:%d], v[%d:%d], v[%d:%d] op_sel_hi:[1,0,0]" % (l, l + 1, x, x + 1, r, r + 1, c, c + 1))
        self.ws_srd(RB, WS_YB, 4194304); self.ws_srd(RC, WS_H, 4194304); self.ws_srd(RD, WS_LN2, 4194304)
        a("v_lshlrev_b32 v24, 4, v2")
        self.unstash("lnh", 4); self.unstash("lny", 5); self.unstash("lnw", 16); self.unstash("lnr", 17); self.unstash("lng", 18)
        a("s_lshl_b32 s61, s%d, 12" % S_WAVE); a("s_lshl_b32 s62, s2, 14"); a("s_add_u32 s62, s62, s61")
        a("s_add_u32 s61, s61, %d" % PSTG)
        a("s_and_b32 s60, s2, 15"); a("s_lshl_b32 s60, s60, 11"); a("s_add_u32 s60, s60, %d" % (C2 * 128))
        self.mark(7)
        self.wait(60, 16, 16)
        self.mark(8)
        a("s_mov_b32 m0, s61"); a("s_nop 0")
        for i in range(4):
            a("buffer_load_dwordx4 v24, s[%d:%d], s62 offen offset:%d lds" % (RB, RB + 3, 1024 * i))
        a("s_waitcnt vmcnt(0)")
        a("s_barrier")
        for i in range(4):
            a("ds_read_b128 v[%d:%d], v5 offset:%d" % (YR + 4 * i, YR + 4 * i + 3, 4096 * i))
        for i in range(4):
            a("s_waitcnt lgkmcnt(%d)" % (3 - i))
            for c in range(4):
                a("v_lshlrev_b32 v%d, 16, v%d" % (Y + 4 * i + c, YR + 4 * i + c)); a("v_and_b32 v%d, s%d, v%d" % (Y + 16 + 4 * i + c, M, YR + 4 * i + c))
        for tok in range(2):
            for p in range(8):
                x = X + 16 * tok + 2 * p; y = Y + 16 * tok + 2 * p; l = L1 + 16 * tok + 2 * p
                a("v_pk_fma_f32 v[%d:%d], v[%d:%d], v[%d:%d], v[%d:%d]" % (l, l + 1, l, l + 1, y, y + 1, x, x + 1))
                a("v_cvt_pk_bf16_f32 v%d, v%d, v%d" % (HP + 8 * tok + p, l, l + 1))
        HU = 184
        a("s_mov_b32 vcc_lo, 0x55555555"); a("s_mov_b32 vcc_hi, 0x55555555"); a("s_nop 1")
        for i in range(4):
            for d in range(2):
                a("v_cndmask_b32_dpp v%d, v%d, v%d, vcc quad_perm:[1,0,3,2] row_mask:0xf bank_mask:0xf" % (HU + 4 * i + d, HP + 8 + 2 * i + d, HP + 2 * i + d))
        a("s_mov_b32 vcc_lo, 0xaaaaaaaa"); a("s_mov_b32 vcc_hi, 0xaaaaaaaa"); a("s_nop 1")
        for i in range(4):
            for d in range(2):
                a("v_cndmask_b32_dpp v%d, v%d, v%d, vcc quad_perm:[1,0,3,2] row_mask:0xf bank_mask:0xf" % (HU + 4 * i + 2 + d, HP + 2 * i + d, HP + 8 + 2 * i + d))
        for i in range(4):
            a("buffer_store_dwordx4 v[%d:%d], v4, s[%d:%d], s70 offen offset:%d sc1" % (HU + 4 * i, HU + 4 * i + 3, RC, RC + 3, 512 * i))
        for tok in range(2):
            for p in range(8):
                src = HP + 8 * tok + p; dst = X + 16 * tok + 2 * p
                a("v_lshlrev_b32 v%d, 16, v%d" % (dst, src)); a("v_and_b32 v%d, s%d, v%d" % (dst + 1, M, src))
        self.stats(X, ACC)
        self.reduce4([ACC, ACC + 2, ACC + 4, ACC + 6], [60, 61, 62, 63])
        self.ln_scalars([60, 61, 62, 63], T)
        for tok in range(2):
            r, c = T + 4 * tok, T + 4 * tok + 2
            for p in range(8):
                x = X + 16 * tok + 2 * p
                a("v_pk_fma_f32 v[%d:%d], v[%d:%d], v[%d:%d], v[%d:%d] op_sel_hi:[1,0,0]" % (ACC, ACC + 1, x, x + 1, r, r + 1, c, c + 1))
                a("v_cvt_pk_bf16_f32 v%d, v%d, v%d" % (LP + 8 * tok + p, ACC, ACC + 1))
        a("s_mov_b32 vcc_lo, 0x55555555"); a("s_mov_b32 vcc_hi, 0x55555555"); a("s_nop 1")
        for i in range(4):
            for d in range(2):
                a("v_cndmask_b32_dpp v%d, v%d, v%d, vcc quad_perm:[1,0,3,2] row_mask:0xf bank_mask:0xf" % (U + 4 * i + d, LP + 8 + 2 * i + d, LP + 2 * i + d))
        a("s_mov_b32 vcc_lo, 0xaaaaaaaa"); a("s_mov_b32 vcc_hi, 0xaaaaaaaa"); a("s_nop 1")
        for i in range(4):
            for d in range(2):
                a("v_cndmask_b32_dpp v%d, v%d, v%d, vcc quad_perm:[1,0,3,2] row_mask:0xf bank_mask:0xf" % (U + 4 * i + 2 + d, LP + 2 * i + d, LP + 8 + 2 * i + d))
        for i in range(4):
            a("ds_write_b128 v16, v[%d:%d] offset:%d" % (U + 4 * i, U + 4 * i + 3, 4096 * i))
        a("s_lshr_b32 s58, s2, 1"); a("s_lshl_b32 s58, s58, 15"); a("s_and_b32 s59, s2, 1"); a("s_lshl_b32 s59, s59, 7"); a("s_add_u32 s58, s58, s59")
        a("s_waitcnt lgkmcnt(0)")
        a("s_barrier")
        for i in range(4):
            a("ds_read_b128 v[%d:%d], v17 offset:%d" % (LP + 4 * i, LP + 4 * i + 3, 4096 * i))
        for i in range(4):
            a("s_add_u32 s59, s58, %d" % (8192 * i))
            a("s_waitcnt lgkmcnt(%d)" % (3 - i))
            a("buffer_store_dwordx4 v[%d:%d], v18, s[%d:%d], s59 offen sc1" % (LP + 4 * i, LP + 4 * i + 3, RD, RD + 3))
        self.mark(9)
        self.unstash("g1t", 20); self.unstash("g1f", 15); self.unstash("g2w", 25)
        for c in range(4): self.unstash("g2f%d" % c, 26 + c)
        self.unstash("pfd", 30); self.unstash("pfw", 31)
        for tt in range(1, 4): a("v_add_u32 v%d, %d, v20" % (20 + tt, 32768 * tt))
        self.arrive(["s_lshr_b32 s58, s2, 5", "s_lshl_b32 s58, s58, 4", "s_and_b32 s59, s2, 1", "s_add_u32 s58, s58, s59", "s_lshl_b32 s58, s58, 7",
                     "s_add_u32 s60, s58, %d" % (C3 * 128), "v_lshlrev_b32 v7, 8, v2", "v_add_u32 v7, s60, v7"], nlanes=8)
        self.mark(10)

    def g2_dma(self, i, soff):
        fl = "nt" if "g2nt" in self.opt else "sc1" if "g2sc1" in self.opt else ""
        return "buffer_load_dwordx4 v%d, s[%d:%d], s%d offen offset:%d %s lds" % (8 + i, RE, RE + 3, soff, 1024 * i, fl)
    def g2_voffs(self):
        return ["v_add_u32 v%d, %d, v25" % (8 + i, 2048 * (16 * (i & 1) + 4 * (i >> 1)) - 1024 * i) for i in range(4)]

    def gemm1(self):
        a = self.a
        ACC, TOK, WF, PD = 32, 0, 128, 5
        def acc(ct, tt): return ACC + (ct * 4 + tt) * 4
        def wreg(F): return WF + 4 * (F % 7)
        def foff(F, jh):
            kk, ct = F // 14, F % 14
            return (ct // 7) * 14336 + kk * 7168 + jh * 3584 + (ct % 7) * 32
        def tokload(slot, j):
            kk, tt = j >> 2, j & 3
            r = TOK + 32 * slot + 16 * kk + 4 * tt
            fl = "sc1" if "g1tsc1" in self.opt else "nt" if "g1tnt" in self.opt else ""
            return "buffer_load_dwordx4 a[%d:%d], v%d, s[%d:%d], s78 offen offset:%d %s" % (r, r + 3, 20 + tt, RD, RD + 3, 1024 * kk, fl)
        pf = "nopf2" not in self.opt
        def pfops():
            return [([], "buffer_load_dword v19, v30, s[%d:%d], 0 offen" % (RE, RE + 3)),
                    ([], "buffer_load_dword v19, v31, s[%d:%d], 0 offen" % (RC, RC + 3))]
        def pfturn(u):
            return ["s_cmp_eq_u32 s92, %d" % u, "s_cselect_b32 s%d, %d, 0" % (RE + 2, 3584 * 2048), "s_cselect_b32 s%d, %d, 0" % (RC + 2, 1024 * 7168)]
        if pf:
            for i in range(4): a("s_mov_b32 s%d, s%d" % (RC + i, RA + i))
            a("s_mov_b32 s%d, 0" % (RC + 2)); a("s_mov_b32 s%d, 0" % (RE + 2))
        self.ws_srd(RB, WS_HH, 128 * 112 * 1024)
        a("s_lshl_b32 s58, s83, 4"); a("s_lshl_b32 s59, s%d, 1" % S_X); a("s_add_u32 s58, s58, s59"); a("s_lshl_b32 s58, s58, 7")
        a("s_add_u32 s60, s58, %d" % (C3 * 128))
        def zero_acc():
            for r in range(32, 256): a("v_mov_b32 v%d, 0" % r)
        self.wait(60, 2, 16, shadow=zero_acc)
        self.mark(11)
        for st in range(3):
            a("s_add_u32 s58, s82, %d" % (st + 1)); a("s_and_b32 s58, s58, 3"); a("s_lshl_b32 s78, s58, 11")
            for j in range(8): a(tokload(st, j))
        if pf:
            for pre, op in pfops():
                for x in pre: a(x)
                a(op)
        a("v_mov_b32 v16, v15")
        for F in range(PD):
            for jh in range(2):
                a("ds_read_b64_tr_b16 a[%d:%d], v16 offset:%d" % (wreg(F) + 2 * jh, wreg(F) + 2 * jh + 1, foff(F, jh)))
        a("s_waitcnt vmcnt(%d)" % (10 if pf else 8))
        self.mark(12)
        def stage(u, loads, bwait, last=False, extra=None, pfop=False):
            vm = []
            if loads:
                for i in range(7):
                    d = self.g1_dma(i); vm.append(([d[0]], d[1]))
                for j in range(8): vm.append(([], tokload((u + 3) % 4, j)))
                if pfop: vm += pfops()
            if extra: vm = vm + extra
            for F in range(28):
                kk, ct = F // 14, F % 14
                w = wreg(F)
                def mf(tt):
                    t = TOK + 32 * u + 16 * kk + 4 * tt
                    c = acc(ct, tt)
                    a("v_mfma_f32_16x16x32_bf16 v[%d:%d], a[%d:%d], a[%d:%d], v[%d:%d]" % (c, c + 3, w, w + 3, t, t + 3, c, c + 3))
                if F == 0 and loads:
                    a("s_add_u32 s79, s75, s74"); a("s_add_u32 s58, s64, s82"); a("s_mul_i32 s77, s58, %d" % (64 * 7168)); a("s_lshl_b32 s78, s58, 11")
                if F == 1 and pfop:
                    for x in pfturn(u): a(x)
                if F == 28 - PD and not last:
                    a("s_waitcnt vmcnt(%d)" % bwait)
                    a("s_barrier")
                    a("s_add_u32 s76, s76, %d" % G1_STAGE); a("s_cmp_eq_u32 s76, %d" % (G1_STAGE * G1_NSLOT)); a("s_cselect_b32 s76, 0, s76")
                    a("v_add_u32 v16, s76, v15")
                rd = not (last and F >= 28 - PD)
                if rd: a("s_waitcnt lgkmcnt(%d)" % (2 * (PD - 1)))
                else: a("s_waitcnt lgkmcnt(%d)" % (2 * (27 - F)))
                Fn = (F + PD) % 28
                mf(0)
                if rd: a("ds_read_b64_tr_b16 a[%d:%d], v16 offset:%d" % (wreg(F + PD), wreg(F + PD) + 1, foff(Fn, 0)))
                mf(1)
                if rd: a("ds_read_b64_tr_b16 a[%d:%d], v16 offset:%d" % (wreg(F + PD) + 2, wreg(F + PD) + 3, foff(Fn, 1)))
                if F < len(vm):
                    for s in vm[F][0]: a(s)
                mf(2)
                if F < len(vm): a(vm[F][1])
                mf(3)
                if F == 18 and loads:
                    for s in self.g1_wadv(): a(s)
                    if u == 0: a("s_add_u32 s64, s64, 4")
                if F == 19 and pfop and u == 3:
                    a("v_add_u32 v30, %d, v30" % (-640 * 2048)); a("v_add_u32 v31, %d, v31" % (256 * 7168))
        a("s_mov_b32 s80, 3")
        loop = a.new_label("g1"); a.label(loop)
        for u in range(4):
            stage(u, True, 36 if pf else 30, pfop=pf)
        a("s_sub_u32 s80, s80, 1"); a("s_cmp_lg_u32 s80, 0"); a("s_cbranch_scc1 %s" % loop)
        self.mark(13)
        a("s_mov_b32 s%d, %d" % (RE + 2, 3584 * 2048))
        stage(0, True, 34 if pf else 30); stage(1, False, 17 if pf else 15); stage(2, False, 0)
        for x in self.g2_voffs(): a(x)
        ex = []
        for st in range(3):
            for i in range(4):
                ex.append((["s_add_u32 m0, s88, %d" % (G2_BASE + st * G2_STAGE)] if i == 0 else [], self.g2_dma(i, 89 + st)))
        stage(3, False, 0, last=True, extra=ex)
        self.mark(14)
        a("s_mul_i32 s58, s73, %d" % (112 * 1024))
        a("s_mul_i32 s59, s72, 7"); a("s_add_u32 s60, s59, 1"); a("s_lshr_b32 s60, s60, 1")
        a("s_lshl_b32 s60, s60, 10"); a("s_add_u32 s60, s60, s58")
        a("s_and_b32 s61, s72, 1")
        odd = a.new_label("odd"); fin = a.new_label("fin")
        self.unstash("g1ep", 3); self.unstash("g1es", 4)
        a("s_nop 7")
        a("s_cmp_eq_u32 s61, 1"); a("s_cbranch_scc1 %s" % odd)
        for par in range(2):
            if par == 1: a.label(odd)
            cs = 0 if par else 6
            for tt in range(4):
                for c in range(7):
                    g, u = acc(c, tt), acc(7 + c, tt)
                    for i in range(4): a("v_mul_f32 v%d, v%d, v%d" % (g + i, g + i, u + i))
                a("s_add_u32 s61, s60, %d" % (tt * 112 * 1024))
                for j in range(3):
                    c = par + 2 * j
                    g0, g1, u = acc(c, tt), acc(c + 1, tt), acc(7 + c, tt)
                    a("v_cvt_pk_bf16_f32 v%d, v%d, v%d" % (u, g0, g0 + 1)); a("v_cvt_pk_bf16_f32 v%d, v%d, v%d" % (u + 1, g0 + 2, g0 + 3))
                    a("v_cvt_pk_bf16_f32 v%d, v%d, v%d" % (u + 2, g1, g1 + 1)); a("v_cvt_pk_bf16_f32 v%d, v%d, v%d" % (u + 3, g1 + 2, g1 + 3))
                g, u = acc(cs, tt), acc(7 + cs, tt & ~1) + 2 * (tt & 1)
                a("v_cvt_pk_bf16_f32 v%d, v%d, v%d" % (u, g, g + 1)); a("v_cvt_pk_bf16_f32 v%d, v%d, v%d" % (u + 1, g + 2, g + 3))
                for j in range(3):
                    u = acc(7 + par + 2 * j, tt)
                    a("v_permlane16_swap_b32 v%d, v%d" % (u, u + 2)); a("v_permlane16_swap_b32 v%d, v%d" % (u + 1, u + 3))
                    a("buffer_store_dwordx4 v[%d:%d], v3, s[%d:%d], s61 offen offset:%d sc1" % (u, u + 3, RB, RB + 3, 1024 * j))
                if tt & 1:
                    u = acc(7 + cs, tt & ~1)
                    a("s_add_u32 s62, s60, %d" % ((tt & ~1) * 112 * 1024 + (3072 if par == 0 else -512)))
                    a("v_permlane16_swap_b32 v%d, v%d" % (u, u + 2)); a("v_permlane16_swap_b32 v%d, v%d" % (u + 1, u + 3))
                    a("buffer_store_dwordx4 v[%d:%d], v4, s[%d:%d], s62 offen sc1" % (u, u + 3, RB, RB + 3))
            if par == 0: a("s_branch %s" % fin)
        a.label(fin)
        self.mark(15)
        self.g2_pre()
        self.arrive(["s_lshl_b32 s58, s83, 1", "s_lshr_b32 s59, s72, 4", "s_add_u32 s58, s58, s59", "s_lshl_b32 s58, s58, 8",
                     "s_add_u32 s60, s58, %d" % (C4 * 128), "v_lshlrev_b32 v7, 7, v2", "v_add_u32 v7, s60, v7"], nlanes=2)
        self.mark(16)

    def g2_pre(self):
        a = self.a
        self.unstash("g2t0", 20); self.unstash("g2t1", 21); self.unstash("g2o", 22)
        self.in_srd(RD, P_OUT, 4194304)
        self.ws_srd(RA, WS_XCH, 256 * 32768)
        self.ws_srd(RC, WS_H, 4194304)
        for u, sw in enumerate(G2_SW):
            a("s_add_u32 s58, s93, %d" % u); a("s_sub_u32 s59, s58, 5"); a("s_cmp_ge_u32 s58, 5"); a("s_cselect_b32 s58, s59, s58")
            a("s_add_u32 s58, s58, 3"); a("s_lshl_b32 s%d, s58, 17" % sw)
    def gemm2(self):
        a = self.a
        ACC, HR, TOK, WF, PD, NST = 32, 96, 0, 80, 7, 28
        def acc(ct, tt): return ACC + (ct * 2 + tt) * 4
        def tokload(slot, j):
            kk, tt = j >> 1, j & 1
            r = TOK + 16 * slot + 8 * kk + 4 * tt
            fl = "nt" if "g2tnt" in self.opt else "" if "g2tpl" in self.opt else "sc1"
            return "buffer_load_dwordx4 a[%d:%d], v%d, s[%d:%d], s78 offen offset:%d %s" % (r, r + 3, 20 + tt, RB, RB + 3, 1024 * kk, fl)
        def fread(slot, F, jh):
            kk, ct = F // 8, F % 8
            r = WF + 4 * (F % 8) + 2 * jh
            base, so = (26, slot) if slot < 3 else (12, slot - 3)
            return "ds_read_b64_tr_b16 a[%d:%d], v%d offset:%d" % (r, r + 1, base + (ct & 3), so * G2_STAGE + (2 * kk + (ct >> 2)) * 4096 + jh * 2048)
        a("s_lshr_b32 s58, s84, 1"); a("s_lshl_b32 s58, s58, 1"); a("s_add_u32 s58, s58, s86"); a("s_lshl_b32 s58, s58, 1")
        a("s_lshr_b32 s59, s%d, 2" % S_X); a("s_add_u32 s58, s58, s59"); a("s_lshl_b32 s58, s58, 7")
        a("s_add_u32 s60, s58, %d" % (C4 * 128))
        def zero_acc():
            for r in range(ACC, ACC + 64): a("v_mov_b32 v%d, 0" % r)
            for c in range(4):
                a("v_add_u32 v%d, %d, v%d" % (12 + c, G2_BASE + 3 * G2_STAGE, 26 + c)); a("v_add_u32 v%d, %d, v%d" % (26 + c, G2_BASE, 26 + c))
        self.wait(60, 1, 16, shadow=zero_acc)
        self.mark(17)
        for st in range(3):
            a("s_lshr_b32 s78, s%d, 6" % (89 + st))
            for j in range(4): a(tokload(st, j))
        for F in range(PD):
            for jh in range(2): a(fread(0, F, jh))
        a("s_add_u32 m0, s88, %d" % (G2_BASE + 3 * G2_STAGE))
        a("s_waitcnt vmcnt(4) lgkmcnt(10)")
        self.mark(18)
        def stage(u, loads, bwait, last=False, extra=None, tailops=None):
            G = [[] for _ in range(32)]
            nods = "x2nods" in self.opt
            for F in range(16):
                Fn = F + PD
                if not nods and not (last and Fn >= 16):
                    sl = u if Fn < 16 else (u + 1) % 5
                    G[2 * F].append(fread(sl, Fn % 16, 0)); G[2 * F + 1].append(fread(sl, Fn % 16, 1))
                if F & 1:
                    if not last: G[2 * F + 1].append("s_waitcnt lgkmcnt(10)")
                    elif F < 15:
                        issued = min(F + PD, 15); need = F + 2
                        G[2 * F + 1].append("s_waitcnt lgkmcnt(%d)" % max(0, 2 * (issued - need)))
            vm = []
            if loads:
                sw = G2_SW[u]
                vm = [self.g2_dma(i, sw) for i in range(4)] + [tokload((u + 3) % 5, j) for j in range(4)]
                if "x2nodma" in self.opt: vm[:4] = ["s_nop 0"] * 4
                if "x2notok" in self.opt: vm[4:] = ["s_nop 0"] * 4
                G[1].append("s_lshr_b32 s78, s%d, 6" % sw)
                G[9].append("s_add_u32 s%d, s%d, %d" % (sw, sw, 5 << 17))
                G[29].append("s_add_u32 m0, s88, %d" % (G2_BASE + ((u + 4) % 5) * G2_STAGE))
            if extra: vm = extra
            for i, x in enumerate(vm): G[2 * i].append(x)
            if not last:
                G[16].append("s_waitcnt vmcnt(%d)" % bwait); G[17].append("s_barrier")
            if tailops:
                for g, x in tailops: G[g].append(x)
            k = 0
            for F in range(16):
                kk, ct = F // 8, F % 8
                w = WF + 4 * (F % 8)
                for tt in range(2):
                    t = TOK + 16 * u + 8 * kk + 4 * tt; c = acc(ct, tt)
                    if "x2nomfma" not in self.opt:
                        a("v_mfma_f32_16x16x32_bf16 v[%d:%d], a[%d:%d], a[%d:%d], v[%d:%d]" % (c, c + 3, w, w + 3, t, t + 3, c, c + 3))
                    for x in G[k]: a(x)
                    k += 1
        a("s_mov_b32 s81, 5")
        loop = a.new_label("g2"); a.label(loop)
        for u in range(5):
            stage(u, True, 16, tailops=[(21, "s_sub_u32 s81, s81, 1"), (30, "s_cmp_lg_u32 s81, 0")] if u == 4 else None)
        a("s_cbranch_scc1 %s" % loop)
        hl = ["buffer_load_dwordx2 v[%d:%d], v22, s[%d:%d], 0 offen offset:%d sc1" % (HR + 2 * ct, HR + 2 * ct + 1, RC, RC + 3, 32 * ct) for ct in range(8)]
        stage(0, False, 16, extra=hl); stage(1, False, 8); stage(2, False, 0, last=True)
        self.mark(19)
        a("s_lshl_b32 s58, s2, 15"); a("s_lshl_b32 s59, s%d, 13" % S_WAVE); a("s_add_u32 s61, s58, s59")
        a("s_xor_b32 s58, s2, 1"); a("s_lshl_b32 s58, s58, 15"); a("s_add_u32 s62, s58, s59")
        a("s_waitcnt lgkmcnt(0)")
        a("s_nop 7")
        for ct in range(8):
            c = acc(ct, 1)
            a("s_add_u32 s58, s61, %d" % (4096 * (ct >> 2)))
            a("buffer_store_dwordx4 v[%d:%d], v24, s[%d:%d], s58 offen offset:%d sc1" % (c, c + 3, RA, RA + 3, 1024 * (ct & 3)))
        a("s_waitcnt vmcnt(8)")
        for ct in range(8):
            c = acc(ct, 0); r = HR + 2 * ct
            a("v_lshlrev_b32 v4, 16, v%d" % r); a("v_and_b32 v5, s%d, v%d" % (S_MASK, r))
            a("v_lshlrev_b32 v6, 16, v%d" % (r + 1)); a("v_and_b32 v7, s%d, v%d" % (S_MASK, r + 1))
            for i in range(4): a("v_add_f32 v%d, v%d, v%d" % (c + i, c + i, 4 + i))
        self.arrive(["s_lshl_b32 s58, s2, 7", "s_add_u32 s60, s58, %d" % (XF * 128), "v_mov_b32 v7, s60"])
        self.mark(20)
        a("s_xor_b32 s58, s2, 1"); a("s_lshl_b32 s58, s58, 7"); a("s_add_u32 s60, s58, %d" % (XF * 128))
        self.wait(60, 1, 1)
        self.mark(21)
        R = 112
        for ct in range(8):
            a("s_add_u32 s58, s62, %d" % (4096 * (ct >> 2)))
            a("buffer_load_dwordx4 v[%d:%d], v24, s[%d:%d], s58 offen offset:%d" % (R + 4 * ct, R + 4 * ct + 3, RA, RA + 3, 1024 * (ct & 3)))
        for ct in range(8):
            c = acc(ct, 0); r = R + 4 * ct
            a("s_waitcnt vmcnt(7)")
            for i in range(4): a("v_add_f32 v%d, v%d, v%d" % (c + i, c + i, r + i))
            a("v_cvt_pk_bf16_f32 v%d, v%d, v%d" % (r, c, c + 1)); a("v_cvt_pk_bf16_f32 v%d, v%d, v%d" % (r + 1, c + 2, c + 3))
            a("buffer_store_dwordx2 v[%d:%d], v22, s[%d:%d], 0 offen offset:%d" % (r, r + 1, RD, RD + 3, 32 * ct))
        self.mark(22)

    def finish(self, name):
        a = self.a
        if self.diag:
            a("s_waitcnt vmcnt(0) lgkmcnt(0)")
            self.mark(23)
            a("s_memrealtime s[92:93]"); a("s_waitcnt lgkmcnt(0)")
            a("v_accvgpr_read_b32 v1, a255"); a("s_nop 1")
            for i, s in enumerate((94, 95, 96, 97, 92, 93)):
                a("v_writelane_b32 v1, s%d, %d" % (s, 56 + i))
            self.ws_srd(RA, STAMP, 256 * 1024)
            a("s_lshl_b32 s58, s2, 10"); a("s_lshl_b32 s59, s%d, 8" % S_WAVE); a("s_add_u32 s58, s58, s59")
            a("v_lshlrev_b32 v3, 2, v2")
            a("buffer_store_dword v1, v3, s[%d:%d], s58 offen" % (RA, RA + 3))
            if "dbgspan" in self.opt:
                self.in_srd(RE, P_DBG, 256)
                nd = a.new_label("nodbg")
                a("s_cmp_lg_u32 s%d, 0" % S_WAVE); a("s_cbranch_scc1 %s" % nd)
                a("s_not_b32 s58, s94"); a("v_mov_b32 v4, s58"); a("v_mov_b32 v5, 16"); a("v_mov_b32 v6, s92"); a("v_mov_b32 v7, 20")
                a("s_mov_b64 exec, 1")
                a("buffer_atomic_umax v4, v5, s[%d:%d], 0 offen" % (RE, RE + 3))
                a("buffer_atomic_umax v6, v7, s[%d:%d], 0 offen" % (RE, RE + 3))
                a("s_mov_b64 exec, -1")
                a("s_cmp_lg_u32 s2, 0"); a("s_cbranch_scc1 %s" % nd)
                a("v_mov_b32 v4, 0")
                for i, m in enumerate((2, 3, 6, 8, 11, 12, 14, 17, 19, 23)):
                    a("v_readlane_b32 s58, v1, %d" % (2 * m)); a("s_nop 3"); a("s_sub_u32 s58, s58, s96"); a("v_writelane_b32 v4, s58, %d" % (6 + i)); a("s_nop 1")
                a("v_lshlrev_b32 v5, 2, v2")
                a("s_mov_b64 exec, 0xffc0")
                a("buffer_store_dword v4, v5, s[%d:%d], 0 offen" % (RE, RE + 3))
                a("s_mov_b64 exec, -1")
                a.label(nd)
        a.label(name + "_done")
        a("s_endpgm")
    def build(self, upto=5):
        name = KNAME + "_kernel"
        self.entry(name)
        self.prep()
        if upto >= 2: self.conv()
        if upto >= 3:
            self.g1_setup(); self.ln()
        if upto >= 4: self.gemm1()
        if upto >= 5: self.gemm2()
        self.finish(name)
        hdr = "; persistent single-launch kernel generated by gen/fused.py (hand-written generator)\n"
        hdr += "; @launch grid=(256,1,1) block=(256,1,1) lds=%d\n" % LDS_TOTAL
        hdr += '.amdgcn_target "amdgcn-amd-amdhsa--gfx950"\n'
        return hdr + self.a.text() + kernel_desc(name, 512, 102, 256)

if __name__ == "__main__":
    import sys
    out = sys.argv[1]
    opt = sys.argv[2] if len(sys.argv) > 2 else ""
    diag = "diag" in opt.split(",")
    upto = 5
    for t in opt.split(","):
        if t.startswith("upto"): upto = int(t[4:])
    open(out, "w").write(Gen(opt, diag).build(upto))
```

```python
from asmlib import *
from layout import *

P_Q, P_K, P_V, P_SK, P_SSMK, P_SSMD, P_WG, P_WU, P_WD, P_OUT, P_DBG, P_WS = 4, 6, 8, 10, 12, 14, 18, 20, 22, 24, 26, 28
S_WAVE, S_X, S_J = 30, 31, 3
RA, RB, RC, RD, RE, RS = 32, 36, 40, 44, 48, 52
S_MASK, S_EPS = 56, 57
SPIN_MAX = 1 << 17

KCOPY = 4160; XB0 = 4 * KCOPY; XSTR = 4576; WREG = 25856
CSTG = 4 * WREG
PSTG = CSTG + 17408
G1_STAGE = 28672; G1_NSLOT = 5
SENT = 236
G2_WF = 204
G2_STAGE = 16384; G2_NSLOT = 6; G2_BASE = G1_STAGE
G2_SLOT = [G2_BASE, G2_BASE + G2_STAGE, G2_BASE + 2 * G2_STAGE, G1_STAGE * G1_NSLOT, G2_BASE + 3 * G2_STAGE, G2_BASE + 4 * G2_STAGE]
G2_ROW = [89, 90, 91, 93]
G2_TOK = [0, 16, 160, 176, 32, 48]
LDS_TOTAL = G1_STAGE * G1_NSLOT + G2_STAGE

class DSQ:
    def __init__(self): self.n = 0; self.pos = {}; self.done = 0
    def issue(self, tag): self.n += 1; self.pos[tag] = self.n
    def wait(self, tag):
        need = self.pos[tag]
        if need <= self.done: return None
        cnt = min(15, self.n - need); self.done = self.n - cnt
        return "s_waitcnt lgkmcnt(%d)" % cnt

class VMQ:
    def __init__(self): self.n = 0; self.pos = {}
    def op(self, tag, text): return lambda: (self.issue(tag), text)[1]
    def issue(self, tag): self.n += 1; self.pos[tag] = self.n
    def wait(self, tag): return "s_waitcnt vmcnt(%d)" % min(63, self.n - self.pos[tag])

class Gen:
    def __init__(self, opt="", diag=False):
        self.a = Asm(); self.opt = set(opt.split(",")); self.diag = diag; self.stashed = {}; self.pffast = "pfall" not in self.opt; self.slow = []
        optv = self.optv
        self.nA0, self.nPoll, self.nChk, self.nA1 = optv("nA", 44), optv("nP", 60), optv("nC", 68), optv("nB", 72)
    def optv(self, name, dflt):
        for t in self.opt:
            if t.startswith(name + "="): return int(t[len(name) + 1:])
        return dflt
    def mark(self, i):
        if not self.diag: return
        a = self.a
        a("s_memtime s[98:99]"); a("s_waitcnt lgkmcnt(0)")
        a("v_accvgpr_read_b32 v1, a255"); a("s_nop 1")
        a("v_writelane_b32 v1, s98, %d" % (2 * i)); a("v_writelane_b32 v1, s99, %d" % (2 * i + 1))
        a("s_nop 1"); a("v_accvgpr_write_b32 a255, v1")
    def stash(self, name, v):
        n = len(self.stashed)
        idx = self.stashed.setdefault(name, 176 + n if n < 28 else 240 + n - 28); assert idx < 255
        self.a("v_accvgpr_write_b32 a%d, v%d" % (idx, v))
    def unstash(self, name, v):
        self.a("v_accvgpr_read_b32 v%d, a%d" % (v, self.stashed[name]))
    def ws_srd(self, dst, off, size):
        a = self.a
        a("s_add_u32 s%d, s%d, 0x%x" % (dst, P_WS, off)); a("s_addc_u32 s%d, s%d, 0" % (dst + 1, P_WS + 1))
        a("s_and_b32 s%d, s%d, 0xffff" % (dst + 1, dst + 1)); a("s_mov_b32 s%d, 0x%x" % (dst + 2, size)); a("s_mov_b32 s%d, 0x00020000" % (dst + 3))
    def in_srd(self, dst, ptr, size, soff=None):
        a = self.a
        if soff is None:
            srd(a, dst, ptr, size)
        else:
            a("s_add_u32 s%d, s%d, s%d" % (dst, ptr, soff)); a("s_addc_u32 s%d, s%d, 0" % (dst + 1, ptr + 1))
            a("s_and_b32 s%d, s%d, 0xffff" % (dst + 1, dst + 1)); a("s_mov_b32 s%d, 0x%x" % (dst + 2, size)); a("s_mov_b32 s%d, 0x00020000" % (dst + 3))
    def arrive(self, addr, nlanes=1, vm=0, check_init=None, init_target=1):
        a = self.a
        for s in addr: a(s)
        a("s_waitcnt vmcnt(%d)" % vm)
        a("s_barrier")
        sk = a.new_label("arr")
        a("s_cmp_lg_u32 s%d, 0" % S_WAVE); a("s_cbranch_scc1 %s" % sk)
        if check_init is not None:
            ok = a.new_label("ini"); lp = a.new_label("inip")
            a("s_mov_b32 s59, 0")
            a.label(lp)
            a("v_readfirstlane_b32 s58, v%d" % check_init)
            a("s_cmp_ge_u32 s58, %d" % init_target); a("s_cbranch_scc1 %s" % ok)
            a("s_add_u32 s59, s59, 1"); a("s_cmp_gt_u32 s59, %d" % SPIN_MAX); a("s_cbranch_scc1 %s" % ok)
            a("v_mov_b32 v6, 0")
            a("buffer_load_dword v%d, v6, s[%d:%d], 0 offen sc1" % (check_init, RE, RE + 3))
            a("s_waitcnt vmcnt(0)")
            a("s_branch %s" % lp)
            a.label(ok)
        a("v_mov_b32 v6, 1")
        a("s_mov_b64 exec, 0x%x" % ((1 << nlanes) - 1))
        a("buffer_atomic_add v6, v7, s[%d:%d], 0 offen" % (RS, RS + 3))
        a("s_mov_b64 exec, -1")
        a.label(sk)
    def wait(self, line_sgpr, nlines, target, shadow=None):
        a = self.a
        sk = a.new_label("wt"); lp = a.new_label("wtp"); s0 = a.new_label("wt0")
        mask = "0x%x" % ((1 << nlines) - 1)
        a("s_cmp_lg_u32 s%d, 0" % S_WAVE); a("s_cbranch_scc1 %s" % s0)
        a("v_min_u32 v6, %d, v2" % (nlines - 1)); a("v_lshlrev_b32 v6, 7, v6"); a("v_add_u32 v6, s%d, v6" % line_sgpr)
        a("s_mov_b64 exec, %s" % mask)
        a("buffer_load_dword v7, v6, s[%d:%d], 0 offen sc1" % (RS, RS + 3))
        a("s_mov_b64 exec, -1")
        a.label(s0)
        if shadow: shadow()
        a("s_cmp_lg_u32 s%d, 0" % S_WAVE); a("s_cbranch_scc1 %s" % sk)
        a("s_mov_b32 s59, 0")
        a("s_mov_b64 exec, %s" % mask)
        a.label(lp)
        a("s_waitcnt vmcnt(0)")
        a("v_cmp_gt_u32 vcc, %d, v7" % target)
        a("s_add_u32 s59, s59, 1")
        a("s_cmp_gt_u32 s59, %d" % SPIN_MAX); a("s_cbranch_scc1 %s" % (sk + "x"))
        a("s_cbranch_vccz %s" % (sk + "x"))
        a("buffer_load_dword v7, v6, s[%d:%d], 0 offen sc1" % (RS, RS + 3))
        a("s_branch %s" % lp)
        a.label(sk + "x")
        a("s_mov_b64 exec, -1")
        a.label(sk)
        a("s_barrier")

    def entry(self, name):
        a = self.a
        kernel_begin(a, name)
        a("s_cmp_ge_u32 s2, 256"); a("s_cbranch_scc1 %s_done" % name)
        if self.diag:
            a("s_memrealtime s[94:95]"); a("s_memtime s[96:97]"); a("v_accvgpr_write_b32 a255, 0")
        a("s_load_dwordx16 s[4:19], s[0:1], 0")
        a("s_load_dwordx8 s[20:27], s[0:1], 64")
        a("s_load_dwordx2 s[28:29], s[0:1], 96")
        a("v_lshrrev_b32 v1, 6, v0")
        a("v_and_b32 v2, 63, v0")
        a("v_readfirstlane_b32 s%d, v1" % S_WAVE)
        a("s_and_b32 s%d, s2, 7" % S_X); a("s_lshr_b32 s%d, s2, 3" % S_J)
        a("s_mov_b32 s%d, 0xffff0000" % S_MASK); a("s_mov_b32 s%d, 0x3727c5ac" % S_EPS)

    def prep(self):
        a = self.a
        a("v_and_b32 v8, 7, v0")
        a("v_lshrrev_b32 v9, 3, v0")
        a("s_lshr_b32 s60, s2, 4")
        a("s_and_b32 s61, s2, 15")
        a("s_lshl_b32 s62, s60, 18"); a("s_lshl_b32 s63, s61, 7"); a("s_add_u32 s62, s62, s63")
        a("v_lshlrev_b32 v3, 13, v9"); a("v_lshl_add_u32 v3, v8, 4, v3"); a("v_add_u32 v3, s62, v3")
        a("v_subrev_u32 v4, 6144, v3")
        a("s_lshl_b32 s63, s61, 9"); a("v_lshlrev_b32 v5, 6, v8"); a("v_add_u32 v5, s63, v5")
        a("s_mov_b32 s64, 4096")
        a("s_lshl_b32 s65, s%d, 5" % S_X); a("s_add_u32 s65, s65, s%d" % S_J)
        a("s_lshl_b32 s66, s65, 2"); a("s_add_u32 s66, s66, s%d" % S_WAVE)
        a("s_mul_i32 s67, s%d, %d" % (S_WAVE, WREG))
        a("s_lshl_b32 s68, s66, 12")
        a("v_lshlrev_b32 v10, 4, v2")
        a("v_lshlrev_b32 v11, 2, v2")
        a("v_add_u32 v12, 196, v10")
        a("s_lshl_b32 s69, s2, 3"); a("s_lshl_b32 s70, s%d, 1" % S_WAVE); a("s_add_u32 s69, s69, s70"); a("s_lshl_b32 s70, s69, 11")
        a("v_lshlrev_b32 v13, 3, v2")
        a("s_waitcnt lgkmcnt(0)")
        self.ws_srd(RS, WS_SYNC, NLINES * 128)
        NCLR = NLINES // 64
        ni = a.new_label("noinit")
        a("s_lshl_b32 s58, s%d, 8" % S_WAVE); a("s_or_b32 s58, s58, s2"); a("s_cmp_ge_u32 s58, %d" % NCLR); a("s_cbranch_scc1 %s" % ni)
        a("v_lshlrev_b32 v6, 7, v2"); a("v_mov_b32 v7, 0"); a("s_lshl_b32 s58, s2, 13")
        a("buffer_store_dword v7, v6, s[%d:%d], s58 offen sc1" % (RS, RS + 3))
        a.label(ni)
        self.in_srd(RA, P_K, 4194304); self.in_srd(RB, P_V, 4194304); self.in_srd(RC, P_SK, 8192)
        KR, VR, SK = 16, 44, 60
        nt = "" if "p1nont" in self.opt else "nt"
        def ld(dst, voff, s, soff, off, fl=""):
            a("buffer_load_dwordx4 v[%d:%d], v%d, s[%d:%d], %s offen%s %s" % (dst, dst + 3, voff, s, s + 3, soff, " offset:%d" % off if off else "", fl))
        for i in range(4): ld(SK + 4 * i, 5, RC, "0", 16 * i)
        ld(KR + 0, 4, RA, "0", 0, nt); ld(KR + 4, 4, RA, "0", 2048, nt); ld(KR + 8, 4, RA, "s64", 0, nt)
        ld(KR + 12, 3, RA, "0", 0, nt); ld(KR + 16, 3, RA, "0", 2048, nt); ld(KR + 20, 3, RA, "s64", 0, nt); ld(KR + 24, 3, RA, "s64", 2048, nt)
        ld(VR + 0, 3, RB, "0", 0, nt); ld(VR + 4, 3, RB, "0", 2048, nt); ld(VR + 8, 3, RB, "s64", 0, nt); ld(VR + 12, 3, RB, "s64", 2048, nt)
        self.in_srd(RE, P_DBG, 256)
        ni = a.new_label("noflag")
        a("s_lshl_b32 s58, s%d, 8" % S_WAVE); a("s_or_b32 s58, s58, s2"); a("s_cmp_ge_u32 s58, %d" % NCLR); a("s_cbranch_scc1 %s" % ni)
        a("s_waitcnt vmcnt(15)")
        a("v_mov_b32 v6, 0"); a("v_mov_b32 v7, 1")
        a("s_mov_b64 exec, 1")
        a("buffer_atomic_add v7, v6, s[%d:%d], 0 offen" % (RE, RE + 3))
        a("s_mov_b64 exec, -1")
        a.label(ni)
        self.in_srd(RD, P_SSMK, 4096, 68)
        sknt = "" if "sknont" in self.opt else "nt"
        for i in range(16):
            a("buffer_load_dword v%d, v11, s[%d:%d], 0 offen offset:%d %s" % (128 + i, RD, RD + 3, 256 * i, sknt))
        a("s_lshr_b32 s58, s66, 1"); a("s_lshl_b32 s58, s58, 2")
        a("s_load_dword s71, s[%d:%d], s58" % (P_SSMD, P_SSMD + 1))
        self.ws_srd(RC, WS_XRT, 4194304)
        a("v_sub_u32 v6, 31, v9"); a("v_lshlrev_b32 v7, 1, v8"); a("v_xor_b32 v6, v6, v7"); a("v_lshlrev_b32 v6, 3, v6")
        a("v_lshl_add_u32 v6, v8, 11, v6"); a("v_add_u32 v14, %d, v6" % PSTG)
        W, K, V, O = 80, 84, 92, 96
        def unpack(dst, src, hi):
            if hi: a("v_and_b32 v%d, s%d, v%d" % (dst, S_MASK, src))
            else: a("v_lshlrev_b32 v%d, 16, v%d" % (dst, src))
        self.shadow()
        a("s_waitcnt vmcnt(16)")
        self.mark(0)
        for c in range(8):
            d, hi = c >> 1, c & 1
            unpack(W + 0, SK + 2 * c, 0); unpack(W + 1, SK + 2 * c, 1); unpack(W + 2, SK + 2 * c + 1, 0); unpack(W + 3, SK + 2 * c + 1, 1)
            for i in range(7): unpack(K + i, KR + 4 * i + d, hi)
            for j in range(4): unpack(V + j, VR + 4 * j + d, hi)
            for j in range(4): a("v_mul_f32 v%d, v%d, v%d" % (O + j, K + j, W + 3))
            for tap in (1, 2, 3):
                for j in range(4): a("v_fmac_f32 v%d, v%d, v%d" % (O + j, K + j + tap, W + 3 - tap))
            for j in range(4): a("v_mul_f32 v%d, v%d, v%d" % (O + j, O + j, V + j))
            P = 100 + 2 * (c & 1)
            a("v_cvt_pk_bf16_f32 v%d, v%d, v%d" % (P, O + 3, O + 2))
            a("v_cvt_pk_bf16_f32 v%d, v%d, v%d" % (P + 1, O + 1, O + 0))
            a("ds_write_b64 v14, v[%d:%d] offset:%d" % (P, P + 1, c * 256))
        a("v_lshrrev_b32 v16, 4, v0"); a("v_and_b32 v17, 15, v0"); a("v_lshrrev_b32 v18, 7, v0")
        a("s_lshl_b32 s62, s61, 18"); a("s_lshl_b32 s63, s60, 8"); a("s_sub_u32 s62, s62, s63"); a("s_add_u32 s62, s62, 3840")
        a("v_lshlrev_b32 v19, 12, v16"); a("v_lshl_add_u32 v19, v17, 4, v19"); a("v_add_u32 v19, s62, v19")
        a("s_waitcnt lgkmcnt(0)")
        a("s_barrier")
        for i in range(4):
            a("v_add_u32 v20, %d, v18" % (2 * i)); a("v_xor_b32 v20, v20, v17"); a("v_lshlrev_b32 v20, 4, v20")
            a("v_lshl_add_u32 v20, v16, 8, v20"); a("v_add_u32 v20, %d, v20" % PSTG)
            a("ds_read_b128 v[%d:%d], v20 offset:%d" % (24 + 4 * i, 27 + 4 * i, i * 4096))
        a("v_mov_b32 v6, 0")
        a("buffer_load_dword v15, v6, s[%d:%d], 0 offen sc1" % (RE, RE + 3))
        for i in range(4):
            a("s_mov_b32 s63, %d" % (i * 16 * 4096))
            a("s_waitcnt lgkmcnt(%d)" % (3 - i))
            a("buffer_store_dwordx4 v[%d:%d], v19, s[%d:%d], s63 offen sc1" % (24 + 4 * i, 27 + 4 * i, RC, RC + 3))
        nyoung = 0
        if "qw1" in self.opt:
            self.q_loads(); nyoung += 8
        self.mark(1)
        self.arrive(["s_lshl_b32 s58, s61, 7", "s_add_u32 s60, s58, %d" % (C1 * 128), "v_mov_b32 v7, s60"], vm=nyoung, check_init=15, init_target=NCLR)
        self.mark(2)

    def q_loads(self):
        a = self.a
        self.in_srd(RD, P_Q, 4194304)
        qf = "" if "qnont" in self.opt else "nt"
        a("v_lshlrev_b32 v13, 3, v2")
        for tok in range(2):
            for i in range(4):
                r = 160 + 8 * tok + 2 * i
                a("buffer_load_dwordx2 a[%d:%d], v13, s[%d:%d], s70 offen offset:%d %s" % (r, r + 1, RD, RD + 3, 512 * i + 2048 * tok, qf))

    def conv(self):
        a = self.a
        a("s_add_u32 s58, s68, 0x%x" % WS_XRT)
        a("s_add_u32 s%d, s%d, s58" % (RA, P_WS)); a("s_addc_u32 s%d, s%d, 0" % (RA + 1, P_WS + 1))
        a("s_and_b32 s%d, s%d, 0xffff" % (RA + 1, RA + 1)); a("s_mov_b32 s%d, 4096" % (RA + 2)); a("s_mov_b32 s%d, 0x00020000" % (RA + 3))
        self.ws_srd(RB, WS_YB, 4194304)
        a("v_and_b32 v8, 15, v2"); a("v_lshrrev_b32 v9, 4, v2")
        a("v_and_b32 v3, 3, v8"); a("v_lshrrev_b32 v4, 2, v8")
        a("v_mul_u32_u24 v12, %d, v3" % KCOPY)
        a("v_add_u32 v13, v4, v9"); a("v_lshl_add_u32 v12, v13, 4, v12"); a("v_add_u32 v12, s67, v12")
        a("v_and_b32 v13, 1, v8"); a("v_lshrrev_b32 v14, 1, v8")
        a("v_mul_u32_u24 v15, %d, v13" % XSTR); a("v_lshl_add_u32 v15, v9, 4, v15")
        a("v_lshlrev_b32 v14, 6, v14"); a("v_sub_u32 v15, v15, v14")
        a("s_add_u32 s58, s67, %d" % (XB0 + 64 * 63 - 3584)); a("v_add_u32 v14, s58, v15")
        AD = 60
        a("v_lshlrev_b32 v15, 3, v4"); a("v_lshl_add_u32 v15, v3, 1, v15"); a("v_lshl_add_u32 v15, v9, 3, v15")
        a("s_and_b32 s58, s66, 1"); a("s_lshl_b32 s58, s58, 4"); a("s_lshr_b32 s71, s71, s58"); a("s_and_b32 s71, s71, 0xffff")
        a("v_mov_b32 v1, s71")
        for dd in range(4):
            a("v_cmp_eq_u32 vcc, %d, v15" % (30 - 2 * dd)); a("s_nop 1"); a("v_cndmask_b32 v%d, 0, v1, vcc" % (AD + dd))
        a("v_lshrrev_b32 v4, 4, v2"); a("v_mul_u32_u24 v4, %d, v4" % KCOPY); a("v_and_b32 v5, 15, v2"); a("v_lshl_add_u32 v4, v5, 2, v4")
        a("v_add_u32 v4, s67, v4"); a("v_mov_b32 v5, 0")
        a("ds_write_b32 v4, v5")
        a("s_add_u32 s58, s67, 60"); a("v_add_u32 v4, s58, v11")
        for phi in range(4):
            if phi: a("v_add_u32 v4, %d, v4" % (KCOPY - 4))
            for i in range(8):
                a("ds_write2st64_b32 v4, v%d, v%d offset0:%d offset1:%d" % (128 + 2 * i, 129 + 2 * i, 2 * i, 2 * i + 1))
        a("s_add_u32 s58, s67, %d" % XB0); a("v_add_u32 v4, s58, v10")
        for r in range(56, 60): a("v_mov_b32 v%d, 0" % r)
        a("s_mov_b64 exec, 0xfffffff")
        a("ds_write_b128 v4, v[56:59] offset:4096"); a("ds_write_b128 v4, v[56:59] offset:%d" % (XSTR + 4096))
        a("s_mov_b64 exec, -1")
        a("v_add_u32 v5, 16, v10")
        a("s_lshr_b32 s58, s65, 4"); a("s_lshl_b32 s58, s58, 7"); a("s_add_u32 s60, s58, %d" % (C1 * 128))
        self.wait(60, 1, 16)
        self.mark(3)
        XD = 16
        for i in range(4):
            a("buffer_load_dwordx4 v[%d:%d], v10, s[%d:%d], 0 offen offset:%d" % (XD + 8 * i, XD + 8 * i + 3, RA, RA + 3, 1024 * i))
        for i in range(4):
            a("buffer_load_dword v%d, v5, s[%d:%d], 0 offen offset:%d" % (XD + 8 * i + 4, RA, RA + 3, 1024 * i))
        for i in range(4):
            d = XD + 8 * i
            a("s_waitcnt vmcnt(%d)" % (7 - i))
            a("ds_write_b128 v4, v[%d:%d] offset:%d" % (d, d + 3, XSTR + 1024 * i))
        for i in range(4):
            d = XD + 8 * i
            a("s_waitcnt vmcnt(%d)" % (3 - i))
            for j in range(4):
                a("v_alignbit_b32 v%d, v%d, v%d, 16" % (48 + j + 4 * (i & 1), d + j + 1, d + j))
            a("ds_write_b128 v4, v[%d:%d] offset:%d" % (48 + 4 * (i & 1), 51 + 4 * (i & 1), 1024 * i))
        a("s_cmp_lt_u32 s%d, 2" % S_WAVE)
        a("s_cselect_b32 s%d, s%d, s%d" % (RC, P_WG, P_WU)); a("s_cselect_b32 s%d, s%d, s%d" % (RC + 1, P_WG + 1, P_WU + 1))
        a("s_and_b32 s%d, s%d, 0xffff" % (RC + 1, RC + 1)); a("s_mov_b32 s%d, %d" % (RC + 2, 1024 * 7168)); a("s_mov_b32 s%d, 0x00020000" % (RC + 3))
        if True:
            a("s_lshl_b32 s58, s2, 15"); a("s_lshl_b32 s59, s%d, 13" % S_WAVE); a("s_add_u32 s58, s58, s59"); a("s_add_u32 s58, s58, 0x%x" % WS_XCH)
            a("s_add_u32 s%d, s%d, s58" % (RE, P_WS)); a("s_addc_u32 s%d, s%d, 0" % (RE + 1, P_WS + 1))
            a("s_and_b32 s%d, s%d, 0xffff" % (RE + 1, RE + 1)); a("s_mov_b32 s%d, 8192" % (RE + 2)); a("s_mov_b32 s%d, 0x00020000" % (RE + 3))
            a("s_mov_b32 s59, 0")
        if "hhpf" in self.opt:
            self.ws_srd(RA, WS_HH, 128 * 112 * 1024)
            a("s_lshl_b32 s60, s2, 2"); a("s_add_u32 s60, s60, s%d" % S_WAVE); a("s_mul_i32 s60, s60, 14336"); a("s_add_u32 s61, s60, 6144")
            a("v_lshlrev_b32 v3, 7, v2")
            fl = "nt" if "hhnt" in self.opt else "sc1" if "hhsc1" in self.opt else ""
            a("buffer_load_dword v15, v3, s[%d:%d], s60 offen %s" % (RA, RA + 3, fl))
            a("buffer_load_dword v15, v3, s[%d:%d], s61 offen %s" % (RA, RA + 3, fl))
        a("s_waitcnt lgkmcnt(0)")
        self.mark(4)
        ACC = 192
        def A(s, i): return 64 + 64 * s + 4 * i
        def B(s, i): return 96 + 64 * s + 4 * i
        def reads(s, rho_off):
            out = []
            for i in range(8):
                out.append("ds_read_b128 v[%d:%d], v14 offset:%d" % (B(s, i), B(s, i) + 3, 3584 - 512 * i + rho_off))
                out.append("ds_read_b128 v[%d:%d], v12 offset:%d" % (A(s, i), A(s, i) + 3, 512 * i + rho_off))
            return out
        def mfmas(s):
            out = []
            for m in range(8):
                for (x, y) in [(i, m) for i in range(m + 1)] + [(m, i) for i in range(m)]:
                    if x + y <= 7:
                        t = ACC + 4 * (x + y)
                        out.append("v_mfma_f32_16x16x32_bf16 v[%d:%d], v[%d:%d], v[%d:%d], v[%d:%d]" % (
                            t, t + 3, A(s, x), A(s, x) + 3, B(s, y), B(s, y) + 3, t, t + 3))
            return out
        for r in reads(0, 0): a(r)
        a("s_waitcnt lgkmcnt(0)")
        for tau in range(8):
            t = ACC + 4 * tau
            a("v_mfma_f32_16x16x32_bf16 v[%d:%d], v[%d:%d], v[%d:%d], 0" % (t, t + 3, AD, AD + 3, B(0, tau), B(0, tau) + 3))
        a("s_mov_b32 s58, 4")
        loop = a.new_label("conv"); a.label(loop)
        if "qw1" not in self.opt:
            nq = a.new_label("noq")
            a("s_cmp_lg_u32 s58, 3"); a("s_cbranch_scc1 %s" % nq)
            self.q_loads()
            a.label(nq)
        for half in range(2):
            if "nopf1" not in self.opt:
                a("buffer_load_dword v15, v224, s[%d:%d], 0 offen" % (RC, RC + 3))
                a("v_add_u32 v224, %d, v224" % (64 * 7168))
            rd = reads(1 - half, 64 * (half + 1)); mf = mfmas(half)
            k = 0
            for i, m in enumerate(mf):
                a(m)
                if i % 2 == 0 and k < len(rd): a(rd[k]); k += 1
                if True:
                    if i == 33: a("buffer_store_dwordx4 a[%d:%d], v10, s[%d:%d], s59 offen sc1" % (SENT, SENT + 3, RE, RE + 3))
                    if i == 35: a("s_add_u32 s59, s59, 1024")
            a("s_waitcnt lgkmcnt(0)")
        a("v_add_u32 v12, 128, v12"); a("v_add_u32 v14, 128, v14")
        a("s_sub_u32 s58, s58, 1"); a("s_cmp_lg_u32 s58, 0"); a("s_cbranch_scc1 %s" % loop)
        self.mark(5)
        a("s_nop 7")
        for tau in range(8):
            t = ACC + 4 * tau; P = 16 + 8 * (tau & 1)
            a("v_cvt_pk_bf16_f32 v%d, v%d, v%d" % (P, t, t + 2)); a("v_cvt_pk_bf16_f32 v%d, v%d, v%d" % (P + 1, t + 1, t + 3))
            a("s_nop 1")
            a("v_mov_b32_dpp v%d, v%d quad_perm:[1,0,3,2] row_mask:0xf bank_mask:0xf" % (P + 2, P))
            a("v_mov_b32_dpp v%d, v%d quad_perm:[1,0,3,2] row_mask:0xf bank_mask:0xf" % (P + 3, P + 1))
            a("v_perm_b32 v%d, v%d, v%d, v226" % (P + 4, P + 2, P)); a("v_perm_b32 v%d, v%d, v%d, v226" % (P + 5, P + 3, P + 1))
            off = tau * (32 * 64 + 8 * 16)
            a("ds_write_b32 v227, v%d offset:%d" % (P + 4, off)); a("ds_write_b32 v227, v%d offset:%d" % (P + 5, off + 16))
        a("s_waitcnt lgkmcnt(0)")
        a("s_barrier")
        for i in range(4):
            a("ds_read_b128 v[%d:%d], v228 offset:%d" % (16 + 4 * i, 19 + 4 * i, i * (64 * 64 + 16 * 16)))
        for i in range(4):
            a("s_mov_b32 s58, %d" % (i * 64 * 16384))
            a("s_waitcnt lgkmcnt(%d)" % (3 - i))
            a("buffer_store_dwordx4 v[%d:%d], v229, s[%d:%d], s58 offen sc1" % (16 + 4 * i, 19 + 4 * i, RB, RB + 3))
        self.arrive(["s_and_b32 s58, s2, 15", "s_lshl_b32 s58, s58, 7", "s_add_u32 s60, s58, %d" % (C2 * 128),
                     "v_lshlrev_b32 v7, 11, v2", "v_add_u32 v7, s60, v7"], nlanes=16)
        self.mark(6)

    def shadow(self):
        a = self.a
        T = 104
        a("s_and_b32 s83, s%d, 7" % S_J); a("s_lshr_b32 s59, s%d, 3" % S_J)
        a("s_lshl_b32 s72, s%d, 2" % S_X); a("s_add_u32 s72, s72, s59")
        a("s_lshl_b32 s73, s83, 4"); a("s_lshl_b32 s59, s%d, 2" % S_WAVE); a("s_add_u32 s73, s73, s59")
        a("s_mul_i32 s74, s%d, 7168" % S_WAVE)
        a("s_mov_b32 s75, 0"); a("s_mov_b32 s76, 0"); a("s_mov_b32 s77, 0"); a("s_mov_b32 s78, 0")
        a("s_and_b32 s58, s%d, 1" % S_WAVE); a("s_lshl_b32 s58, s58, 5")
        a("s_mul_i32 s59, s72, 224")
        a("s_mov_b32 s62, 4682"); a("s_mov_b32 s63, 7168")
        a("s_and_b32 s101, s72, 1"); a("s_lshl_b32 s101, s101, 1")
        for i in range(7):
            a("v_add_u32 v%d, %d, v2" % (T, 64 * i))
            a("v_mul_u32_u24 v%d, s62, v%d" % (T + 1, T)); a("v_lshrrev_b32 v%d, 16, v%d" % (T + 1, T + 1))
            a("v_mul_u32_u24 v%d, 14, v%d" % (T + 2, T + 1)); a("v_sub_u32 v%d, v%d, v%d" % (T + 2, T, T + 2))
            a("v_add_u32 v%d, s101, v%d" % (T + 2, T + 2)); a("v_subrev_u32 v%d, 14, v%d" % (T + 4, T + 2)); a("v_min_u32 v%d, v%d, v%d" % (T + 2, T + 2, T + 4))
            a("v_bfe_u32 v%d, v%d, 2, 2" % (T + 3, T + 1)); a("v_lshlrev_b32 v%d, 3, v%d" % (T + 3, T + 3))
            a("v_lshrrev_b32 v%d, 4, v%d" % (T + 4, T + 1)); a("v_lshl_add_u32 v%d, v%d, 2, v%d" % (T + 3, T + 4, T + 3))
            a("v_and_b32 v%d, 3, v%d" % (T + 4, T + 1)); a("v_add3_u32 v%d, v%d, v%d, s58" % (T + 3, T + 3, T + 4))
            a("v_mul_u32_u24 v%d, s63, v%d" % (T + 3, T + 3))
            a("v_lshl_add_u32 v%d, v%d, 4, v%d" % (T + 3, T + 2, T + 3))
            a("v_add_u32 v%d, s59, v%d" % (T + 3, T + 3))
            if i & 3: a("v_subrev_u32 v%d, %d, v%d" % (T + 3, 1024 * (i & 3), T + 3))
            self.stash("g1w%d" % i, T + 3)
        a("v_lshlrev_b32 v%d, 4, v2" % T)
        a("s_lshl_b32 s58, s73, 15"); a("v_add_u32 v%d, s58, v%d" % (T + 1, T)); self.stash("g1t", T + 1)
        a("v_lshrrev_b32 v%d, 2, v2" % (T + 1)); a("v_mul_u32_u24 v%d, 224, v%d" % (T + 1, T + 1))
        a("v_and_b32 v%d, 3, v2" % (T + 2)); a("v_lshl_add_u32 v%d, v%d, 3, v%d" % (T + 1, T + 2, T + 1)); self.stash("g1f", T + 1)
        a("v_and_b32 v%d, 15, v2" % (T + 1)); a("v_lshlrev_b32 v%d, 4, v%d" % (T + 1, T + 1)); a("v_lshrrev_b32 v%d, 5, v2" % (T + 2))
        a("v_lshl_add_u32 v%d, v%d, 8, v%d" % (T + 1, T + 2, T + 1)); a("v_bfe_u32 v%d, v2, 4, 1" % (T + 2))
        a("v_lshl_add_u32 v%d, v%d, 9, v%d" % (T + 3, T + 2, T + 1)); self.stash("g1ep", T + 3)
        a("v_mul_u32_u24 v%d, %d, v%d" % (T + 2, 112 * 1024, T + 2)); a("v_add_u32 v%d, v%d, v%d" % (T + 3, T + 2, T + 1)); self.stash("g1es", T + 3)
        a("s_and_b32 s86, s%d, 1" % S_X)
        a("s_bfe_u32 s58, s%d, 0x10001" % S_X); a("s_lshl_b32 s58, s58, 3"); a("s_and_b32 s59, s%d, 7" % S_J); a("s_add_u32 s84, s58, s59")
        a("s_lshr_b32 s58, s%d, 2" % S_X); a("s_lshl_b32 s58, s58, 2"); a("s_lshr_b32 s59, s%d, 3" % S_J); a("s_add_u32 s85, s58, s59")
        a("s_lshl_b32 s87, s84, 3"); a("s_lshl_b32 s58, s%d, 1" % S_WAVE); a("s_add_u32 s87, s87, s58")
        a("s_mul_i32 s58, s86, 1792"); a("s_lshr_b32 s59, s%d, 1" % S_WAVE); a("s_mul_i32 s59, s59, %d" % (32 if "x2nat" in self.opt else 224)); a("s_add_u32 s58, s58, s59")
        a("s_lshl_b32 s58, s58, 11")
        a("s_lshl_b32 s59, s85, 8"); a("s_add_u32 s58, s58, s59")
        a("s_and_b32 s59, s%d, 1" % S_WAVE); a("s_xor_b32 s59, s59, s86"); a("s_lshl_b32 s59, s59, 7"); a("s_add_u32 s58, s58, s59")
        a("v_lshrrev_b32 v%d, 5, v2" % T); a("v_lshlrev_b32 v%d, 3, v%d" % (T, T)); a("v_bfe_u32 v%d, v2, 3, 2" % (T + 1))
        a("v_add_u32 v%d, v%d, v%d" % (T, T, T + 1)); a("v_lshlrev_b32 v%d, 11, v%d" % (T, T))
        a("v_bfe_u32 v%d, v2, 4, 2" % (T + 1)); a("v_lshlrev_b32 v%d, 1, v%d" % (T + 1, T + 1)); a("v_and_b32 v%d, 7, v2" % (T + 2))
        a("v_xor_b32 v%d, v%d, v%d" % (T + 1, T + 1, T + 2))
        a("v_lshl_add_u32 v%d, v%d, 4, v%d" % (T, T + 1, T)); a("v_add_u32 v%d, s58, v%d" % (T, T)); self.stash("g2w", T)
        a("v_lshrrev_b32 v%d, 2, v2" % T); a("v_lshlrev_b32 v%d, 7, v%d" % (T, T))
        a("v_and_b32 v%d, 3, v2" % (T + 1)); a("v_lshl_add_u32 v%d, v%d, 3, v%d" % (T, T + 1, T))
        a("v_bfe_u32 v%d, v2, 3, 2" % (T + 1))
        for c in range(4):
            a("v_xor_b32 v%d, %d, v%d" % (T + 2, c, T + 1)); a("v_lshl_add_u32 v%d, v%d, 5, v%d" % (T + 2, T + 2, T)); self.stash("g2f%d" % c, T + 2)
        a("s_lshl_b32 s88, s%d, 12" % S_WAVE)
        a("v_lshlrev_b32 v%d, 4, v2" % T)
        a("s_mul_i32 s58, s87, %d" % (112 * 1024)); a("s_mul_i32 s59, s86, %d" % (56 * 1024)); a("s_add_u32 s58, s58, s59")
        a("v_add_u32 v%d, s58, v%d" % (T + 1, T)); self.stash("g2t0", T + 1)
        a("v_add_u32 v%d, %d, v%d" % (T + 1, 112 * 1024, T + 1)); self.stash("g2t1", T + 1)
        a("v_and_b32 v%d, 15, v2" % T); a("v_lshlrev_b32 v%d, 11, v%d" % (T, T))
        a("v_lshrrev_b32 v%d, 4, v2" % (T + 1)); a("v_lshl_add_u32 v%d, v%d, 3, v%d" % (T, T + 1, T))
        a("s_lshl_b32 s58, s87, 15"); a("s_lshl_b32 s59, s85, 8"); a("s_add_u32 s58, s58, s59"); a("s_lshl_b32 s59, s86, 7"); a("s_add_u32 s58, s58, s59")
        a("v_add_u32 v%d, s58, v%d" % (T, T)); self.stash("g2o", T)
        a("v_and_b32 v%d, 15, v2" % T); a("v_lshlrev_b32 v%d, 11, v%d" % (T, T))
        a("v_bfe_u32 v%d, v2, 4, 1" % (T + 1)); a("v_lshl_add_u32 v%d, v%d, 5, v%d" % (T, T + 1, T))
        a("v_lshrrev_b32 v%d, 5, v2" % (T + 1)); a("v_lshl_add_u32 v%d, v%d, 4, v%d" % (T, T + 1, T))
        a("v_add_u32 v%d, s58, v%d" % (T, T)); self.stash("g2o4", T)
        for i in range(4): a("v_accvgpr_write_b32 a%d, -1" % (SENT + i))
        a("v_lshrrev_b32 v%d, 2, v2" % T); a("v_lshrrev_b32 v%d, 1, v%d" % (T + 1, T)); a("v_and_b32 v%d, 1, v%d" % (T, T))
        a("v_lshl_add_u32 v%d, v%d, 2, v%d" % (T, T, T + 1))
        if "rot2" in self.opt:
            a("s_lshr_b32 s58, s%d, 3" % S_J); a("s_add_u32 s58, s58, s%d" % S_J); a("v_add_u32 v%d, s58, v2" % (T + 1)); a("v_and_b32 v%d, 3, v%d" % (T + 1, T + 1))
        elif "rot2b" in self.opt:
            a("v_add_u32 v%d, s%d, v2" % (T + 1, S_J)); a("v_and_b32 v%d, 3, v%d" % (T + 1, T + 1))
        elif "rot2c" in self.opt:
            a("s_lshr_b32 s58, s%d, 3" % S_J); a("v_add_u32 v%d, s58, v2" % (T + 1)); a("v_and_b32 v%d, 3, v%d" % (T + 1, T + 1))
        else:
            a("v_and_b32 v%d, 3, v2" % (T + 1))
        a("v_mad_u32_u24 v%d, v%d, 14, v%d" % (T, T + 1, T))
        if "x2nat" in self.opt: a("v_lshlrev_b32 v%d, 1, v2" % T)
        a("v_lshlrev_b32 v%d, 16, v%d" % (T, T)); self.stash("g2tab", T)
        for t in range(4): a("v_readlane_b32 s%d, v%d, %d" % (G2_ROW[t], T, t))
        a("s_lshl_b32 s58, s83, 1"); a("s_lshr_b32 s59, s72, 4"); a("s_add_u32 s58, s58, s59"); a("s_lshl_b32 s58, s58, 2"); a("s_add_u32 s58, s58, s%d" % S_WAVE)
        a("s_lshl_b32 s58, s58, 8"); a("s_add_u32 s58, s58, %d" % (C4 * 128))
        a("v_lshlrev_b32 v%d, 7, v2" % T); a("v_add_u32 v%d, s58, v%d" % (T, T)); a("v_mov_b32 v%d, 0x7fffff00" % (T + 1))
        a("v_cmp_gt_u32 vcc, 2, v2"); a("s_nop 1"); a("v_cndmask_b32 v%d, v%d, v%d, vcc" % (T, T + 1, T)); self.stash("c4a", T)
        a("s_lshr_b32 s58, s84, 1"); a("s_lshl_b32 s58, s58, 1"); a("s_add_u32 s58, s58, s86"); a("s_lshl_b32 s58, s58, 2")
        a("s_and_b32 s59, s84, 1"); a("s_lshl_b32 s59, s59, 1"); a("s_add_u32 s58, s58, s59"); a("s_lshr_b32 s59, s%d, 1" % S_WAVE); a("s_add_u32 s58, s58, s59")
        a("s_lshl_b32 s58, s58, 1"); a("s_lshr_b32 s59, s%d, 2" % S_X); a("s_add_u32 s58, s58, s59"); a("s_lshl_b32 s58, s58, 7"); a("s_add_u32 s58, s58, %d" % (C4 * 128))
        a("v_mov_b32 v%d, s58" % T); self.stash("c4p", T)
        a("v_mov_b32 v%d, 0x7fffffff" % (T + 3))
        a("s_lshl_b32 s58, s%d, 1" % S_J); a("s_and_b32 s59, s%d, 1" % S_WAVE); a("s_add_u32 s58, s58, s59")
        a("s_mul_i32 s62, s58, 7168"); a("s_mul_i32 s59, s%d, 896" % S_X); a("s_add_u32 s62, s62, s59")
        a("v_lshlrev_b32 v%d, 7, v2" % T); a("v_add_u32 v%d, s62, v%d" % (T + 1, T))
        a("v_cmp_gt_u32 vcc, 7, v2"); a("s_nop 1"); a("v_cndmask_b32 v224, v%d, v%d, vcc" % (T + 3, T + 1))
        if self.pffast:
            a("s_and_b32 s58, s%d, 7" % S_J); a("s_lshr_b32 s62, s%d, 4" % S_J); a("s_lshl_b32 s62, s62, 3"); a("s_add_u32 s100, s58, s62")
            a("s_lshl_b32 s58, s100, 1"); a("s_and_b32 s62, s%d, 1" % S_WAVE); a("s_add_u32 s58, s58, s62")
        a("s_lshl_b32 s58, s58, 2"); a("s_add_u32 s58, s58, 512"); a("s_mul_i32 s58, s58, 7168"); a("s_add_u32 s58, s58, s59")
        a("s_mov_b32 s62, 9363")
        a("v_mul_u32_u24 v%d, s62, v2" % T); a("v_lshrrev_b32 v%d, 16, v%d" % (T, T))
        a("v_mul_u32_u24 v%d, 7, v%d" % (T + 1, T)); a("v_sub_u32 v%d, v2, v%d" % (T + 1, T + 1))
        a("v_mul_u32_u24 v%d, 7168, v%d" % (T, T)); a("v_lshl_add_u32 v%d, v%d, 7, v%d" % (T, T + 1, T)); a("v_add_u32 v%d, s58, v%d" % (T, T))
        a("v_cmp_gt_u32 vcc, 28, v2"); a("s_nop 1"); a("v_cndmask_b32 v%d, v%d, v%d, vcc" % (T, T + 3, T)); self.stash("pfw", T)
        a("s_lshl_b32 s58, s%d, 2" % (100 if self.pffast else S_J)); a("s_add_u32 s58, s58, s%d" % S_WAVE); a("s_mul_i32 s58, s58, 5"); a("s_add_u32 s58, s58, 1152")
        a("s_mul_i32 s59, s86, 1792"); a("s_add_u32 s58, s58, s59"); a("s_lshl_b32 s58, s58, 11")
        a("s_lshr_b32 s59, s85, 2"); a("s_lshl_b32 s59, s59, 10"); a("s_add_u32 s58, s58, s59")
        a("v_lshrrev_b32 v%d, 3, v2" % T); a("v_lshlrev_b32 v%d, 11, v%d" % (T, T)); a("v_and_b32 v%d, 7, v2" % (T + 1))
        a("v_lshl_add_u32 v%d, v%d, 7, v%d" % (T, T + 1, T)); a("v_add_u32 v%d, s58, v%d" % (T, T))
        a("v_cmp_gt_u32 vcc, 40, v2"); a("s_nop 1"); a("v_cndmask_b32 v%d, v%d, v%d, vcc" % (T, T + 3, T)); self.stash("pfd", T)
        if self.pffast:
            a("s_and_b32 s92, s%d, 1" % S_J)
            a("s_lshr_b32 s58, s%d, 3" % S_J); a("s_add_u32 s58, s58, 1"); a("s_and_b32 s58, s58, 2"); a("s_or_b32 s92, s92, s58")
        else:
            a("s_and_b32 s92, s%d, 3" % S_J)
        a("v_and_b32 v%d, 1, v2" % T); a("v_lshrrev_b32 v%d, 1, v2" % (T + 1))
        a("v_lshlrev_b32 v%d, 11, v%d" % (T + 2, T)); a("v_lshl_add_u32 v%d, v%d, 4, v%d" % (T + 2, T + 1, T + 2)); self.stash("lnh", T + 2)
        a("s_lshl_b32 s58, s%d, 4" % S_WAVE); a("s_add_u32 s58, s58, %d" % PSTG)
        a("v_lshlrev_b32 v%d, 6, v2" % (T + 2)); a("v_add_u32 v%d, s58, v%d" % (T + 2, T + 2)); self.stash("lny", T + 2)
        a("s_lshl_b32 s58, s%d, 5" % S_WAVE); a("s_add_u32 s58, s58, %d" % CSTG)
        a("v_lshlrev_b32 v%d, 7, v%d" % (T + 2, T + 1)); a("v_lshl_add_u32 v%d, v%d, 4, v%d" % (T + 2, T, T + 2)); a("v_add_u32 v%d, s58, v%d" % (T + 2, T + 2))
        self.stash("lnw", T + 2)
        a("v_lshlrev_b32 v%d, 4, v0" % (T + 2)); a("v_add_u32 v%d, %d, v%d" % (T + 2, CSTG, T + 2)); self.stash("lnr", T + 2)
        a("v_lshrrev_b32 v%d, 5, v0" % (T + 2)); a("v_lshlrev_b32 v%d, 10, v%d" % (T + 2, T + 2))
        a("v_bfe_u32 v%d, v0, 3, 2" % (T + 3)); a("v_lshl_add_u32 v%d, v%d, 8, v%d" % (T + 2, T + 3, T + 2))
        a("v_and_b32 v%d, 7, v0" % (T + 3)); a("v_lshl_add_u32 v%d, v%d, 4, v%d" % (T + 2, T + 3, T + 2)); self.stash("lng", T + 2)
        a("v_and_b32 v%d, 1, v2" % T)
        a("v_mov_b32 v226, 0x05040100"); a("v_mov_b32 v%d, 0x03020706" % (T + 1))
        a("v_cmp_eq_u32 vcc, 1, v%d" % T); a("s_nop 1"); a("v_cndmask_b32 v226, v226, v%d, vcc" % (T + 1))
        a("v_bfe_u32 v%d, v2, 1, 3" % (T + 1)); a("v_lshrrev_b32 v%d, 4, v2" % (T + 2))
        a("v_mul_u32_u24 v227, 272, v%d" % (T + 1)); a("v_lshl_add_u32 v227, v%d, 6, v227" % (T + 2)); a("v_lshl_add_u32 v227, v%d, 5, v227" % T)
        a("s_lshl_b32 s58, s%d, 2" % S_WAVE); a("s_add_u32 s58, s58, %d" % CSTG); a("v_add_u32 v227, s58, v227")
        a("v_lshrrev_b32 v%d, 2, v0" % T); a("v_and_b32 v%d, 3, v0" % (T + 1)); a("v_lshrrev_b32 v%d, 4, v0" % (T + 2))
        a("v_lshlrev_b32 v228, 6, v%d" % T); a("v_lshl_add_u32 v228, v%d, 4, v228" % (T + 2)); a("v_lshl_add_u32 v228, v%d, 4, v228" % (T + 1))
        a("v_add_u32 v228, %d, v228" % CSTG)
        a("v_lshlrev_b32 v229, 14, v%d" % T); a("v_lshl_add_u32 v229, v%d, 4, v229" % (T + 1)); a("s_lshl_b32 s58, s65, 6"); a("v_add_u32 v229, s58, v229")

    def g1_setup(self):
        a = self.a
        a("s_cmp_lt_u32 s%d, 2" % S_WAVE)
        a("s_cselect_b32 s%d, s%d, s%d" % (RA, P_WG, P_WU)); a("s_cselect_b32 s%d, s%d, s%d" % (RA + 1, P_WG + 1, P_WU + 1))
        a("s_and_b32 s%d, s%d, 0xffff" % (RA + 1, RA + 1)); a("s_mov_b32 s%d, %d" % (RA + 2, 1024 * 7168)); a("s_mov_b32 s%d, 0x00020000" % (RA + 3))
        for i in range(7): self.unstash("g1w%d" % i, 8 + i)
        self.in_srd(RE, P_WD, 3584 * 2048)
    def g1_wload_list(self):
        L = []
        for st in range(3):
            L.append("s_add_u32 m0, s75, s74")
            for i in range(7):
                if i == 4: L.append("s_add_u32 m0, m0, 4096")
                L.append(self.g1_dma(i))
            L.append("s_add_u32 s77, s77, %d" % (64 * 7168)); L.append("s_add_u32 s75, s75, %d" % G1_STAGE)
        return L
    def merged(self, body, fillers, start=0):
        keep = self.a; tmp = Asm(); tmp.uid = keep.uid + 1000; self.a = tmp
        body()
        self.a = keep; keep.uid = tmp.uid
        lines = tmp.lines
        n = max(1, (len(lines) - start) // (len(fillers) + 1))
        k = 0
        for i, l in enumerate(lines):
            keep.lines.append(l)
            if i >= start and (i - start) % n == n - 1 and k < len(fillers): keep(fillers[k]); k += 1
        for x in fillers[k:]: keep("s_nop 0"); keep(x)
    def g1_dma(self, i):
        fl = "nt" if "g1nt" in self.opt else "sc1" if "g1sc1" in self.opt else ""
        return "buffer_load_dwordx4 v%d, s[%d:%d], s77 offen offset:%d %s lds" % (8 + i, RA, RA + 3, 1024 * (i & 3), fl)
    def g1_wload_all(self):
        a = self.a
        a("s_add_u32 m0, s75, s74"); a("s_nop 0")
        for i in range(7):
            if i == 4: a("s_add_u32 m0, m0, 4096"); a("s_nop 0")
            a(self.g1_dma(i))
        a("s_add_u32 s77, s77, %d" % (64 * 7168)); a("s_add_u32 s75, s75, %d" % G1_STAGE)

    def reduce4(self, regs, sdst):
        a = self.a
        def step(mod):
            for r in regs: a("v_add_f32_dpp v%d, v%d, v%d %s" % (r, r, r, mod))
        a("s_nop 1")
        step("quad_perm:[1,0,3,2] row_mask:0xf bank_mask:0xf"); step("quad_perm:[2,3,0,1] row_mask:0xf bank_mask:0xf")
        step("row_half_mirror row_mask:0xf bank_mask:0xf"); step("row_mirror row_mask:0xf bank_mask:0xf")
        step("row_bcast:15 row_mask:0xa bank_mask:0xf"); step("row_bcast:31 row_mask:0xc bank_mask:0xf")
        a("s_nop 0")
        for r, s in zip(regs, sdst): a("v_readlane_b32 s%d, v%d, 63" % (s, r))
    def ln_scalars(self, sS, T):
        a = self.a
        t0, t1, t2, t3, t4, t5 = T + 8, T + 9, T + 10, T + 11, T + 12, T + 13
        M = S_MASK
        a("s_nop 1")
        a("v_mul_f32 v%d, s%d, v%d" % (t0, sS[0], T + 14)); a("v_mul_f32 v%d, s%d, v%d" % (t1, sS[2], T + 14))
        a("v_mul_f32 v%d, s%d, v%d" % (t2, sS[1], T + 14)); a("v_mul_f32 v%d, s%d, v%d" % (t3, sS[3], T + 14))
        a("v_fma_f32 v%d, -v%d, v%d, v%d" % (t2, t0, t0, t2)); a("v_fma_f32 v%d, -v%d, v%d, v%d" % (t3, t1, t1, t3))
        a("v_max_f32 v%d, 0, v%d" % (t2, t2)); a("v_max_f32 v%d, 0, v%d" % (t3, t3))
        a("v_cvt_pk_bf16_f32 v%d, v%d, v%d" % (t4, t0, t1)); a("v_cvt_pk_bf16_f32 v%d, v%d, v%d" % (t5, t2, t3))
        a("v_lshlrev_b32 v%d, 16, v%d" % (t0, t4)); a("v_and_b32 v%d, s%d, v%d" % (t1, M, t4))
        a("v_lshlrev_b32 v%d, 16, v%d" % (t2, t5)); a("v_and_b32 v%d, s%d, v%d" % (t3, M, t5))
        a("v_add_f32 v%d, s%d, v%d" % (t2, S_EPS, t2)); a("v_add_f32 v%d, s%d, v%d" % (t3, S_EPS, t3))
        a("v_cvt_pk_bf16_f32 v%d, v%d, v%d" % (t5, t2, t3))
        a("v_lshlrev_b32 v%d, 16, v%d" % (t2, t5)); a("v_and_b32 v%d, s%d, v%d" % (t3, M, t5))
        a("v_sqrt_f32 v%d, v%d" % (t2, t2)); a("v_sqrt_f32 v%d, v%d" % (t3, t3)); a("s_nop 0")
        a("v_cvt_pk_bf16_f32 v%d, v%d, v%d" % (t5, t2, t3))
        a("v_lshlrev_b32 v%d, 16, v%d" % (t2, t5)); a("v_and_b32 v%d, s%d, v%d" % (t3, M, t5))
        a("v_rcp_f32 v%d, v%d" % (T + 0, t2)); a("v_rcp_f32 v%d, v%d" % (T + 4, t3)); a("s_nop 0")
        a("v_mul_f32 v%d, v%d, v%d" % (T + 2, t0, T + 0)); a("v_mul_f32 v%d, v%d, v%d" % (T + 6, t1, T + 4))
        a("v_sub_f32 v%d, 0, v%d" % (T + 2, T + 2)); a("v_sub_f32 v%d, 0, v%d" % (T + 6, T + 6))
    def stats(self, X, acc):
        a = self.a
        for tok in range(2):
            b = X + 16 * tok; S = acc + 4 * tok; Q = S + 2
            a("v_pk_add_f32 v[%d:%d], v[%d:%d], v[%d:%d]" % (S, S + 1, b, b + 1, b + 2, b + 3))
            a("v_pk_mul_f32 v[%d:%d], v[%d:%d], v[%d:%d]" % (Q, Q + 1, b, b + 1, b, b + 1))
        for p in range(1, 8):
            for tok in range(2):
                b = X + 16 * tok + 2 * p; S = acc + 4 * tok; Q = S + 2
                if p >= 2: a("v_pk_add_f32 v[%d:%d], v[%d:%d], v[%d:%d]" % (S, S + 1, S, S + 1, b, b + 1))
                a("v_pk_fma_f32 v[%d:%d], v[%d:%d], v[%d:%d], v[%d:%d]" % (Q, Q + 1, b, b + 1, b, b + 1, Q, Q + 1))
        for r in (0, 2, 4, 6): a("v_add_f32 v%d, v%d, v%d" % (acc + r, acc + r, acc + r + 1))
    def ln(self):
        a = self.a
        M = S_MASK
        X, L1, Y, YR, HP, ACC, T = 32, 64, 96, 128, 144, 160, 168
        LP, U = 128, 96
        def ln1():
            a = self.a
            a("v_mov_b32 v%d, 0x3a800000" % (T + 14))
            for tok in range(2):
                for p in range(8):
                    dst = X + 16 * tok + 2 * p
                    a("v_accvgpr_read_b32 v3, a%d" % (160 + 8 * tok + p))
                    a("v_lshlrev_b32 v%d, 16, v3" % dst); a("v_and_b32 v%d, s%d, v3" % (dst + 1, M))
            self.stats(X, ACC)
            self.reduce4([ACC, ACC + 2, ACC + 4, ACC + 6], [60, 61, 62, 63])
            self.ln_scalars([60, 61, 62, 63], T)
            for tok in range(2):
                r, c = T + 4 * tok, T + 4 * tok + 2
                for p in range(8):
                    x = X + 16 * tok + 2 * p; l = L1 + 16 * tok + 2 * p
                    a("v_pk_fma_f32 v[%d:%d], v[%d:%d], v[%d:%d], v[%d:%d] op_sel_hi:[1,0,0]" % (l, l + 1, x, x + 1, r, r + 1, c, c + 1))
        self.merged(ln1, self.g1_wload_list())
        self.ws_srd(RB, WS_YB, 4194304); self.ws_srd(RC, WS_H, 4194304); self.ws_srd(RD, WS_LN2, 4194304)
        a("v_lshlrev_b32 v24, 4, v2")
        self.unstash("lnh", 4); self.unstash("lny", 5); self.unstash("lnw", 16); self.unstash("lnr", 17); self.unstash("lng", 18)
        a("s_lshl_b32 s61, s%d, 12" % S_WAVE); a("s_lshl_b32 s62, s2, 14"); a("s_add_u32 s62, s62, s61")
        a("s_add_u32 s61, s61, %d" % PSTG)
        a("s_and_b32 s60, s2, 15"); a("s_lshl_b32 s60, s60, 11"); a("s_add_u32 s60, s60, %d" % (C2 * 128))
        self.mark(7)
        self.wait(60, 16, 16)
        self.mark(8)
        a("s_mov_b32 m0, s61"); a("s_nop 0")
        for i in range(4):
            a("buffer_load_dwordx4 v24, s[%d:%d], s62 offen offset:%d lds" % (RB, RB + 3, 1024 * i))
        a("s_waitcnt vmcnt(0)")
        a("s_barrier")
        for i in range(4):
            a("ds_read_b128 v[%d:%d], v5 offset:%d" % (YR + 4 * i, YR + 4 * i + 3, 4096 * i))
        for i in range(4):
            a("s_waitcnt lgkmcnt(%d)" % (3 - i))
            for c in range(4):
                a("v_lshlrev_b32 v%d, 16, v%d" % (Y + 4 * i + c, YR + 4 * i + c)); a("v_and_b32 v%d, s%d, v%d" % (Y + 16 + 4 * i + c, M, YR + 4 * i + c))
        for tok in range(2):
            for p in range(8):
                x = X + 16 * tok + 2 * p; y = Y + 16 * tok + 2 * p; l = L1 + 16 * tok + 2 * p
                a("v_pk_fma_f32 v[%d:%d], v[%d:%d], v[%d:%d], v[%d:%d]" % (l, l + 1, l, l + 1, y, y + 1, x, x + 1))
                a("v_cvt_pk_bf16_f32 v%d, v%d, v%d" % (HP + 8 * tok + p, l, l + 1))
        HU = 184
        a("s_mov_b32 vcc_lo, 0x55555555"); a("s_mov_b32 vcc_hi, 0x55555555"); a("s_nop 1")
        for i in range(4):
            for d in range(2):
                a("v_cndmask_b32_dpp v%d, v%d, v%d, vcc quad_perm:[1,0,3,2] row_mask:0xf bank_mask:0xf" % (HU + 4 * i + d, HP + 8 + 2 * i + d, HP + 2 * i + d))
        a("s_mov_b32 vcc_lo, 0xaaaaaaaa"); a("s_mov_b32 vcc_hi, 0xaaaaaaaa"); a("s_nop 1")
        for i in range(4):
            for d in range(2):
                a("v_cndmask_b32_dpp v%d, v%d, v%d, vcc quad_perm:[1,0,3,2] row_mask:0xf bank_mask:0xf" % (HU + 4 * i + 2 + d, HP + 2 * i + d, HP + 8 + 2 * i + d))
        for i in range(4):
            a("buffer_store_dwordx4 v[%d:%d], v4, s[%d:%d], s70 offen offset:%d sc1" % (HU + 4 * i, HU + 4 * i + 3, RC, RC + 3, 512 * i))
        for tok in range(2):
            for p in range(8):
                src = HP + 8 * tok + p; dst = X + 16 * tok + 2 * p
                a("v_lshlrev_b32 v%d, 16, v%d" % (dst, src)); a("v_and_b32 v%d, s%d, v%d" % (dst + 1, M, src))
        self.stats(X, ACC)
        self.reduce4([ACC, ACC + 2, ACC + 4, ACC + 6], [60, 61, 62, 63])
        self.ln_scalars([60, 61, 62, 63], T)
        for tok in range(2):
            r, c = T + 4 * tok, T + 4 * tok + 2
            for p in range(8):
                x = X + 16 * tok + 2 * p
                a("v_pk_fma_f32 v[%d:%d], v[%d:%d], v[%d:%d], v[%d:%d] op_sel_hi:[1,0,0]" % (ACC, ACC + 1, x, x + 1, r, r + 1, c, c + 1))
                a("v_cvt_pk_bf16_f32 v%d, v%d, v%d" % (LP + 8 * tok + p, ACC, ACC + 1))
        a("s_mov_b32 vcc_lo, 0x55555555"); a("s_mov_b32 vcc_hi, 0x55555555"); a("s_nop 1")
        for i in range(4):
            for d in range(2):
                a("v_cndmask_b32_dpp v%d, v%d, v%d, vcc quad_perm:[1,0,3,2] row_mask:0xf bank_mask:0xf" % (U + 4 * i + d, LP + 8 + 2 * i + d, LP + 2 * i + d))
        a("s_mov_b32 vcc_lo, 0xaaaaaaaa"); a("s_mov_b32 vcc_hi, 0xaaaaaaaa"); a("s_nop 1")
        for i in range(4):
            for d in range(2):
                a("v_cndmask_b32_dpp v%d, v%d, v%d, vcc quad_perm:[1,0,3,2] row_mask:0xf bank_mask:0xf" % (U + 4 * i + 2 + d, LP + 2 * i + d, LP + 8 + 2 * i + d))
        for i in range(4):
            a("ds_write_b128 v16, v[%d:%d] offset:%d" % (U + 4 * i, U + 4 * i + 3, 4096 * i))
        a("s_lshr_b32 s58, s2, 1"); a("s_lshl_b32 s58, s58, 15"); a("s_and_b32 s59, s2, 1"); a("s_lshl_b32 s59, s59, 7"); a("s_add_u32 s58, s58, s59")
        a("s_waitcnt lgkmcnt(0)")
        a("s_barrier")
        for i in range(4):
            a("ds_read_b128 v[%d:%d], v17 offset:%d" % (LP + 4 * i, LP + 4 * i + 3, 4096 * i))
        for i in range(4):
            a("s_add_u32 s59, s58, %d" % (8192 * i))
            a("s_waitcnt lgkmcnt(%d)" % (3 - i))
            a("buffer_store_dwordx4 v[%d:%d], v18, s[%d:%d], s59 offen sc1" % (LP + 4 * i, LP + 4 * i + 3, RD, RD + 3))
        self.mark(9)
        self.unstash("g1t", 20); self.unstash("g1f", 15); self.unstash("g2w", 25)
        for c in range(4): self.unstash("g2f%d" % c, 26 + c)
        self.unstash("pfd", 30); self.unstash("pfw", 31)
        for tt in range(1, 4): a("v_add_u32 v%d, %d, v20" % (20 + tt, 32768 * tt))
        self.arrive(["s_lshr_b32 s58, s2, 5", "s_lshl_b32 s58, s58, 4", "s_and_b32 s59, s2, 1", "s_add_u32 s58, s58, s59", "s_lshl_b32 s58, s58, 7",
                     "s_add_u32 s60, s58, %d" % (C3 * 128), "v_lshlrev_b32 v7, 8, v2", "v_add_u32 v7, s60, v7"], nlanes=8)
        self.mark(10)

    def g2_dma(self, i, soff):
        fl = "nt" if "g2nt" in self.opt else "sc1" if "g2sc1" in self.opt else ""
        return "buffer_load_dwordx4 v%d, s[%d:%d], s%d offen offset:%d %s lds" % (8 + i, RE, RE + 3, soff, 1024 * i, fl)
    def g2_voffs(self):
        return ["v_add_u32 v%d, %d, v25" % (8 + i, 2048 * (16 * (i & 1) + 4 * (i >> 1)) - 1024 * i) for i in range(4)]

    def gemm1(self):
        a = self.a
        ACC, TOK, WF, PD = 32, 0, 128, 5
        def acc(ct, tt): return ACC + (ct * 4 + tt) * 4
        def wreg(F): return WF + 4 * (F % 7)
        def lreg(F):
            return 4 * F if F < 16 else 160 + 4 * (F - 16) if F < 20 else 204 + 4 * (F - 20)
        def foff(F, jh):
            kk, ct = F // 14, F % 14
            return (ct // 7) * 14336 + kk * 7168 + jh * 3584 + (ct % 7) * 32
        def tokload(slot, j):
            kk, tt = j >> 2, j & 3
            r = TOK + 32 * slot + 16 * kk + 4 * tt
            fl = "nt" if "g1tnt" in self.opt else "" if "g1tpl" in self.opt else "sc1"
            return "buffer_load_dwordx4 a[%d:%d], v%d, s[%d:%d], s78 offen offset:%d %s" % (r, r + 3, 20 + tt, RD, RD + 3, 1024 * kk, fl)
        def mfma(c, w, t): return "v_mfma_f32_16x16x32_bf16 v[%d:%d], a[%d:%d], a[%d:%d], v[%d:%d]" % (c, c + 3, w, w + 3, t, t + 3, c, c + 3)
        def dsr(q, tag, reg, addr, off):
            return lambda: (q.issue(tag), "ds_read_b64_tr_b16 a[%d:%d], v%d offset:%d" % (reg, reg + 1, addr, off))[1]
        def emit(x):
            if callable(x): x = x()
            if x: a(x)
        pf = "nopf2" not in self.opt
        npf = 2 if pf else 0
        def pfops():
            return ["buffer_load_dword v7, v30, s[%d:%d], 0 offen" % (RE, RE + 3), "buffer_load_dword v7, v31, s[%d:%d], 0 offen" % (RC, RC + 3)]
        def pfturn(u):
            return ["s_cmp_eq_u32 s92, %d" % (((u + 1) & 1) if self.pffast else u), "s_cselect_b32 s%d, %d, 0" % (RE + 2, 3584 * 2048), "s_cselect_b32 s%d, %d, 0" % (RC + 2, 1024 * 7168)]
        if pf:
            for i in range(4): a("s_mov_b32 s%d, s%d" % (RC + i, RA + i))
            a("s_mov_b32 s%d, 0" % (RC + 2)); a("s_mov_b32 s%d, 0" % (RE + 2))
        self.ws_srd(RB, WS_HH, 128 * 112 * 1024)
        a("s_lshl_b32 s58, s83, 4"); a("s_lshl_b32 s59, s%d, 1" % S_X); a("s_add_u32 s58, s58, s59"); a("s_lshl_b32 s58, s58, 7")
        a("s_add_u32 s60, s58, %d" % (C3 * 128))
        def zero_acc():
            for r in range(32, 256): a("v_mov_b32 v%d, 0" % r)
        self.wait(60, 2, 16, shadow=zero_acc)
        self.mark(11)
        for st in range(3):
            for j in range(8): a(tokload(st, j))
            a("s_add_u32 s78, s78, 2048")
        if pf:
            for op in pfops(): a(op)
        a("v_mov_b32 v16, v15")
        q0 = DSQ()
        for F in range(PD):
            for jh in range(2): emit(dsr(q0, ("c", F, jh), wreg(F) + 2 * jh, 16, foff(F, jh)))
        a("s_waitcnt vmcnt(%d) lgkmcnt(8)" % (16 + npf))
        self.mark(12)

        def stage(u, loads, bwait, q, side=False, first_wait=None, mode="n", adv_end=None, nextf=None):
            pfop = side and pf
            G = [[] for _ in range(112)]
            for F in range(28):
                Fn = F + PD
                if Fn < 28:
                    for jh in range(2): G[4 * F + jh].append(dsr(q, ("c", Fn, jh), wreg(Fn) + 2 * jh, 16, foff(Fn, jh)))
                elif mode == "n":
                    for jh in range(2): G[4 * F + jh].append(dsr(q, ("n", Fn - 28, jh), wreg(Fn) + 2 * jh, 16, (foff(nextf[Fn - 28][0], jh) + nextf[Fn - 28][1]) if nextf else foff(Fn - 28, jh)))
                if mode == "m":
                    for jh in range(2): G[4 * F + 2 + jh].append(dsr(q, ("l", F, jh), lreg(F) + 2 * jh, 17, foff(F, jh)))
                if F < 27: G[4 * F + 3].append(lambda F=F: q.wait(("c", F + 1, 1)))
                elif mode == "n": G[4 * F + 3].append(lambda: q.wait(("n", 0, 1)))
            if loads:
                G[1].append("s_add_u32 m0, s75, s74")
                G[16].append("s_add_u32 m0, m0, 4096")
                vm = [self.g1_dma(i) for i in range(7)] + [tokload((u + 3) % 4, j) for j in range(8)]
                if pfop: vm += pfops()
                for i, x in enumerate(vm): G[4 * i + 2].append(x)
                G[4 * 8].append("s_add_u32 s77, s77, %d" % (64 * 7168))
                G[4 * 9].append("s_add_u32 s75, s75, %d" % G1_STAGE); G[4 * 10].append("s_cmp_eq_u32 s75, %d" % (G1_STAGE * G1_NSLOT))
                G[4 * 11].append("s_cselect_b32 s75, 0, s75")
                G[4 * 16].append("s_add_u32 s78, s78, 2048")
                if pfop:
                    for i, x in enumerate(pfturn(u)): G[4 * (12 + i)].append(x)
                    if self.pffast:
                        if u == 1: G[4 * 17].append("v_add_u32 v30, %d, v30" % (320 * 2048)); G[4 * 18].append("v_add_u32 v31, %d, v31" % (128 * 7168))
                        if u == 3: G[4 * 17].append("v_add_u32 v30, %d, v30" % (-960 * 2048)); G[4 * 18].append("v_add_u32 v31, %d, v31" % (128 * 7168))
                    elif u == 3:
                        G[4 * 17].append("v_add_u32 v30, %d, v30" % (-640 * 2048)); G[4 * 18].append("v_add_u32 v31, %d, v31" % (256 * 7168))
            if mode == "n":
                G[4 * 19].append("s_add_u32 s76, s76, %d" % G1_STAGE); G[4 * 20].append("s_cmp_eq_u32 s76, %d" % (G1_STAGE * G1_NSLOT))
                G[4 * 21].append("s_cselect_b32 s76, 0, s76")
                if first_wait is not None:
                    l = a.new_label("fw")
                    G[4 * 21 + 2].append("s_cmp_lg_u32 s80, 3")
                    G[4 * 22] += ["s_cbranch_scc1 %s" % l, "s_waitcnt vmcnt(%d)" % first_wait, l + ":"]
                G[4 * 22 + 2] += ["v_add_u32 v16, s76, v15", "s_waitcnt vmcnt(%d)" % bwait]
                G[4 * 22 + 3].insert(0, "s_barrier")
            if adv_end:
                for g, x in adv_end: G[g].append(x)
            k = 0
            for F in range(28):
                kk, ct = F // 14, F % 14
                for tt in range(4):
                    a(mfma(acc(ct, tt), wreg(F), TOK + 32 * u + 16 * kk + 4 * tt))
                    for x in G[k]: emit(x)
                    k += 1
            for key in list(q.pos):
                if key[0] == "c": del q.pos[key]
            for key in list(q.pos):
                if key[0] == "n": q.pos[("c",) + key[1:]] = q.pos.pop(key)
        nst = 15 + npf
        a("s_mov_b32 s80, 3")
        loop = a.new_label("g1"); a.label(loop)
        q = DSQ()
        for F in range(PD):
            for jh in range(2): q.issue(("c", F, jh))
        q.done = 2
        for u in range(4):
            stage(u, True, npf + 2 * nst, q, side=True, first_wait=(8 + npf + nst) if u == 0 else None,
                  adv_end=[(4 * 23 + 2, "s_sub_u32 s80, s80, 1"), (4 * 26 + 2, "s_cmp_lg_u32 s80, 0")] if u == 3 else None)
        a("s_cbranch_scc1 %s" % loop)
        self.mark(13)
        if "xs" in self.opt: a("s_mov_b32 s100, 0"); a("s_mov_b32 s101, 0")
        a("s_mov_b32 s%d, %d" % (RE + 2, 3584 * 2048))
        def run(c, sts): return [(st, kk, ct) for st in sts for kk in range(2) for ct in (c, 7 + c)]
        seq = run(0, (13, 14)) + run(1, (13, 14)) + run(0, (15,)) + run(1, (15,))
        done = {0: 20, 1: 24}
        for c in range(2, 7): seq += run(c, (13, 14, 15)); done[c] = len(seq)
        stage(0, True, npf + 15, q, nextf=[(14 * kk + ct, (st - 13) * G1_STAGE) for (st, kk, ct) in seq[:PD]])
        self.mark(14)
        def capture(fn):
            keep = self.a; tmp = Asm(); self.a = tmp; fn(); self.a = keep
            return [l.strip() for l in tmp.lines]
        st_ = self.stashed
        pre = ["v_mov_b32 v17, v15", "v_accvgpr_read_b32 v4, a%d" % st_["g1es"],
               "s_mul_i32 s58, s73, %d" % (112 * 1024), "s_mul_i32 s59, s72, 7", "s_add_u32 s60, s59, 1", "s_lshr_b32 s60, s60, 1",
               "s_lshl_b32 s60, s60, 10", "s_add_u32 s60, s60, s58", "s_and_b32 s61, s72, 1", "s_mov_b32 s62, 3072", "s_cmp_eq_u32 s61, 1", "s_cselect_b32 s62, -512, s62",
               "s_add_u32 s62, s62, s60"] + self.g2_voffs() + capture(self.g2_pre)
        vq = VMQ()
        def mul(c, tt):
            g, u = acc(c, tt), acc(7 + c, tt)
            return ["v_mul_f32 v%d, v%d, v%d" % (g + i, g + i, u + i) for i in range(4)]
        def cvt(c, tt):
            g = acc(c, tt); u = acc(7 + c, tt & ~1) + 2 * (tt & 1)
            return ["v_cvt_pk_bf16_f32 v%d, v%d, v%d" % (u, g, g + 1), "v_cvt_pk_bf16_f32 v%d, v%d, v%d" % (u + 1, g + 2, g + 3)]
        def out(c, tp):
            u = acc(7 + c, tp)
            base, off = (62, 0) if c == 6 else (60, 1024 * (c >> 1) + 512 * (c & 1))
            return ["s_add_u32 s63, s%d, %d" % (base, off + tp * 112 * 1024),
                    "v_permlane16_swap_b32 v%d, v%d" % (u, u + 2), "v_permlane16_swap_b32 v%d, v%d" % (u + 1, u + 3),
                    vq.op(("h", c, tp), "buffer_store_dwordx4 v[%d:%d], v4, s[%d:%d], s63 offen sc1" % (u, u + 3, RB, RB + 3))]
        def epi(c):
            return mul(c, 0) + mul(c, 1) + cvt(c, 0) + cvt(c, 1) + mul(c, 2) + mul(c, 3) + out(c, 0) + cvt(c, 2) + cvt(c, 3) + out(c, 2)
        N = len(seq)
        G = [[] for _ in range(4 * N)]
        def faddr(n):
            st, kk, ct = seq[n]
            return (16, 0) if st == 13 else (16, G1_STAGE) if st == 14 else (17, 0)
        for n in range(N):
            m = n + PD
            if m < N:
                st, kk, ct = seq[m]; reg, off = faddr(m)
                for jh in range(2): G[4 * n + jh].append(dsr(q, ("c", m, jh), wreg(m) + 2 * jh, reg, off + foff(14 * kk + ct, jh)))
            if n < N - 1: G[4 * n + 3].append(lambda n=n: q.wait(("c", n + 1, 1)))
        nb = 16 - PD - 1
        assert all(x[0] != 15 for x in seq[:16])
        G[4 * nb + 2].append("s_waitcnt vmcnt(0)"); G[4 * nb + 3].insert(0, "s_barrier")
        ex = []
        for st in range(4):
            ex.append("s_add_u32 m0, s88, %d" % G2_SLOT[st])
            for i in range(4): ex.append(vq.op(("w", st, i), self.g2_dma(i, G2_ROW[st])))
        exn = self.optv("exn", 4)
        for i, x in enumerate(ex): G[4 * (nb + 1 + (i * exn) // 5) + (2 if i % 5 else 1)].append(x)
        nA, nP, nC, nB = self.nA0, self.nPoll, self.nChk, self.nA1
        G[4 * nA + 2] += [lambda: vq.wait(("h", 1, 2)), vq.op("a0", "buffer_atomic_add v6, v5, s[%d:%d], 0 offen" % (RS, RS + 3))]
        G[4 * nP + 2].append(vq.op("p0", "buffer_load_dword v31, v30, s[%d:%d], 0 offen sc1" % (RS, RS + 3)))
        slow = a.new_label("c4s"); back = a.new_label("c4b")
        G[4 * nC + 1].append(lambda: vq.wait("p0"))
        G[4 * nC + 2] += ["v_cmp_gt_u32 vcc, 16, v31", "s_cbranch_vccnz %s" % slow, back + ":"]
        self.slow.append((slow, back, "0"))
        G[4 * nB + 2] += [lambda: vq.wait(("h", 3, 2)), vq.op("a1", "buffer_atomic_add v6, v5, s[%d:%d], s79 offen" % (RS, RS + 3))]
        def place(ops, g0):
            g = g0; k = 0
            while k < len(ops) and g < 4 * N:
                if len([x for x in G[g] if not (isinstance(x, str) and x.endswith(":"))]) < 2: G[g].append(ops[k]); k += 1
                else: g += 1
            return ops[k:], g + 1
        rest, gp = place(pre, 0); assert not rest and gp <= 4 * (nb + 2), gp
        tok = []
        for st in range(4):
            tok.append("s_lshr_b32 s78, s%d, 6" % G2_ROW[st])
            for j in range(4): tok.append(vq.op(("t", st, j), self.g2_tokload(st, j)))
        tkn = self.optv("tkn", 1)
        for i, x in enumerate(tok): G[4 * (nC + 1 + (i * tkn) // 2) + 2 * ((i * tkn) % 2)].append(x)
        def zero(r0): return ["v_pk_mov_b32 v[%d:%d], 0, 0" % (r, r + 1) for r in range(r0, r0 + 16, 2)]
        g = 0
        for c in range(6):
            rest, g = place(epi(c), max(g - 1, 4 * done[c] + 1)); assert not rest
            if c < 4: rest, g = place(zero(acc(c, 0)), g - 1); assert not rest
        k = 0
        for n in range(N):
            st, kk, ct = seq[n]
            for tt in range(4):
                a(mfma(acc(ct, tt), wreg(n), TOK + 32 * (st % 4) + 16 * kk + 4 * tt))
                for x in G[k]: emit(x)
                k += 1
            if "xm" in self.opt and n in (nA, nC, 23, 47): self.mark({nA: 26, nC: 27, 23: 24, 47: 25}[n])
        for x in epi(6): emit(x)
        self.mark(15)
        self.vq = vq

    def g2_pre(self):
        a = self.a
        self.unstash("g2t0", 20); self.unstash("g2t1", 21); self.unstash("g2o", 22); self.unstash("g2o4", 23)
        self.unstash("g2tab", 25); self.unstash("c4a", 5); self.unstash("c4p", 30)
        ks = 1024 if "x2nat" in self.opt else 7168
        a("v_add_u32 v18, %d, v20" % ks); a("v_add_u32 v19, %d, v21" % ks); a("v_mov_b32 v6, 1")
        self.in_srd(RD, P_OUT, 4194304)
        self.ws_srd(RA, WS_XCH, 256 * 32768)
        self.ws_srd(RC, WS_H, 4194304)
        for c in range(4):
            a("v_add_u32 v%d, %d, v%d" % (12 + c, G2_SLOT[5], 26 + c)); a("v_add_u32 v%d, %d, v%d" % (26 + c, G2_BASE, 26 + c))
        a("v_readlane_b32 s75, v25, 4"); a("s_mov_b32 s76, 5"); a("s_mov_b32 s79, %d" % (128 * 128)); a("s_mov_b32 s77, %d" % (256 * 128))
    def g2_tokload(self, slot, j):
        kk, tt = j >> 1, j & 1
        r = G2_TOK[slot] + 8 * kk + 4 * tt
        fl = "nt" if "g2tnt" in self.opt else "" if "g2tpl" in self.opt else "sc1"
        return "buffer_load_dwordx4 a[%d:%d], v%d, s[%d:%d], s78 offen %s" % (r, r + 3, (18 if kk else 20) + tt, RB, RB + 3, fl)
    def gemm2(self):
        a = self.a
        ACC, HR, TOK, WF, PD, NST = 32, 96, 0, G2_WF, 7, 28
        def acc(ct, tt): return ACC + (ct * 2 + tt) * 4
        tokload = self.g2_tokload
        def fk(F): return (F >> 2) & 1, (F & 3) + (0 if F >= 8 else 4)
        def fread(slot, F, jh, ring=None):
            kk, ct = fk(F)
            r = WF + 4 * ((F if ring is None else ring) % 8) + 2 * jh
            base, so = (12, G2_SLOT[slot] - G2_SLOT[5]) if slot in (3, 5) else (26, G2_SLOT[slot] - G2_BASE)
            assert 0 <= so <= 49152
            return "ds_read_b64_tr_b16 a[%d:%d], v%d offset:%d" % (r, r + 1, base + (ct & 3), so + (2 * kk + (ct >> 2)) * 4096 + jh * 2048)
        a("s_barrier")
        for F in range(PD):
            for jh in range(2): a(fread(0, F, jh))
        a("s_add_u32 m0, s88, %d" % G2_SLOT[4])
        a(self.vq.wait(("t", 1, 3)) + " lgkmcnt(10)")
        self.mark(18)
        vq = self.vq
        def stage(u, loads, bwait, last=False, extra=None, tailops=None, first=None):
            G = [[] for _ in range(32)]
            nods = "x2nods" in self.opt
            for F in range(16):
                Fn = F + PD
                if not nods and not (last and Fn >= 16):
                    sl = u if Fn < 16 else (u + 1) % 6
                    G[2 * F].append(fread(sl, Fn % 16, 0)); G[2 * F + 1].append(fread(sl, Fn % 16, 1))
                if F & 1:
                    if not last: G[2 * F + 1].append("s_waitcnt lgkmcnt(10)")
                    elif F < 15:
                        issued = min(F + PD, 15); need = F + 2
                        G[2 * F + 1].append("s_waitcnt lgkmcnt(%d)" % max(0, 2 * (issued - need)))
            vm = []
            def check(g, wait, soff):
                slow = a.new_label("c4t"); back = a.new_label("c4u")
                G[g].append(wait); G[g + 1].append("v_cmp_gt_u32 vcc, 16, v31"); G[g + 2] += ["s_cbranch_vccnz %s" % slow, back + ":"]
                self.slow.append((slow, back, soff))
            def poll(soff): return "buffer_load_dword v31, v30, s[%d:%d], %s offen sc1" % (RS, RS + 3, soff)
            if loads:
                vm = [self.g2_dma(i, 75) for i in range(4)] + [tokload((u + 4) % 6, j) for j in range(4)]
                if "x2nodma" in self.opt: vm[:4] = ["s_nop 0"] * 4
                if "x2notok" in self.opt: vm[4:] = ["s_nop 0"] * 4
                G[1].append("s_lshr_b32 s78, s75, 6")
                G[9].append("v_readlane_b32 s75, v25, s76"); G[13].append("s_add_u32 s76, s76, 1")
                G[29].append("s_add_u32 m0, s88, %d" % G2_SLOT[(u + 5) % 6])
                if first is not None:
                    vm = [vq.op(("L", first + 4, i), x) for i, x in enumerate(vm)]
                    bwait = lambda: vq.wait(("L", first + 1, 7) if first >= 3 else ("t", first + 1, 3))
                    if first == 1: G[15].append(vq.op("p1", poll("s79")))
                    if first == 4: check(5, lambda: vq.wait("p1"), "s79")
                    if first == self.optv("nD", 2):
                        G[18] += [lambda: vq.wait(("h", 6, 2))]; G[20].append(vq.op("a2", "buffer_atomic_add v6, v5, s[%d:%d], s77 offen" % (RS, RS + 3)))
                else:
                    if u == 3: G[15].append(poll("s77"))
                    if u == 0: check(5, "s_waitcnt vmcnt(19)", "s77")
            if extra: vm = extra
            for i, x in enumerate(vm): G[2 * i].append(x)
            if not last:
                G[16].append(bwait if callable(bwait) else "s_waitcnt vmcnt(%d)" % bwait); G[17].append("s_barrier")
            if tailops:
                for g, x in tailops: G[g].append(x)
            k = 0
            for F in range(16):
                kk, ct = fk(F)
                w = WF + 4 * (F % 8)
                for tt in range(2):
                    t = G2_TOK[u] + 8 * kk + 4 * tt; c = acc(ct, tt)
                    if "x2nomfma" not in self.opt:
                        a("v_mfma_f32_16x16x32_bf16 v[%d:%d], a[%d:%d], a[%d:%d], v[%d:%d]" % (c, c + 3, w, w + 3, t, t + 3, c, c + 3))
                    for x in G[k]: a(x() if callable(x) else x)
                    k += 1
        for u in range(6):
            stage(u, True, None, first=u)
            if "xm3" in self.opt: self.mark([16, 17, 24, 25, 26, 27][u])
        a("s_mov_b32 s81, 3")
        loop = a.new_label("g2"); a.label(loop)
        for u in range(6):
            stage(u, True, [25, 24, 24, 25, 25, 25][u], tailops=[(22, "s_sub_u32 s81, s81, 1"), (30, "s_cmp_lg_u32 s81, 0")] if u == 5 else None)
        a("s_cbranch_scc1 %s" % loop)
        a("s_mov_b32 s60, 32768")
        hl = ["buffer_load_dwordx2 v[%d:%d], v22, s[%d:%d], %s offen offset:%d sc1" % (HR + 2 * e, HR + 2 * e + 1, RC, RC + 3, "s60" if e & 1 else "0", 32 * (e >> 1)) for e in range(8)]
        seq = [(u, F) for u in range(4) for F in range(8)] + [(u, F) for u in range(4) for F in range(8, 16)]
        N = len(seq)
        G = [[] for _ in range(2 * N)]
        q = DSQ()
        for n in range(PD):
            for jh in range(2): q.issue((n, jh))
        q.done = 4
        def rd(m, jh): return lambda: (q.issue((m, jh)), fread(seq[m][0], seq[m][1], jh, ring=m))[1]
        for n in range(N):
            m = n + PD
            if m < N: G[2 * n].append(rd(m, 0)); G[2 * n + 1].append(rd(m, 1))
            if n & 1 and n < N - 1: G[2 * n + 1].append(lambda n=n: q.wait((min(n + 2, N - 1), 1)))
        for u, cnt in ((1, 16), (2, 16), (3, 8)):
            n = 8 * u - PD - 1
            G[2 * n].append("s_waitcnt vmcnt(%d)" % cnt); G[2 * n + 1].insert(0, "s_barrier")
        for i, x in enumerate(hl): G[2 * (1 + i) if i < 7 else 2 * 8 - 1].append(x)
        xa = ["s_lshl_b32 s58, s2, 15", "s_lshl_b32 s59, s%d, 13" % S_WAVE, "s_add_u32 s61, s58, s59", "s_xor_b32 s58, s2, 1", "s_lshl_b32 s58, s58, 15",
              "s_add_u32 s62, s58, s59", "s_add_u32 s63, s62, 4096", "s_add_u32 s58, s61, 4096"]
        for i, x in enumerate(xa): G[2 * (18 + i)].append(x)
        for e in range(8):
            c = ACC + 32 + 4 * e
            G[2 * 32 + self.optv("xsp", 1) * e + 1].append("buffer_store_dwordx4 v[%d:%d], v24, s[%d:%d], s%d offen offset:%d sc1" % (c, c + 3, RA, RA + 3, 58 if e >> 2 else 61, 1024 * (e & 3)))
        k = 0
        for n in range(N):
            u, F = seq[n]; kk, ct = fk(F)
            w = WF + 4 * (n % 8)
            for tt in range(2):
                t = G2_TOK[u] + 8 * kk + 4 * tt; c = acc(ct, tt)
                a("v_mfma_f32_16x16x32_bf16 v[%d:%d], a[%d:%d], a[%d:%d], v[%d:%d]" % (c, c + 3, w, w + 3, t, t + 3, c, c + 3))
                for x in G[k]:
                    x = x() if callable(x) else x
                    if x: a(x)
                k += 1
        self.mark(19)
        R = 112
        def xloads():
            for e in range(8):
                a("buffer_load_dwordx4 v[%d:%d], v24, s[%d:%d], s%d offen offset:%d sc1" % (R + 4 * e, R + 4 * e + 3, RA, RA + 3, 62 + (e >> 2), 1024 * (e & 3)))
        def residual():
            for e in list(range(8)):
                c = ACC + 4 * e; r = HR + 2 * e
                a("v_lshlrev_b32 v4, 16, v%d" % r); a("v_and_b32 v5, s%d, v%d" % (S_MASK, r))
                a("v_lshlrev_b32 v6, 16, v%d" % (r + 1)); a("v_and_b32 v7, s%d, v%d" % (S_MASK, r + 1))
                for i in range(4): a("v_add_f32 v%d, v%d, v%d" % (c + i, c + i, 4 + i))
        if "resfirst" in self.opt:
            a("s_waitcnt vmcnt(8)"); residual(); xloads()
        else:
            xloads()
            a("s_waitcnt vmcnt(16)")
            residual()
        self.mark(20)
        ok = a.new_label("xgo"); lp = a.new_label("xpl")
        a("s_mov_b32 s59, 0")
        a.label(lp)
        a("s_waitcnt vmcnt(0)")
        a("v_max3_u32 v4, v%d, v%d, v%d" % (R, R + 1, R + 2))
        for i in range(3, 31, 2): a("v_max3_u32 v4, v4, v%d, v%d" % (R + i, R + i + 1))
        a("v_max_u32 v4, v4, v%d" % (R + 31))
        a("v_cmp_eq_u32 vcc, -1, v4")
        a("s_add_u32 s59, s59, 1"); a("s_cmp_gt_u32 s59, %d" % SPIN_MAX); a("s_cbranch_scc1 %s" % ok)
        a("s_cbranch_vccz %s" % ok)
        xloads()
        a("s_branch %s" % lp)
        a.label(ok)
        self.mark(21)
        units = [(tt, m) for tt in range(2) for m in range(2)]
        def fin(i):
            tt, m = units[i]; up = HR + 4 * i
            a("v_permlane16_swap_b32 v%d, v%d" % (up, up + 2)); a("v_permlane16_swap_b32 v%d, v%d" % (up + 1, up + 3))
            a("buffer_store_dwordx4 v[%d:%d], v23, s[%d:%d], %s offen offset:%d" % (up, up + 3, RD, RD + 3, "s60" if tt else "0", 64 * m))
        for i, (tt, m) in enumerate(units):
            u = HR + 4 * i
            for h in range(2):
                e = 2 * (2 * m + h) + tt
                c = ACC + 4 * e; r = R + 4 * e
                for j in range(4): a("v_add_f32 v%d, v%d, v%d" % (c + j, c + j, r + j))
                a("v_cvt_pk_bf16_f32 v%d, v%d, v%d" % (u + 2 * h, c, c + 1)); a("v_cvt_pk_bf16_f32 v%d, v%d, v%d" % (u + 2 * h + 1, c + 2, c + 3))
            if i > 0: fin(i - 1)
        a("s_nop 1")
        fin(3)
        self.mark(22)

    def finish(self, name):
        a = self.a
        if self.diag:
            a("s_waitcnt vmcnt(0) lgkmcnt(0)")
            self.mark(23)
            a("s_memrealtime s[92:93]"); a("s_waitcnt lgkmcnt(0)")
            a("v_accvgpr_read_b32 v1, a255"); a("s_nop 1")
            if "xs" in self.opt: a("v_writelane_b32 v1, s100, 54"); a("v_writelane_b32 v1, s101, 55")
            for i, s in enumerate((94, 95, 96, 97, 92, 93)):
                a("v_writelane_b32 v1, s%d, %d" % (s, 56 + i))
            self.ws_srd(RA, STAMP, 256 * 1024)
            a("s_lshl_b32 s58, s2, 10"); a("s_lshl_b32 s59, s%d, 8" % S_WAVE); a("s_add_u32 s58, s58, s59")
            a("v_lshlrev_b32 v3, 2, v2")
            a("buffer_store_dword v1, v3, s[%d:%d], s58 offen" % (RA, RA + 3))
            if "dbgspan" in self.opt:
                self.in_srd(RE, P_DBG, 256)
                nd = a.new_label("nodbg")
                a("s_cmp_lg_u32 s%d, 0" % S_WAVE); a("s_cbranch_scc1 %s" % nd)
                a("s_not_b32 s58, s94"); a("v_mov_b32 v4, s58"); a("v_mov_b32 v5, 16"); a("v_mov_b32 v6, s92"); a("v_mov_b32 v7, 20")
                a("s_mov_b64 exec, 1")
                a("buffer_atomic_umax v4, v5, s[%d:%d], 0 offen" % (RE, RE + 3))
                a("buffer_atomic_umax v6, v7, s[%d:%d], 0 offen" % (RE, RE + 3))
                a("s_mov_b64 exec, -1")
                a("s_cmp_lg_u32 s2, 0"); a("s_cbranch_scc1 %s" % nd)
                a("v_mov_b32 v4, 0")
                for i, m in enumerate((2, 3, 6, 8, 11, 12, 14, 17, 19, 23)):
                    a("v_readlane_b32 s58, v1, %d" % (2 * m)); a("s_nop 3"); a("s_sub_u32 s58, s58, s96"); a("v_writelane_b32 v4, s58, %d" % (6 + i)); a("s_nop 1")
                a("v_lshlrev_b32 v5, 2, v2")
                a("s_mov_b64 exec, 0xffc0")
                a("buffer_store_dword v4, v5, s[%d:%d], 0 offen" % (RE, RE + 3))
                a("s_mov_b64 exec, -1")
                a.label(nd)
        a.label(name + "_done")
        a("s_endpgm")
        for slow, back, soff in self.slow:
            a.label(slow)
            a("s_mov_b32 s80, 0")
            a.label(slow + "l")
            a("buffer_load_dword v31, v30, s[%d:%d], %s offen sc1" % (RS, RS + 3, soff))
            a("s_waitcnt vmcnt(0)")
            a("v_cmp_gt_u32 vcc, 16, v31")
            if "xs" in self.opt: a("s_add_u32 s%d, s%d, 1" % ((100, 100) if soff == "0" else (101, 101)))
            a("s_add_u32 s80, s80, 1"); a("s_cmp_gt_u32 s80, %d" % SPIN_MAX); a("s_cbranch_scc1 %s" % back)
            a("s_cbranch_vccnz %sl" % slow)
            a("s_branch %s" % back)
        if self.slow: a("s_endpgm")
    def build(self, upto=5):
        name = KNAME + "_kernel"
        self.entry(name)
        self.prep()
        if upto >= 2: self.conv()
        if upto >= 3:
            self.g1_setup(); self.ln()
        if upto >= 4: self.gemm1()
        if upto >= 5: self.gemm2()
        self.finish(name)
        hdr = "; persistent single-launch kernel generated by gen/fused.py (hand-written generator)\n"
        hdr += "; @launch grid=(256,1,1) block=(256,1,1) lds=%d\n" % LDS_TOTAL
        hdr += '.amdgcn_target "amdgcn-amd-amdhsa--gfx950"\n'
        return hdr + self.a.text() + kernel_desc(name, 512, 102, 256)

if __name__ == "__main__":
    import sys
    out = sys.argv[1]
    opt = sys.argv[2] if len(sys.argv) > 2 else ""
    diag = "diag" in opt.split(",")
    upto = 5
    for t in opt.split(","):
        if t.startswith("upto"): upto = int(t[4:])
    open(out, "w").write(Gen(opt, diag).build(upto))
```

```python
from asmlib import *
from layout import *

P_Q, P_K, P_V, P_SK, P_SSMK, P_SSMD, P_WG, P_WU, P_WD, P_OUT, P_DBG, P_WS = 4, 6, 8, 10, 12, 14, 18, 20, 22, 24, 26, 28
S_WAVE, S_X, S_J = 30, 31, 3
RA, RB, RC, RD, RE, RS = 32, 36, 40, 44, 48, 52
S_MASK, S_EPS = 56, 57
SPIN_MAX = 1 << 17

KCOPY = 4160; XB0 = 4 * KCOPY; XSTR = 4576; WREG = 25856
CSTG = 4 * WREG
PSTG = CSTG + 17408
G1_STAGE = 28672; G1_NSLOT = 5
SENT = 236
G2_WF = 204
G2_STAGE = 16384; G2_NSLOT = 6; G2_BASE = G1_STAGE
G2_SLOT = [G2_BASE, G2_BASE + G2_STAGE, G2_BASE + 2 * G2_STAGE, G1_STAGE * G1_NSLOT, G2_BASE + 3 * G2_STAGE, G2_BASE + 4 * G2_STAGE]
G2_ROW = [89, 90, 91, 93]
G2_TOK = [0, 16, 160, 176, 32, 48]
LDS_TOTAL = G1_STAGE * G1_NSLOT + G2_STAGE

class DSQ:
    def __init__(self): self.n = 0; self.pos = {}; self.done = 0
    def issue(self, tag): self.n += 1; self.pos[tag] = self.n
    def wait(self, tag):
        need = self.pos[tag]
        if need <= self.done: return None
        cnt = min(15, self.n - need); self.done = self.n - cnt
        return "s_waitcnt lgkmcnt(%d)" % cnt

class VMQ:
    def __init__(self): self.n = 0; self.pos = {}
    def op(self, tag, text): return lambda: (self.issue(tag), text)[1]
    def issue(self, tag): self.n += 1; self.pos[tag] = self.n
    def wait(self, tag): return "s_waitcnt vmcnt(%d)" % min(63, self.n - self.pos[tag])

class Gen:
    def __init__(self, opt="", diag=False):
        self.a = Asm(); self.opt = set(opt.split(",")); self.diag = diag; self.stashed = {}; self.pffast = "pfall" not in self.opt; self.slow = []
        optv = self.optv
        self.x32 = "xf32" in self.opt
        self.xbytes = 8192 if self.x32 else 4096
        self.xstr = optv("xstr", self.xbytes + 1152)
        self.nA0, self.nPoll, self.nChk, self.nA1 = optv("nA", 44), optv("nP", 60), optv("nC", 68), optv("nB", 72)
    def optv(self, name, dflt):
        for t in self.opt:
            if t.startswith(name + "="): return int(t[len(name) + 1:])
        return dflt
    def mark(self, i):
        if not self.diag: return
        a = self.a
        a("s_memtime s[98:99]"); a("s_waitcnt lgkmcnt(0)")
        a("v_accvgpr_read_b32 v1, a255"); a("s_nop 1")
        a("v_writelane_b32 v1, s98, %d" % (2 * i)); a("v_writelane_b32 v1, s99, %d" % (2 * i + 1))
        a("s_nop 1"); a("v_accvgpr_write_b32 a255, v1")
    def stash(self, name, v):
        n = len(self.stashed)
        idx = self.stashed.setdefault(name, 176 + n if n < 28 else 240 + n - 28); assert idx < 255
        self.a("v_accvgpr_write_b32 a%d, v%d" % (idx, v))
    def unstash(self, name, v):
        self.a("v_accvgpr_read_b32 v%d, a%d" % (v, self.stashed[name]))
    def ws_srd(self, dst, off, size):
        a = self.a
        a("s_add_u32 s%d, s%d, 0x%x" % (dst, P_WS, off)); a("s_addc_u32 s%d, s%d, 0" % (dst + 1, P_WS + 1))
        a("s_and_b32 s%d, s%d, 0xffff" % (dst + 1, dst + 1)); a("s_mov_b32 s%d, 0x%x" % (dst + 2, size)); a("s_mov_b32 s%d, 0x00020000" % (dst + 3))
    def in_srd(self, dst, ptr, size, soff=None):
        a = self.a
        if soff is None:
            srd(a, dst, ptr, size)
        else:
            a("s_add_u32 s%d, s%d, s%d" % (dst, ptr, soff)); a("s_addc_u32 s%d, s%d, 0" % (dst + 1, ptr + 1))
            a("s_and_b32 s%d, s%d, 0xffff" % (dst + 1, dst + 1)); a("s_mov_b32 s%d, 0x%x" % (dst + 2, size)); a("s_mov_b32 s%d, 0x00020000" % (dst + 3))
    def arrive(self, addr, nlanes=1, vm=0, check_init=None, init_target=1):
        a = self.a
        for s in addr: a(s)
        a("s_waitcnt vmcnt(%d)" % vm)
        a("s_barrier")
        sk = a.new_label("arr")
        a("s_cmp_lg_u32 s%d, 0" % S_WAVE); a("s_cbranch_scc1 %s" % sk)
        if check_init is not None:
            ok = a.new_label("ini"); lp = a.new_label("inip")
            a("s_mov_b32 s59, 0")
            a.label(lp)
            a("v_readfirstlane_b32 s58, v%d" % check_init)
            a("s_cmp_ge_u32 s58, %d" % init_target); a("s_cbranch_scc1 %s" % ok)
            a("s_add_u32 s59, s59, 1"); a("s_cmp_gt_u32 s59, %d" % SPIN_MAX); a("s_cbranch_scc1 %s" % ok)
            a("v_mov_b32 v6, 0")
            a("buffer_load_dword v%d, v6, s[%d:%d], 0 offen sc1" % (check_init, RE, RE + 3))
            a("s_waitcnt vmcnt(0)")
            a("s_branch %s" % lp)
            a.label(ok)
        a("v_mov_b32 v6, 1")
        a("s_mov_b64 exec, 0x%x" % ((1 << nlanes) - 1))
        a("buffer_atomic_add v6, v7, s[%d:%d], 0 offen" % (RS, RS + 3))
        a("s_mov_b64 exec, -1")
        a.label(sk)
    def wait(self, line_sgpr, nlines, target, shadow=None):
        a = self.a
        sk = a.new_label("wt"); lp = a.new_label("wtp"); s0 = a.new_label("wt0")
        mask = "0x%x" % ((1 << nlines) - 1)
        a("s_cmp_lg_u32 s%d, 0" % S_WAVE); a("s_cbranch_scc1 %s" % s0)
        a("v_min_u32 v6, %d, v2" % (nlines - 1)); a("v_lshlrev_b32 v6, 7, v6"); a("v_add_u32 v6, s%d, v6" % line_sgpr)
        a("s_mov_b64 exec, %s" % mask)
        a("buffer_load_dword v7, v6, s[%d:%d], 0 offen sc1" % (RS, RS + 3))
        a("s_mov_b64 exec, -1")
        a.label(s0)
        if shadow: shadow()
        a("s_cmp_lg_u32 s%d, 0" % S_WAVE); a("s_cbranch_scc1 %s" % sk)
        a("s_mov_b32 s59, 0")
        a("s_mov_b64 exec, %s" % mask)
        a.label(lp)
        a("s_waitcnt vmcnt(0)")
        a("v_cmp_gt_u32 vcc, %d, v7" % target)
        a("s_add_u32 s59, s59, 1")
        a("s_cmp_gt_u32 s59, %d" % SPIN_MAX); a("s_cbranch_scc1 %s" % (sk + "x"))
        a("s_cbranch_vccz %s" % (sk + "x"))
        a("buffer_load_dword v7, v6, s[%d:%d], 0 offen sc1" % (RS, RS + 3))
        a("s_branch %s" % lp)
        a.label(sk + "x")
        a("s_mov_b64 exec, -1")
        a.label(sk)
        a("s_barrier")

    def entry(self, name):
        a = self.a
        kernel_begin(a, name)
        a("s_cmp_ge_u32 s2, 256"); a("s_cbranch_scc1 %s_done" % name)
        if self.diag:
            a("s_memrealtime s[94:95]"); a("s_memtime s[96:97]"); a("v_accvgpr_write_b32 a255, 0")
        a("s_load_dwordx16 s[4:19], s[0:1], 0")
        a("s_load_dwordx8 s[20:27], s[0:1], 64")
        a("s_load_dwordx2 s[28:29], s[0:1], 96")
        a("v_lshrrev_b32 v1, 6, v0")
        a("v_and_b32 v2, 63, v0")
        a("v_readfirstlane_b32 s%d, v1" % S_WAVE)
        a("s_and_b32 s%d, s2, 7" % S_X); a("s_lshr_b32 s%d, s2, 3" % S_J)
        a("s_mov_b32 s%d, 0xffff0000" % S_MASK); a("s_mov_b32 s%d, 0x3727c5ac" % S_EPS)

    def prep(self):
        a = self.a
        a("v_and_b32 v8, 7, v0")
        a("v_lshrrev_b32 v9, 3, v0")
        a("s_lshr_b32 s60, s2, 4")
        a("s_and_b32 s61, s2, 15")
        a("s_lshl_b32 s62, s60, 18"); a("s_lshl_b32 s63, s61, 7"); a("s_add_u32 s62, s62, s63")
        a("v_lshlrev_b32 v3, 13, v9"); a("v_lshl_add_u32 v3, v8, 4, v3"); a("v_add_u32 v3, s62, v3")
        a("v_subrev_u32 v4, 6144, v3")
        a("s_lshl_b32 s63, s61, 9"); a("v_lshlrev_b32 v5, 6, v8"); a("v_add_u32 v5, s63, v5")
        a("s_mov_b32 s64, 4096")
        a("s_lshl_b32 s65, s%d, 5" % S_X); a("s_add_u32 s65, s65, s%d" % S_J)
        a("s_lshl_b32 s66, s65, 2"); a("s_add_u32 s66, s66, s%d" % S_WAVE)
        a("s_mul_i32 s67, s%d, %d" % (S_WAVE, WREG))
        a("s_lshl_b32 s68, s66, 12")
        a("v_lshlrev_b32 v10, 4, v2")
        a("v_lshlrev_b32 v11, 2, v2")
        a("v_add_u32 v12, 196, v10")
        a("s_lshl_b32 s69, s2, 3"); a("s_lshl_b32 s70, s%d, 1" % S_WAVE); a("s_add_u32 s69, s69, s70"); a("s_lshl_b32 s70, s69, 11")
        a("v_lshlrev_b32 v13, 3, v2")
        for i in range(4): a("v_accvgpr_write_b32 a%d, -1" % (SENT + i))
        a("s_waitcnt lgkmcnt(0)")
        self.ws_srd(RS, WS_SYNC, NLINES * 128)
        NCLR = NLINES // 64
        ni = a.new_label("noinit")
        a("s_lshl_b32 s58, s%d, 8" % S_WAVE); a("s_or_b32 s58, s58, s2"); a("s_cmp_ge_u32 s58, %d" % NCLR); a("s_cbranch_scc1 %s" % ni)
        a("v_lshlrev_b32 v6, 7, v2"); a("v_mov_b32 v7, 0"); a("s_lshl_b32 s58, s2, 13")
        a("buffer_store_dword v7, v6, s[%d:%d], s58 offen sc1" % (RS, RS + 3))
        a.label(ni)
        self.in_srd(RA, P_K, 4194304); self.in_srd(RB, P_V, 4194304); self.in_srd(RC, P_SK, 8192)
        KR, VR, SK = 16, 44, 60
        nt = "" if "p1nont" in self.opt else "nt"
        def ld(dst, voff, s, soff, off, fl=""):
            a("buffer_load_dwordx4 v[%d:%d], v%d, s[%d:%d], %s offen%s %s" % (dst, dst + 3, voff, s, s + 3, soff, " offset:%d" % off if off else "", fl))
        for i in range(4): ld(SK + 4 * i, 5, RC, "0", 16 * i)
        ld(KR + 0, 4, RA, "0", 0, nt); ld(KR + 4, 4, RA, "0", 2048, nt); ld(KR + 8, 4, RA, "s64", 0, nt)
        ld(KR + 12, 3, RA, "0", 0, nt); ld(KR + 16, 3, RA, "0", 2048, nt); ld(KR + 20, 3, RA, "s64", 0, nt); ld(KR + 24, 3, RA, "s64", 2048, nt)
        ld(VR + 0, 3, RB, "0", 0, nt); ld(VR + 4, 3, RB, "0", 2048, nt); ld(VR + 8, 3, RB, "s64", 0, nt); ld(VR + 12, 3, RB, "s64", 2048, nt)
        self.in_srd(RE, P_DBG, 256)
        ni = a.new_label("noflag")
        a("s_lshl_b32 s58, s%d, 8" % S_WAVE); a("s_or_b32 s58, s58, s2"); a("s_cmp_ge_u32 s58, %d" % NCLR); a("s_cbranch_scc1 %s" % ni)
        a("s_waitcnt vmcnt(15)")
        a("v_mov_b32 v6, 0"); a("v_mov_b32 v7, 1")
        a("s_mov_b64 exec, 1")
        a("buffer_atomic_add v7, v6, s[%d:%d], 0 offen" % (RE, RE + 3))
        a("s_mov_b64 exec, -1")
        a.label(ni)
        self.in_srd(RD, P_SSMK, 4096, 68)
        sknt = "" if "sknont" in self.opt else "nt"
        for i in range(16):
            a("buffer_load_dword v%d, v11, s[%d:%d], 0 offen offset:%d %s" % (128 + i, RD, RD + 3, 256 * i, sknt))
        nclr = 0
        if "clrprep" in self.opt:
            nclr = self.xbytes // 1024
            self.xch_srd(RA)
            for i in range(nclr):
                a("buffer_store_dwordx4 a[%d:%d], v10, s[%d:%d], %s offen offset:%d sc1" % (SENT, SENT + 3, RA, RA + 3, "0" if i < 4 else "s64", 1024 * (i & 3)))
        a("s_lshr_b32 s58, s66, 1"); a("s_lshl_b32 s58, s58, 2")
        a("s_load_dword s71, s[%d:%d], s58" % (P_SSMD, P_SSMD + 1))
        self.ws_srd(RC, WS_XRT, 4194304)
        a("v_sub_u32 v6, 31, v9"); a("v_lshlrev_b32 v7, 1, v8"); a("v_xor_b32 v6, v6, v7"); a("v_lshlrev_b32 v6, 3, v6")
        a("v_lshl_add_u32 v6, v8, 11, v6"); a("v_add_u32 v14, %d, v6" % PSTG)
        W, K, V, O = 80, 84, 92, 96
        def unpack(dst, src, hi):
            if hi: a("v_and_b32 v%d, s%d, v%d" % (dst, S_MASK, src))
            else: a("v_lshlrev_b32 v%d, 16, v%d" % (dst, src))
        self.shadow()
        a("s_waitcnt vmcnt(%d)" % (16 + nclr))
        self.mark(0)
        for c in range(8):
            d, hi = c >> 1, c & 1
            unpack(W + 0, SK + 2 * c, 0); unpack(W + 1, SK + 2 * c, 1); unpack(W + 2, SK + 2 * c + 1, 0); unpack(W + 3, SK + 2 * c + 1, 1)
            for i in range(7): unpack(K + i, KR + 4 * i + d, hi)
            for j in range(4): unpack(V + j, VR + 4 * j + d, hi)
            for j in range(4): a("v_mul_f32 v%d, v%d, v%d" % (O + j, K + j, W + 3))
            for tap in (1, 2, 3):
                for j in range(4): a("v_fmac_f32 v%d, v%d, v%d" % (O + j, K + j + tap, W + 3 - tap))
            for j in range(4): a("v_mul_f32 v%d, v%d, v%d" % (O + j, O + j, V + j))
            P = 100 + 2 * (c & 1)
            a("v_cvt_pk_bf16_f32 v%d, v%d, v%d" % (P, O + 3, O + 2))
            a("v_cvt_pk_bf16_f32 v%d, v%d, v%d" % (P + 1, O + 1, O + 0))
            a("ds_write_b64 v14, v[%d:%d] offset:%d" % (P, P + 1, c * 256))
        a("v_lshrrev_b32 v16, 4, v0"); a("v_and_b32 v17, 15, v0"); a("v_lshrrev_b32 v18, 7, v0")
        a("s_lshl_b32 s62, s61, 18"); a("s_lshl_b32 s63, s60, 8"); a("s_sub_u32 s62, s62, s63"); a("s_add_u32 s62, s62, 3840")
        a("v_lshlrev_b32 v19, 12, v16"); a("v_lshl_add_u32 v19, v17, 4, v19"); a("v_add_u32 v19, s62, v19")
        a("s_waitcnt lgkmcnt(0)")
        a("s_barrier")
        for i in range(4):
            a("v_add_u32 v20, %d, v18" % (2 * i)); a("v_xor_b32 v20, v20, v17"); a("v_lshlrev_b32 v20, 4, v20")
            a("v_lshl_add_u32 v20, v16, 8, v20"); a("v_add_u32 v20, %d, v20" % PSTG)
            a("ds_read_b128 v[%d:%d], v20 offset:%d" % (24 + 4 * i, 27 + 4 * i, i * 4096))
        a("v_mov_b32 v6, 0")
        a("buffer_load_dword v15, v6, s[%d:%d], 0 offen sc1" % (RE, RE + 3))
        for i in range(4):
            a("s_mov_b32 s63, %d" % (i * 16 * 4096))
            a("s_waitcnt lgkmcnt(%d)" % (3 - i))
            a("buffer_store_dwordx4 v[%d:%d], v19, s[%d:%d], s63 offen sc1" % (24 + 4 * i, 27 + 4 * i, RC, RC + 3))
        nyoung = 0
        if "qw1" in self.opt:
            self.q_loads(); nyoung += 8
        self.mark(1)
        self.arrive(["s_lshl_b32 s58, s61, 7", "s_add_u32 s60, s58, %d" % (C1 * 128), "v_mov_b32 v7, s60"], vm=nyoung, check_init=15, init_target=NCLR)
        self.mark(2)

    def xch_srd(self, R):
        a = self.a
        a("s_lshl_b32 s58, s2, 2"); a("s_add_u32 s58, s58, s%d" % S_WAVE); a("s_mul_i32 s58, s58, %d" % self.xstr); a("s_add_u32 s58, s58, 0x%x" % WS_XCH)
        a("s_add_u32 s%d, s%d, s58" % (R, P_WS)); a("s_addc_u32 s%d, s%d, 0" % (R + 1, P_WS + 1))
        a("s_and_b32 s%d, s%d, 0xffff" % (R + 1, R + 1)); a("s_mov_b32 s%d, %d" % (R + 2, self.xbytes)); a("s_mov_b32 s%d, 0x00020000" % (R + 3))
    def q_loads(self):
        a = self.a
        self.in_srd(RD, P_Q, 4194304)
        qf = "" if "qnont" in self.opt else "nt"
        a("v_lshlrev_b32 v13, 3, v2")
        for tok in range(2):
            for i in range(4):
                r = 160 + 8 * tok + 2 * i
                a("buffer_load_dwordx2 a[%d:%d], v13, s[%d:%d], s70 offen offset:%d %s" % (r, r + 1, RD, RD + 3, 512 * i + 2048 * tok, qf))

    def conv(self):
        a = self.a
        a("s_add_u32 s58, s68, 0x%x" % WS_XRT)
        a("s_add_u32 s%d, s%d, s58" % (RA, P_WS)); a("s_addc_u32 s%d, s%d, 0" % (RA + 1, P_WS + 1))
        a("s_and_b32 s%d, s%d, 0xffff" % (RA + 1, RA + 1)); a("s_mov_b32 s%d, 4096" % (RA + 2)); a("s_mov_b32 s%d, 0x00020000" % (RA + 3))
        self.ws_srd(RB, WS_YB, 4194304)
        a("v_and_b32 v8, 15, v2"); a("v_lshrrev_b32 v9, 4, v2")
        a("v_and_b32 v3, 3, v8"); a("v_lshrrev_b32 v4, 2, v8")
        a("v_mul_u32_u24 v12, %d, v3" % KCOPY)
        a("v_add_u32 v13, v4, v9"); a("v_lshl_add_u32 v12, v13, 4, v12"); a("v_add_u32 v12, s67, v12")
        a("v_and_b32 v13, 1, v8"); a("v_lshrrev_b32 v14, 1, v8")
        a("v_mul_u32_u24 v15, %d, v13" % XSTR); a("v_lshl_add_u32 v15, v9, 4, v15")
        a("v_lshlrev_b32 v14, 6, v14"); a("v_sub_u32 v15, v15, v14")
        a("s_add_u32 s58, s67, %d" % (XB0 + 64 * 63 - 3584)); a("v_add_u32 v14, s58, v15")
        AD = 60
        a("v_lshlrev_b32 v15, 3, v4"); a("v_lshl_add_u32 v15, v3, 1, v15"); a("v_lshl_add_u32 v15, v9, 3, v15")
        a("s_and_b32 s58, s66, 1"); a("s_lshl_b32 s58, s58, 4"); a("s_lshr_b32 s71, s71, s58"); a("s_and_b32 s71, s71, 0xffff")
        a("v_mov_b32 v1, s71")
        for dd in range(4):
            a("v_cmp_eq_u32 vcc, %d, v15" % (30 - 2 * dd)); a("s_nop 1"); a("v_cndmask_b32 v%d, 0, v1, vcc" % (AD + dd))
        a("v_lshrrev_b32 v4, 4, v2"); a("v_mul_u32_u24 v4, %d, v4" % KCOPY); a("v_and_b32 v5, 15, v2"); a("v_lshl_add_u32 v4, v5, 2, v4")
        a("v_add_u32 v4, s67, v4"); a("v_mov_b32 v5, 0")
        a("ds_write_b32 v4, v5")
        a("s_add_u32 s58, s67, 60"); a("v_add_u32 v4, s58, v11")
        for phi in range(4):
            if phi: a("v_add_u32 v4, %d, v4" % (KCOPY - 4))
            for i in range(8):
                a("ds_write2st64_b32 v4, v%d, v%d offset0:%d offset1:%d" % (128 + 2 * i, 129 + 2 * i, 2 * i, 2 * i + 1))
        a("s_add_u32 s58, s67, %d" % XB0); a("v_add_u32 v4, s58, v10")
        for r in range(56, 60): a("v_mov_b32 v%d, 0" % r)
        a("s_mov_b64 exec, 0xfffffff")
        a("ds_write_b128 v4, v[56:59] offset:4096"); a("ds_write_b128 v4, v[56:59] offset:%d" % (XSTR + 4096))
        a("s_mov_b64 exec, -1")
        a("v_add_u32 v5, 16, v10")
        a("s_lshr_b32 s58, s65, 4"); a("s_lshl_b32 s58, s58, 7"); a("s_add_u32 s60, s58, %d" % (C1 * 128))
        self.wait(60, 1, 16)
        self.mark(3)
        XD = 16
        for i in range(4):
            a("buffer_load_dwordx4 v[%d:%d], v10, s[%d:%d], 0 offen offset:%d" % (XD + 8 * i, XD + 8 * i + 3, RA, RA + 3, 1024 * i))
        for i in range(4):
            a("buffer_load_dword v%d, v5, s[%d:%d], 0 offen offset:%d" % (XD + 8 * i + 4, RA, RA + 3, 1024 * i))
        for i in range(4):
            d = XD + 8 * i
            a("s_waitcnt vmcnt(%d)" % (7 - i))
            a("ds_write_b128 v4, v[%d:%d] offset:%d" % (d, d + 3, XSTR + 1024 * i))
        for i in range(4):
            d = XD + 8 * i
            a("s_waitcnt vmcnt(%d)" % (3 - i))
            for j in range(4):
                a("v_alignbit_b32 v%d, v%d, v%d, 16" % (48 + j + 4 * (i & 1), d + j + 1, d + j))
            a("ds_write_b128 v4, v[%d:%d] offset:%d" % (48 + 4 * (i & 1), 51 + 4 * (i & 1), 1024 * i))
        a("s_cmp_lt_u32 s%d, 2" % S_WAVE)
        a("s_cselect_b32 s%d, s%d, s%d" % (RC, P_WG, P_WU)); a("s_cselect_b32 s%d, s%d, s%d" % (RC + 1, P_WG + 1, P_WU + 1))
        a("s_and_b32 s%d, s%d, 0xffff" % (RC + 1, RC + 1)); a("s_mov_b32 s%d, %d" % (RC + 2, 1024 * 7168)); a("s_mov_b32 s%d, 0x00020000" % (RC + 3))
        if True:
            a("s_lshl_b32 s58, s2, 2"); a("s_add_u32 s58, s58, s%d" % S_WAVE); a("s_mul_i32 s58, s58, %d" % self.xstr); a("s_add_u32 s58, s58, 0x%x" % WS_XCH)
            a("s_add_u32 s%d, s%d, s58" % (RE, P_WS)); a("s_addc_u32 s%d, s%d, 0" % (RE + 1, P_WS + 1))
            a("s_and_b32 s%d, s%d, 0xffff" % (RE + 1, RE + 1)); a("s_mov_b32 s%d, %d" % (RE + 2, self.xbytes)); a("s_mov_b32 s%d, 0x00020000" % (RE + 3))
            a("s_mov_b32 s59, 0")
        if "hhpf" in self.opt:
            self.ws_srd(RA, WS_HH, 128 * 112 * 1024)
            a("s_lshl_b32 s60, s2, 2"); a("s_add_u32 s60, s60, s%d" % S_WAVE); a("s_mul_i32 s60, s60, 14336"); a("s_add_u32 s61, s60, 6144")
            a("v_lshlrev_b32 v3, 7, v2")
            fl = "nt" if "hhnt" in self.opt else "sc1" if "hhsc1" in self.opt else ""
            a("buffer_load_dword v15, v3, s[%d:%d], s60 offen %s" % (RA, RA + 3, fl))
            a("buffer_load_dword v15, v3, s[%d:%d], s61 offen %s" % (RA, RA + 3, fl))
        a("s_waitcnt lgkmcnt(0)")
        self.mark(4)
        ACC = 192
        def A(s, i): return 64 + 64 * s + 4 * i
        def B(s, i): return 96 + 64 * s + 4 * i
        def reads(s, rho_off):
            out = []
            for i in range(8):
                out.append("ds_read_b128 v[%d:%d], v14 offset:%d" % (B(s, i), B(s, i) + 3, 3584 - 512 * i + rho_off))
                out.append("ds_read_b128 v[%d:%d], v12 offset:%d" % (A(s, i), A(s, i) + 3, 512 * i + rho_off))
            return out
        def mfmas(s):
            out = []
            for m in range(8):
                for (x, y) in [(i, m) for i in range(m + 1)] + [(m, i) for i in range(m)]:
                    if x + y <= 7:
                        t = ACC + 4 * (x + y)
                        out.append("v_mfma_f32_16x16x32_bf16 v[%d:%d], v[%d:%d], v[%d:%d], v[%d:%d]" % (
                            t, t + 3, A(s, x), A(s, x) + 3, B(s, y), B(s, y) + 3, t, t + 3))
            return out
        for r in reads(0, 0): a(r)
        a("s_waitcnt lgkmcnt(0)")
        for tau in range(8):
            t = ACC + 4 * tau
            a("v_mfma_f32_16x16x32_bf16 v[%d:%d], v[%d:%d], v[%d:%d], 0" % (t, t + 3, AD, AD + 3, B(0, tau), B(0, tau) + 3))
        a("s_mov_b32 s58, 4")
        loop = a.new_label("conv"); a.label(loop)
        if "qw1" not in self.opt:
            nq = a.new_label("noq")
            a("s_cmp_lg_u32 s58, 3"); a("s_cbranch_scc1 %s" % nq)
            self.q_loads()
            a.label(nq)
        for half in range(2):
            if "nopf1" not in self.opt:
                a("buffer_load_dword v15, v224, s[%d:%d], 0 offen" % (RC, RC + 3))
                a("v_add_u32 v224, %d, v224" % (64 * 7168))
            rd = reads(1 - half, 64 * (half + 1)); mf = mfmas(half)
            k = 0
            for i, m in enumerate(mf):
                a(m)
                if i % 2 == 0 and k < len(rd): a(rd[k]); k += 1
                if (self.x32 or half == 0) and "x3noclr" not in self.opt and "clrprep" not in self.opt:
                    if i == 33: a("buffer_store_dwordx4 a[%d:%d], v10, s[%d:%d], s59 offen sc1" % (SENT, SENT + 3, RE, RE + 3))
                    if i == 35: a("s_add_u32 s59, s59, 1024")
            a("s_waitcnt lgkmcnt(0)")
        a("v_add_u32 v12, 128, v12"); a("v_add_u32 v14, 128, v14")
        a("s_sub_u32 s58, s58, 1"); a("s_cmp_lg_u32 s58, 0"); a("s_cbranch_scc1 %s" % loop)
        self.mark(5)
        a("s_nop 7")
        for tau in range(8):
            t = ACC + 4 * tau; P = 16 + 8 * (tau & 1)
            a("v_cvt_pk_bf16_f32 v%d, v%d, v%d" % (P, t, t + 2)); a("v_cvt_pk_bf16_f32 v%d, v%d, v%d" % (P + 1, t + 1, t + 3))
            a("s_nop 1")
            a("v_mov_b32_dpp v%d, v%d quad_perm:[1,0,3,2] row_mask:0xf bank_mask:0xf" % (P + 2, P))
            a("v_mov_b32_dpp v%d, v%d quad_perm:[1,0,3,2] row_mask:0xf bank_mask:0xf" % (P + 3, P + 1))
            a("v_perm_b32 v%d, v%d, v%d, v226" % (P + 4, P + 2, P)); a("v_perm_b32 v%d, v%d, v%d, v226" % (P + 5, P + 3, P + 1))
            off = tau * (32 * 64 + 8 * 16)
            a("ds_write_b32 v227, v%d offset:%d" % (P + 4, off)); a("ds_write_b32 v227, v%d offset:%d" % (P + 5, off + 16))
        a("s_waitcnt lgkmcnt(0)")
        a("s_barrier")
        for i in range(4):
            a("ds_read_b128 v[%d:%d], v228 offset:%d" % (16 + 4 * i, 19 + 4 * i, i * (64 * 64 + 16 * 16)))
        for i in range(4):
            a("s_mov_b32 s58, %d" % (i * 64 * 16384))
            a("s_waitcnt lgkmcnt(%d)" % (3 - i))
            a("buffer_store_dwordx4 v[%d:%d], v229, s[%d:%d], s58 offen sc1" % (16 + 4 * i, 19 + 4 * i, RB, RB + 3))
        self.arrive(["s_and_b32 s58, s2, 15", "s_lshl_b32 s58, s58, 7", "s_add_u32 s60, s58, %d" % (C2 * 128),
                     "v_lshlrev_b32 v7, 11, v2", "v_add_u32 v7, s60, v7"], nlanes=16)
        self.mark(6)

    def shadow(self):
        a = self.a
        T = 104
        a("s_and_b32 s83, s%d, 7" % S_J); a("s_lshr_b32 s59, s%d, 3" % S_J)
        a("s_lshl_b32 s72, s%d, 2" % S_X); a("s_add_u32 s72, s72, s59")
        a("s_lshl_b32 s73, s83, 4"); a("s_lshl_b32 s59, s%d, 2" % S_WAVE); a("s_add_u32 s73, s73, s59")
        a("s_mul_i32 s74, s%d, 7168" % S_WAVE)
        a("s_mov_b32 s75, 0"); a("s_mov_b32 s76, 0"); a("s_mov_b32 s77, 0"); a("s_mov_b32 s78, 0")
        a("s_and_b32 s58, s%d, 1" % S_WAVE); a("s_lshl_b32 s58, s58, 5")
        a("s_mul_i32 s59, s72, 224")
        a("s_mov_b32 s62, 4682"); a("s_mov_b32 s63, 7168")
        a("s_and_b32 s101, s72, 1"); a("s_lshl_b32 s101, s101, 1")
        for i in range(7):
            a("v_add_u32 v%d, %d, v2" % (T, 64 * i))
            a("v_mul_u32_u24 v%d, s62, v%d" % (T + 1, T)); a("v_lshrrev_b32 v%d, 16, v%d" % (T + 1, T + 1))
            a("v_mul_u32_u24 v%d, 14, v%d" % (T + 2, T + 1)); a("v_sub_u32 v%d, v%d, v%d" % (T + 2, T, T + 2))
            a("v_add_u32 v%d, s101, v%d" % (T + 2, T + 2)); a("v_subrev_u32 v%d, 14, v%d" % (T + 4, T + 2)); a("v_min_u32 v%d, v%d, v%d" % (T + 2, T + 2, T + 4))
            a("v_bfe_u32 v%d, v%d, 2, 2" % (T + 3, T + 1)); a("v_lshlrev_b32 v%d, 3, v%d" % (T + 3, T + 3))
            a("v_lshrrev_b32 v%d, 4, v%d" % (T + 4, T + 1)); a("v_lshl_add_u32 v%d, v%d, 2, v%d" % (T + 3, T + 4, T + 3))
            a("v_and_b32 v%d, 3, v%d" % (T + 4, T + 1)); a("v_add3_u32 v%d, v%d, v%d, s58" % (T + 3, T + 3, T + 4))
            a("v_mul_u32_u24 v%d, s63, v%d" % (T + 3, T + 3))
            a("v_lshl_add_u32 v%d, v%d, 4, v%d" % (T + 3, T + 2, T + 3))
            a("v_add_u32 v%d, s59, v%d" % (T + 3, T + 3))
            if i & 3: a("v_subrev_u32 v%d, %d, v%d" % (T + 3, 1024 * (i & 3), T + 3))
            self.stash("g1w%d" % i, T + 3)
        a("v_lshlrev_b32 v%d, 4, v2" % T)
        a("s_lshl_b32 s58, s73, 15"); a("v_add_u32 v%d, s58, v%d" % (T + 1, T)); self.stash("g1t", T + 1)
        a("v_lshrrev_b32 v%d, 2, v2" % (T + 1)); a("v_mul_u32_u24 v%d, 224, v%d" % (T + 1, T + 1))
        a("v_and_b32 v%d, 3, v2" % (T + 2)); a("v_lshl_add_u32 v%d, v%d, 3, v%d" % (T + 1, T + 2, T + 1)); self.stash("g1f", T + 1)
        a("v_and_b32 v%d, 15, v2" % (T + 1)); a("v_lshlrev_b32 v%d, 4, v%d" % (T + 1, T + 1)); a("v_lshrrev_b32 v%d, 5, v2" % (T + 2))
        a("v_lshl_add_u32 v%d, v%d, 8, v%d" % (T + 1, T + 2, T + 1)); a("v_bfe_u32 v%d, v2, 4, 1" % (T + 2))
        a("v_lshl_add_u32 v%d, v%d, 9, v%d" % (T + 3, T + 2, T + 1)); self.stash("g1ep", T + 3)
        a("v_mul_u32_u24 v%d, %d, v%d" % (T + 2, 112 * 1024, T + 2)); a("v_add_u32 v%d, v%d, v%d" % (T + 3, T + 2, T + 1)); self.stash("g1es", T + 3)
        a("s_and_b32 s86, s%d, 1" % S_X)
        a("s_bfe_u32 s58, s%d, 0x10001" % S_X); a("s_lshl_b32 s58, s58, 3"); a("s_and_b32 s59, s%d, 7" % S_J); a("s_add_u32 s84, s58, s59")
        a("s_lshr_b32 s58, s%d, 2" % S_X); a("s_lshl_b32 s58, s58, 2"); a("s_lshr_b32 s59, s%d, 3" % S_J); a("s_add_u32 s85, s58, s59")
        a("s_lshl_b32 s87, s84, 3"); a("s_lshl_b32 s58, s%d, 1" % S_WAVE); a("s_add_u32 s87, s87, s58")
        a("s_mul_i32 s58, s86, 1792"); a("s_lshr_b32 s59, s%d, 1" % S_WAVE); a("s_mul_i32 s59, s59, %d" % (32 if "x2nat" in self.opt else 224)); a("s_add_u32 s58, s58, s59")
        a("s_lshl_b32 s58, s58, 11")
        a("s_lshl_b32 s59, s85, 8"); a("s_add_u32 s58, s58, s59")
        a("s_and_b32 s59, s%d, 1" % S_WAVE); a("s_xor_b32 s59, s59, s86"); a("s_lshl_b32 s59, s59, 7"); a("s_add_u32 s58, s58, s59")
        a("v_lshrrev_b32 v%d, 5, v2" % T); a("v_lshlrev_b32 v%d, 3, v%d" % (T, T)); a("v_bfe_u32 v%d, v2, 3, 2" % (T + 1))
        a("v_add_u32 v%d, v%d, v%d" % (T, T, T + 1)); a("v_lshlrev_b32 v%d, 11, v%d" % (T, T))
        a("v_bfe_u32 v%d, v2, 4, 2" % (T + 1)); a("v_lshlrev_b32 v%d, 1, v%d" % (T + 1, T + 1)); a("v_and_b32 v%d, 7, v2" % (T + 2))
        a("v_xor_b32 v%d, v%d, v%d" % (T + 1, T + 1, T + 2))
        a("v_lshl_add_u32 v%d, v%d, 4, v%d" % (T, T + 1, T)); a("v_add_u32 v%d, s58, v%d" % (T, T)); self.stash("g2w", T)
        a("v_lshrrev_b32 v%d, 2, v2" % T); a("v_lshlrev_b32 v%d, 7, v%d" % (T, T))
        a("v_and_b32 v%d, 3, v2" % (T + 1)); a("v_lshl_add_u32 v%d, v%d, 3, v%d" % (T, T + 1, T))
        a("v_bfe_u32 v%d, v2, 3, 2" % (T + 1))
        for c in range(4):
            a("v_xor_b32 v%d, %d, v%d" % (T + 2, c, T + 1)); a("v_lshl_add_u32 v%d, v%d, 5, v%d" % (T + 2, T + 2, T)); self.stash("g2f%d" % c, T + 2)
        a("s_lshl_b32 s88, s%d, 12" % S_WAVE)
        a("v_lshlrev_b32 v%d, 4, v2" % T)
        a("s_mul_i32 s58, s87, %d" % (112 * 1024)); a("s_mul_i32 s59, s86, %d" % (56 * 1024)); a("s_add_u32 s58, s58, s59")
        a("v_add_u32 v%d, s58, v%d" % (T + 1, T)); self.stash("g2t0", T + 1)
        a("v_add_u32 v%d, %d, v%d" % (T + 1, 112 * 1024, T + 1)); self.stash("g2t1", T + 1)
        a("v_and_b32 v%d, 15, v2" % T); a("v_lshlrev_b32 v%d, 11, v%d" % (T, T))
        a("v_lshrrev_b32 v%d, 4, v2" % (T + 1)); a("v_lshl_add_u32 v%d, v%d, 3, v%d" % (T, T + 1, T))
        a("s_lshl_b32 s58, s87, 15"); a("s_lshl_b32 s59, s85, 8"); a("s_add_u32 s58, s58, s59"); a("s_lshl_b32 s59, s86, 7"); a("s_add_u32 s58, s58, s59")
        a("v_add_u32 v%d, s58, v%d" % (T, T)); self.stash("g2o", T)
        a("v_and_b32 v%d, 15, v2" % T); a("v_lshlrev_b32 v%d, 11, v%d" % (T, T))
        a("v_bfe_u32 v%d, v2, 4, 1" % (T + 1)); a("v_lshl_add_u32 v%d, v%d, 5, v%d" % (T, T + 1, T))
        a("v_lshrrev_b32 v%d, 5, v2" % (T + 1)); a("v_lshl_add_u32 v%d, v%d, 4, v%d" % (T, T + 1, T))
        a("v_add_u32 v%d, s58, v%d" % (T, T)); self.stash("g2o4", T)
        a("v_lshrrev_b32 v%d, 2, v2" % T); a("v_lshrrev_b32 v%d, 1, v%d" % (T + 1, T)); a("v_and_b32 v%d, 1, v%d" % (T, T))
        a("v_lshl_add_u32 v%d, v%d, 2, v%d" % (T, T, T + 1))
        if "rot2" in self.opt:
            a("s_lshr_b32 s58, s%d, 3" % S_J); a("s_add_u32 s58, s58, s%d" % S_J); a("v_add_u32 v%d, s58, v2" % (T + 1)); a("v_and_b32 v%d, 3, v%d" % (T + 1, T + 1))
        elif "rot2b" in self.opt:
            a("v_add_u32 v%d, s%d, v2" % (T + 1, S_J)); a("v_and_b32 v%d, 3, v%d" % (T + 1, T + 1))
        elif "rot2c" in self.opt:
            a("s_lshr_b32 s58, s%d, 3" % S_J); a("v_add_u32 v%d, s58, v2" % (T + 1)); a("v_and_b32 v%d, 3, v%d" % (T + 1, T + 1))
        else:
            a("v_and_b32 v%d, 3, v2" % (T + 1))
        a("v_mad_u32_u24 v%d, v%d, 14, v%d" % (T, T + 1, T))
        if "x2nat" in self.opt: a("v_lshlrev_b32 v%d, 1, v2" % T)
        a("v_lshlrev_b32 v%d, 16, v%d" % (T, T)); self.stash("g2tab", T)
        for t in range(4): a("v_readlane_b32 s%d, v%d, %d" % (G2_ROW[t], T, t))
        a("s_lshl_b32 s58, s83, 1"); a("s_lshr_b32 s59, s72, 4"); a("s_add_u32 s58, s58, s59"); a("s_lshl_b32 s58, s58, 2"); a("s_add_u32 s58, s58, s%d" % S_WAVE)
        a("s_lshl_b32 s58, s58, 8"); a("s_add_u32 s58, s58, %d" % (C4 * 128))
        a("v_lshlrev_b32 v%d, 7, v2" % T); a("v_add_u32 v%d, s58, v%d" % (T, T)); a("v_mov_b32 v%d, 0x7fffff00" % (T + 1))
        a("v_cmp_gt_u32 vcc, 2, v2"); a("s_nop 1"); a("v_cndmask_b32 v%d, v%d, v%d, vcc" % (T, T + 1, T)); self.stash("c4a", T)
        a("s_lshr_b32 s58, s84, 1"); a("s_lshl_b32 s58, s58, 1"); a("s_add_u32 s58, s58, s86"); a("s_lshl_b32 s58, s58, 2")
        a("s_and_b32 s59, s84, 1"); a("s_lshl_b32 s59, s59, 1"); a("s_add_u32 s58, s58, s59"); a("s_lshr_b32 s59, s%d, 1" % S_WAVE); a("s_add_u32 s58, s58, s59")
        a("s_lshl_b32 s58, s58, 1"); a("s_lshr_b32 s59, s%d, 2" % S_X); a("s_add_u32 s58, s58, s59"); a("s_lshl_b32 s58, s58, 7"); a("s_add_u32 s58, s58, %d" % (C4 * 128))
        a("v_mov_b32 v%d, s58" % T); self.stash("c4p", T)
        a("v_mov_b32 v%d, 0x7fffffff" % (T + 3))
        a("s_lshl_b32 s58, s%d, 1" % S_J); a("s_and_b32 s59, s%d, 1" % S_WAVE); a("s_add_u32 s58, s58, s59")
        a("s_mul_i32 s62, s58, 7168"); a("s_mul_i32 s59, s%d, 896" % S_X); a("s_add_u32 s62, s62, s59")
        a("v_lshlrev_b32 v%d, 7, v2" % T); a("v_add_u32 v%d, s62, v%d" % (T + 1, T))
        a("v_cmp_gt_u32 vcc, 7, v2"); a("s_nop 1"); a("v_cndmask_b32 v224, v%d, v%d, vcc" % (T + 3, T + 1))
        if self.pffast:
            a("s_and_b32 s58, s%d, 7" % S_J); a("s_lshr_b32 s62, s%d, 4" % S_J); a("s_lshl_b32 s62, s62, 3"); a("s_add_u32 s100, s58, s62")
            a("s_lshl_b32 s58, s100, 1"); a("s_and_b32 s62, s%d, 1" % S_WAVE); a("s_add_u32 s58, s58, s62")
        a("s_lshl_b32 s58, s58, 2"); a("s_add_u32 s58, s58, 512"); a("s_mul_i32 s58, s58, 7168"); a("s_add_u32 s58, s58, s59")
        a("s_mov_b32 s62, 9363")
        a("v_mul_u32_u24 v%d, s62, v2" % T); a("v_lshrrev_b32 v%d, 16, v%d" % (T, T))
        a("v_mul_u32_u24 v%d, 7, v%d" % (T + 1, T)); a("v_sub_u32 v%d, v2, v%d" % (T + 1, T + 1))
        a("v_mul_u32_u24 v%d, 7168, v%d" % (T, T)); a("v_lshl_add_u32 v%d, v%d, 7, v%d" % (T, T + 1, T)); a("v_add_u32 v%d, s58, v%d" % (T, T))
        a("v_cmp_gt_u32 vcc, 28, v2"); a("s_nop 1"); a("v_cndmask_b32 v%d, v%d, v%d, vcc" % (T, T + 3, T)); self.stash("pfw", T)
        a("s_lshl_b32 s58, s%d, 2" % (100 if self.pffast else S_J)); a("s_add_u32 s58, s58, s%d" % S_WAVE); a("s_mul_i32 s58, s58, 5"); a("s_add_u32 s58, s58, 1152")
        a("s_mul_i32 s59, s86, 1792"); a("s_add_u32 s58, s58, s59"); a("s_lshl_b32 s58, s58, 11")
        a("s_lshr_b32 s59, s85, 2"); a("s_lshl_b32 s59, s59, 10"); a("s_add_u32 s58, s58, s59")
        a("v_lshrrev_b32 v%d, 3, v2" % T); a("v_lshlrev_b32 v%d, 11, v%d" % (T, T)); a("v_and_b32 v%d, 7, v2" % (T + 1))
        a("v_lshl_add_u32 v%d, v%d, 7, v%d" % (T, T + 1, T)); a("v_add_u32 v%d, s58, v%d" % (T, T))
        a("v_cmp_gt_u32 vcc, 40, v2"); a("s_nop 1"); a("v_cndmask_b32 v%d, v%d, v%d, vcc" % (T, T + 3, T)); self.stash("pfd", T)
        if self.pffast:
            a("s_and_b32 s92, s%d, 1" % S_J)
            a("s_lshr_b32 s58, s%d, 3" % S_J); a("s_add_u32 s58, s58, 1"); a("s_and_b32 s58, s58, 2"); a("s_or_b32 s92, s92, s58")
        else:
            a("s_and_b32 s92, s%d, 3" % S_J)
        a("v_and_b32 v%d, 1, v2" % T); a("v_lshrrev_b32 v%d, 1, v2" % (T + 1))
        a("v_lshlrev_b32 v%d, 11, v%d" % (T + 2, T)); a("v_lshl_add_u32 v%d, v%d, 4, v%d" % (T + 2, T + 1, T + 2)); self.stash("lnh", T + 2)
        a("s_lshl_b32 s58, s%d, 4" % S_WAVE); a("s_add_u32 s58, s58, %d" % PSTG)
        a("v_lshlrev_b32 v%d, 6, v2" % (T + 2)); a("v_add_u32 v%d, s58, v%d" % (T + 2, T + 2)); self.stash("lny", T + 2)
        a("s_lshl_b32 s58, s%d, 5" % S_WAVE); a("s_add_u32 s58, s58, %d" % CSTG)
        a("v_lshlrev_b32 v%d, 7, v%d" % (T + 2, T + 1)); a("v_lshl_add_u32 v%d, v%d, 4, v%d" % (T + 2, T, T + 2)); a("v_add_u32 v%d, s58, v%d" % (T + 2, T + 2))
        self.stash("lnw", T + 2)
        a("v_lshlrev_b32 v%d, 4, v0" % (T + 2)); a("v_add_u32 v%d, %d, v%d" % (T + 2, CSTG, T + 2)); self.stash("lnr", T + 2)
        a("v_lshrrev_b32 v%d, 5, v0" % (T + 2)); a("v_lshlrev_b32 v%d, 10, v%d" % (T + 2, T + 2))
        a("v_bfe_u32 v%d, v0, 3, 2" % (T + 3)); a("v_lshl_add_u32 v%d, v%d, 8, v%d" % (T + 2, T + 3, T + 2))
        a("v_and_b32 v%d, 7, v0" % (T + 3)); a("v_lshl_add_u32 v%d, v%d, 4, v%d" % (T + 2, T + 3, T + 2)); self.stash("lng", T + 2)
        a("v_and_b32 v%d, 1, v2" % T)
        a("v_mov_b32 v226, 0x05040100"); a("v_mov_b32 v%d, 0x03020706" % (T + 1))
        a("v_cmp_eq_u32 vcc, 1, v%d" % T); a("s_nop 1"); a("v_cndmask_b32 v226, v226, v%d, vcc" % (T + 1))
        a("v_bfe_u32 v%d, v2, 1, 3" % (T + 1)); a("v_lshrrev_b32 v%d, 4, v2" % (T + 2))
        a("v_mul_u32_u24 v227, 272, v%d" % (T + 1)); a("v_lshl_add_u32 v227, v%d, 6, v227" % (T + 2)); a("v_lshl_add_u32 v227, v%d, 5, v227" % T)
        a("s_lshl_b32 s58, s%d, 2" % S_WAVE); a("s_add_u32 s58, s58, %d" % CSTG); a("v_add_u32 v227, s58, v227")
        a("v_lshrrev_b32 v%d, 2, v0" % T); a("v_and_b32 v%d, 3, v0" % (T + 1)); a("v_lshrrev_b32 v%d, 4, v0" % (T + 2))
        a("v_lshlrev_b32 v228, 6, v%d" % T); a("v_lshl_add_u32 v228, v%d, 4, v228" % (T + 2)); a("v_lshl_add_u32 v228, v%d, 4, v228" % (T + 1))
        a("v_add_u32 v228, %d, v228" % CSTG)
        a("v_lshlrev_b32 v229, 14, v%d" % T); a("v_lshl_add_u32 v229, v%d, 4, v229" % (T + 1)); a("s_lshl_b32 s58, s65, 6"); a("v_add_u32 v229, s58, v229")

    def g1_setup(self):
        a = self.a
        a("s_cmp_lt_u32 s%d, 2" % S_WAVE)
        a("s_cselect_b32 s%d, s%d, s%d" % (RA, P_WG, P_WU)); a("s_cselect_b32 s%d, s%d, s%d" % (RA + 1, P_WG + 1, P_WU + 1))
        a("s_and_b32 s%d, s%d, 0xffff" % (RA + 1, RA + 1)); a("s_mov_b32 s%d, %d" % (RA + 2, 1024 * 7168)); a("s_mov_b32 s%d, 0x00020000" % (RA + 3))
        for i in range(7): self.unstash("g1w%d" % i, 8 + i)
        self.in_srd(RE, P_WD, 3584 * 2048)
    def g1_wload_list(self):
        L = []
        for st in range(3):
            L.append("s_add_u32 m0, s75, s74")
            for i in range(7):
                if i == 4: L.append("s_add_u32 m0, m0, 4096")
                L.append(self.g1_dma(i))
            L.append("s_add_u32 s77, s77, %d" % (64 * 7168)); L.append("s_add_u32 s75, s75, %d" % G1_STAGE)
        return L
    def merged(self, body, fillers, start=0):
        keep = self.a; tmp = Asm(); tmp.uid = keep.uid + 1000; self.a = tmp
        body()
        self.a = keep; keep.uid = tmp.uid
        lines = tmp.lines
        n = max(1, (len(lines) - start) // (len(fillers) + 1))
        k = 0
        for i, l in enumerate(lines):
            keep.lines.append(l)
            if i >= start and (i - start) % n == n - 1 and k < len(fillers): keep(fillers[k]); k += 1
        for x in fillers[k:]: keep("s_nop 0"); keep(x)
    def g1_dma(self, i):
        fl = "nt" if "g1nt" in self.opt else "sc1" if "g1sc1" in self.opt else ""
        return "buffer_load_dwordx4 v%d, s[%d:%d], s77 offen offset:%d %s lds" % (8 + i, RA, RA + 3, 1024 * (i & 3), fl)
    def g1_wload_all(self):
        a = self.a
        a("s_add_u32 m0, s75, s74"); a("s_nop 0")
        for i in range(7):
            if i == 4: a("s_add_u32 m0, m0, 4096"); a("s_nop 0")
            a(self.g1_dma(i))
        a("s_add_u32 s77, s77, %d" % (64 * 7168)); a("s_add_u32 s75, s75, %d" % G1_STAGE)

    def reduce4(self, regs, sdst):
        a = self.a
        def step(mod):
            for r in regs: a("v_add_f32_dpp v%d, v%d, v%d %s" % (r, r, r, mod))
        a("s_nop 1")
        step("quad_perm:[1,0,3,2] row_mask:0xf bank_mask:0xf"); step("quad_perm:[2,3,0,1] row_mask:0xf bank_mask:0xf")
        step("row_half_mirror row_mask:0xf bank_mask:0xf"); step("row_mirror row_mask:0xf bank_mask:0xf")
        step("row_bcast:15 row_mask:0xa bank_mask:0xf"); step("row_bcast:31 row_mask:0xc bank_mask:0xf")
        a("s_nop 0")
        for r, s in zip(regs, sdst): a("v_readlane_b32 s%d, v%d, 63" % (s, r))
    def ln_scalars(self, sS, T):
        a = self.a
        t0, t1, t2, t3, t4, t5 = T + 8, T + 9, T + 10, T + 11, T + 12, T + 13
        M = S_MASK
        a("s_nop 1")
        a("v_mul_f32 v%d, s%d, v%d" % (t0, sS[0], T + 14)); a("v_mul_f32 v%d, s%d, v%d" % (t1, sS[2], T + 14))
        a("v_mul_f32 v%d, s%d, v%d" % (t2, sS[1], T + 14)); a("v_mul_f32 v%d, s%d, v%d" % (t3, sS[3], T + 14))
        a("v_fma_f32 v%d, -v%d, v%d, v%d" % (t2, t0, t0, t2)); a("v_fma_f32 v%d, -v%d, v%d, v%d" % (t3, t1, t1, t3))
        a("v_max_f32 v%d, 0, v%d" % (t2, t2)); a("v_max_f32 v%d, 0, v%d" % (t3, t3))
        a("v_cvt_pk_bf16_f32 v%d, v%d, v%d" % (t4, t0, t1)); a("v_cvt_pk_bf16_f32 v%d, v%d, v%d" % (t5, t2, t3))
        a("v_lshlrev_b32 v%d, 16, v%d" % (t0, t4)); a("v_and_b32 v%d, s%d, v%d" % (t1, M, t4))
        a("v_lshlrev_b32 v%d, 16, v%d" % (t2, t5)); a("v_and_b32 v%d, s%d, v%d" % (t3, M, t5))
        a("v_add_f32 v%d, s%d, v%d" % (t2, S_EPS, t2)); a("v_add_f32 v%d, s%d, v%d" % (t3, S_EPS, t3))
        a("v_cvt_pk_bf16_f32 v%d, v%d, v%d" % (t5, t2, t3))
        a("v_lshlrev_b32 v%d, 16, v%d" % (t2, t5)); a("v_and_b32 v%d, s%d, v%d" % (t3, M, t5))
        a("v_sqrt_f32 v%d, v%d" % (t2, t2)); a("v_sqrt_f32 v%d, v%d" % (t3, t3)); a("s_nop 0")
        a("v_cvt_pk_bf16_f32 v%d, v%d, v%d" % (t5, t2, t3))
        a("v_lshlrev_b32 v%d, 16, v%d" % (t2, t5)); a("v_and_b32 v%d, s%d, v%d" % (t3, M, t5))
        a("v_rcp_f32 v%d, v%d" % (T + 0, t2)); a("v_rcp_f32 v%d, v%d" % (T + 4, t3)); a("s_nop 0")
        a("v_mul_f32 v%d, v%d, v%d" % (T + 2, t0, T + 0)); a("v_mul_f32 v%d, v%d, v%d" % (T + 6, t1, T + 4))
        a("v_sub_f32 v%d, 0, v%d" % (T + 2, T + 2)); a("v_sub_f32 v%d, 0, v%d" % (T + 6, T + 6))
    def stats(self, X, acc):
        a = self.a
        for tok in range(2):
            b = X + 16 * tok; S = acc + 4 * tok; Q = S + 2
            a("v_pk_add_f32 v[%d:%d], v[%d:%d], v[%d:%d]" % (S, S + 1, b, b + 1, b + 2, b + 3))
            a("v_pk_mul_f32 v[%d:%d], v[%d:%d], v[%d:%d]" % (Q, Q + 1, b, b + 1, b, b + 1))
        for p in range(1, 8):
            for tok in range(2):
                b = X + 16 * tok + 2 * p; S = acc + 4 * tok; Q = S + 2
                if p >= 2: a("v_pk_add_f32 v[%d:%d], v[%d:%d], v[%d:%d]" % (S, S + 1, S, S + 1, b, b + 1))
                a("v_pk_fma_f32 v[%d:%d], v[%d:%d], v[%d:%d], v[%d:%d]" % (Q, Q + 1, b, b + 1, b, b + 1, Q, Q + 1))
        for r in (0, 2, 4, 6): a("v_add_f32 v%d, v%d, v%d" % (acc + r, acc + r, acc + r + 1))
    def ln(self):
        a = self.a
        M = S_MASK
        X, L1, Y, YR, HP, ACC, T = 32, 64, 96, 128, 144, 160, 168
        LP, U = 128, 96
        def ln1():
            a = self.a
            a("v_mov_b32 v%d, 0x3a800000" % (T + 14))
            for tok in range(2):
                for p in range(8):
                    dst = X + 16 * tok + 2 * p
                    a("v_accvgpr_read_b32 v3, a%d" % (160 + 8 * tok + p))
                    a("v_lshlrev_b32 v%d, 16, v3" % dst); a("v_and_b32 v%d, s%d, v3" % (dst + 1, M))
            self.stats(X, ACC)
            self.reduce4([ACC, ACC + 2, ACC + 4, ACC + 6], [60, 61, 62, 63])
            self.ln_scalars([60, 61, 62, 63], T)
            for tok in range(2):
                r, c = T + 4 * tok, T + 4 * tok + 2
                for p in range(8):
                    x = X + 16 * tok + 2 * p; l = L1 + 16 * tok + 2 * p
                    a("v_pk_fma_f32 v[%d:%d], v[%d:%d], v[%d:%d], v[%d:%d] op_sel_hi:[1,0,0]" % (l, l + 1, x, x + 1, r, r + 1, c, c + 1))
        self.merged(ln1, self.g1_wload_list())
        self.ws_srd(RB, WS_YB, 4194304); self.ws_srd(RC, WS_H, 4194304); self.ws_srd(RD, WS_LN2, 4194304)
        a("v_lshlrev_b32 v24, 4, v2")
        self.unstash("lnh", 4); self.unstash("lny", 5); self.unstash("lnw", 16); self.unstash("lnr", 17); self.unstash("lng", 18)
        a("s_lshl_b32 s61, s%d, 12" % S_WAVE); a("s_lshl_b32 s62, s2, 14"); a("s_add_u32 s62, s62, s61")
        a("s_add_u32 s61, s61, %d" % PSTG)
        a("s_and_b32 s60, s2, 15"); a("s_lshl_b32 s60, s60, 11"); a("s_add_u32 s60, s60, %d" % (C2 * 128))
        self.mark(7)
        self.wait(60, 16, 16)
        self.mark(8)
        a("s_mov_b32 m0, s61"); a("s_nop 0")
        for i in range(4):
            a("buffer_load_dwordx4 v24, s[%d:%d], s62 offen offset:%d lds" % (RB, RB + 3, 1024 * i))
        a("s_waitcnt vmcnt(0)")
        a("s_barrier")
        for i in range(4):
            a("ds_read_b128 v[%d:%d], v5 offset:%d" % (YR + 4 * i, YR + 4 * i + 3, 4096 * i))
        for i in range(4):
            a("s_waitcnt lgkmcnt(%d)" % (3 - i))
            for c in range(4):
                a("v_lshlrev_b32 v%d, 16, v%d" % (Y + 4 * i + c, YR + 4 * i + c)); a("v_and_b32 v%d, s%d, v%d" % (Y + 16 + 4 * i + c, M, YR + 4 * i + c))
        for tok in range(2):
            for p in range(8):
                x = X + 16 * tok + 2 * p; y = Y + 16 * tok + 2 * p; l = L1 + 16 * tok + 2 * p
                a("v_pk_fma_f32 v[%d:%d], v[%d:%d], v[%d:%d], v[%d:%d]" % (l, l + 1, l, l + 1, y, y + 1, x, x + 1))
                a("v_cvt_pk_bf16_f32 v%d, v%d, v%d" % (HP + 8 * tok + p, l, l + 1))
        HU = 184
        a("s_mov_b32 vcc_lo, 0x55555555"); a("s_mov_b32 vcc_hi, 0x55555555"); a("s_nop 1")
        for i in range(4):
            for d in range(2):
                a("v_cndmask_b32_dpp v%d, v%d, v%d, vcc quad_perm:[1,0,3,2] row_mask:0xf bank_mask:0xf" % (HU + 4 * i + d, HP + 8 + 2 * i + d, HP + 2 * i + d))
        a("s_mov_b32 vcc_lo, 0xaaaaaaaa"); a("s_mov_b32 vcc_hi, 0xaaaaaaaa"); a("s_nop 1")
        for i in range(4):
            for d in range(2):
                a("v_cndmask_b32_dpp v%d, v%d, v%d, vcc quad_perm:[1,0,3,2] row_mask:0xf bank_mask:0xf" % (HU + 4 * i + 2 + d, HP + 2 * i + d, HP + 8 + 2 * i + d))
        for i in range(4):
            if "x3noh" in self.opt: continue
            a("buffer_store_dwordx4 v[%d:%d], v4, s[%d:%d], s70 offen offset:%d sc1" % (HU + 4 * i, HU + 4 * i + 3, RC, RC + 3, 512 * i))
        for tok in range(2):
            for p in range(8):
                src = HP + 8 * tok + p; dst = X + 16 * tok + 2 * p
                a("v_lshlrev_b32 v%d, 16, v%d" % (dst, src)); a("v_and_b32 v%d, s%d, v%d" % (dst + 1, M, src))
        self.stats(X, ACC)
        self.reduce4([ACC, ACC + 2, ACC + 4, ACC + 6], [60, 61, 62, 63])
        self.ln_scalars([60, 61, 62, 63], T)
        for tok in range(2):
            r, c = T + 4 * tok, T + 4 * tok + 2
            for p in range(8):
                x = X + 16 * tok + 2 * p
                a("v_pk_fma_f32 v[%d:%d], v[%d:%d], v[%d:%d], v[%d:%d] op_sel_hi:[1,0,0]" % (ACC, ACC + 1, x, x + 1, r, r + 1, c, c + 1))
                a("v_cvt_pk_bf16_f32 v%d, v%d, v%d" % (LP + 8 * tok + p, ACC, ACC + 1))
        a("s_mov_b32 vcc_lo, 0x55555555"); a("s_mov_b32 vcc_hi, 0x55555555"); a("s_nop 1")
        for i in range(4):
            for d in range(2):
                a("v_cndmask_b32_dpp v%d, v%d, v%d, vcc quad_perm:[1,0,3,2] row_mask:0xf bank_mask:0xf" % (U + 4 * i + d, LP + 8 + 2 * i + d, LP + 2 * i + d))
        a("s_mov_b32 vcc_lo, 0xaaaaaaaa"); a("s_mov_b32 vcc_hi, 0xaaaaaaaa"); a("s_nop 1")
        for i in range(4):
            for d in range(2):
                a("v_cndmask_b32_dpp v%d, v%d, v%d, vcc quad_perm:[1,0,3,2] row_mask:0xf bank_mask:0xf" % (U + 4 * i + 2 + d, LP + 2 * i + d, LP + 8 + 2 * i + d))
        for i in range(4):
            a("ds_write_b128 v16, v[%d:%d] offset:%d" % (U + 4 * i, U + 4 * i + 3, 4096 * i))
        a("s_lshr_b32 s58, s2, 1"); a("s_lshl_b32 s58, s58, 15"); a("s_and_b32 s59, s2, 1"); a("s_lshl_b32 s59, s59, 7"); a("s_add_u32 s58, s58, s59")
        a("s_waitcnt lgkmcnt(0)")
        a("s_barrier")
        for i in range(4):
            a("ds_read_b128 v[%d:%d], v17 offset:%d" % (LP + 4 * i, LP + 4 * i + 3, 4096 * i))
        for i in range(4):
            a("s_add_u32 s59, s58, %d" % (8192 * i))
            a("s_waitcnt lgkmcnt(%d)" % (3 - i))
            a("buffer_store_dwordx4 v[%d:%d], v18, s[%d:%d], s59 offen sc1" % (LP + 4 * i, LP + 4 * i + 3, RD, RD + 3))
        self.mark(9)
        self.unstash("g1t", 20); self.unstash("g1f", 15); self.unstash("g2w", 25)
        for c in range(4): self.unstash("g2f%d" % c, 26 + c)
        self.unstash("pfd", 30); self.unstash("pfw", 31)
        for tt in range(1, 4): a("v_add_u32 v%d, %d, v20" % (20 + tt, 32768 * tt))
        self.arrive(["s_lshr_b32 s58, s2, 5", "s_lshl_b32 s58, s58, 4", "s_and_b32 s59, s2, 1", "s_add_u32 s58, s58, s59", "s_lshl_b32 s58, s58, 7",
                     "s_add_u32 s60, s58, %d" % (C3 * 128), "v_lshlrev_b32 v7, 8, v2", "v_add_u32 v7, s60, v7"], nlanes=8)
        self.mark(10)

    def g2_dma(self, i, soff):
        fl = "nt" if "g2nt" in self.opt else "sc1" if "g2sc1" in self.opt else ""
        return "buffer_load_dwordx4 v%d, s[%d:%d], s%d offen offset:%d %s lds" % (8 + i, RE, RE + 3, soff, 1024 * i, fl)
    def g2_voffs(self):
        return ["v_add_u32 v%d, %d, v25" % (8 + i, 2048 * (16 * (i & 1) + 4 * (i >> 1)) - 1024 * i) for i in range(4)]

    def gemm1(self):
        a = self.a
        ACC, TOK, WF, PD = 32, 0, 128, 5
        def acc(ct, tt): return ACC + (ct * 4 + tt) * 4
        def wreg(F): return WF + 4 * (F % 7)
        def lreg(F):
            return 4 * F if F < 16 else 160 + 4 * (F - 16) if F < 20 else 204 + 4 * (F - 20)
        def foff(F, jh):
            kk, ct = F // 14, F % 14
            return (ct // 7) * 14336 + kk * 7168 + jh * 3584 + (ct % 7) * 32
        def tokload(slot, j):
            kk, tt = j >> 2, j & 3
            r = TOK + 32 * slot + 16 * kk + 4 * tt
            fl = "nt" if "g1tnt" in self.opt else "" if "g1tpl" in self.opt else "sc1"
            return "buffer_load_dwordx4 a[%d:%d], v%d, s[%d:%d], s78 offen offset:%d %s" % (r, r + 3, 20 + tt, RD, RD + 3, 1024 * kk, fl)
        def mfma(c, w, t): return "v_mfma_f32_16x16x32_bf16 v[%d:%d], a[%d:%d], a[%d:%d], v[%d:%d]" % (c, c + 3, w, w + 3, t, t + 3, c, c + 3)
        def dsr(q, tag, reg, addr, off):
            return lambda: (q.issue(tag), "ds_read_b64_tr_b16 a[%d:%d], v%d offset:%d" % (reg, reg + 1, addr, off))[1]
        def emit(x):
            if callable(x): x = x()
            if x: a(x)
        pf = "nopf2" not in self.opt
        npf = 2 if pf else 0
        def pfops():
            return ["buffer_load_dword v7, v30, s[%d:%d], 0 offen" % (RE, RE + 3), "buffer_load_dword v7, v31, s[%d:%d], 0 offen" % (RC, RC + 3)]
        def pfturn(u):
            return ["s_cmp_eq_u32 s92, %d" % (((u + 1) & 1) if self.pffast else u), "s_cselect_b32 s%d, %d, 0" % (RE + 2, 3584 * 2048), "s_cselect_b32 s%d, %d, 0" % (RC + 2, 1024 * 7168)]
        if pf:
            for i in range(4): a("s_mov_b32 s%d, s%d" % (RC + i, RA + i))
            a("s_mov_b32 s%d, 0" % (RC + 2)); a("s_mov_b32 s%d, 0" % (RE + 2))
        self.ws_srd(RB, WS_HH, 128 * 112 * 1024)
        a("s_lshl_b32 s58, s83, 4"); a("s_lshl_b32 s59, s%d, 1" % S_X); a("s_add_u32 s58, s58, s59"); a("s_lshl_b32 s58, s58, 7")
        a("s_add_u32 s60, s58, %d" % (C3 * 128))
        def zero_acc():
            for r in range(32, 256): a("v_mov_b32 v%d, 0" % r)
        self.wait(60, 2, 16, shadow=zero_acc)
        self.mark(11)
        for st in range(3):
            for j in range(8): a(tokload(st, j))
            a("s_add_u32 s78, s78, 2048")
        if pf:
            for op in pfops(): a(op)
        a("v_mov_b32 v16, v15")
        q0 = DSQ()
        for F in range(PD):
            for jh in range(2): emit(dsr(q0, ("c", F, jh), wreg(F) + 2 * jh, 16, foff(F, jh)))
        a("s_waitcnt vmcnt(%d) lgkmcnt(8)" % (16 + npf))
        self.mark(12)

        def stage(u, loads, bwait, q, side=False, first_wait=None, mode="n", adv_end=None, nextf=None):
            pfop = side and pf
            G = [[] for _ in range(112)]
            for F in range(28):
                Fn = F + PD
                if Fn < 28:
                    for jh in range(2): G[4 * F + jh].append(dsr(q, ("c", Fn, jh), wreg(Fn) + 2 * jh, 16, foff(Fn, jh)))
                elif mode == "n":
                    for jh in range(2): G[4 * F + jh].append(dsr(q, ("n", Fn - 28, jh), wreg(Fn) + 2 * jh, 16, (foff(nextf[Fn - 28][0], jh) + nextf[Fn - 28][1]) if nextf else foff(Fn - 28, jh)))
                if mode == "m":
                    for jh in range(2): G[4 * F + 2 + jh].append(dsr(q, ("l", F, jh), lreg(F) + 2 * jh, 17, foff(F, jh)))
                if F < 27: G[4 * F + 3].append(lambda F=F: q.wait(("c", F + 1, 1)))
                elif mode == "n": G[4 * F + 3].append(lambda: q.wait(("n", 0, 1)))
            if loads:
                G[1].append("s_add_u32 m0, s75, s74")
                G[16].append("s_add_u32 m0, m0, 4096")
                vm = [self.g1_dma(i) for i in range(7)] + [tokload((u + 3) % 4, j) for j in range(8)]
                if pfop: vm += pfops()
                for i, x in enumerate(vm): G[4 * i + 2].append(x)
                G[4 * 8].append("s_add_u32 s77, s77, %d" % (64 * 7168))
                G[4 * 9].append("s_add_u32 s75, s75, %d" % G1_STAGE); G[4 * 10].append("s_cmp_eq_u32 s75, %d" % (G1_STAGE * G1_NSLOT))
                G[4 * 11].append("s_cselect_b32 s75, 0, s75")
                G[4 * 16].append("s_add_u32 s78, s78, 2048")
                if pfop:
                    for i, x in enumerate(pfturn(u)): G[4 * (12 + i)].append(x)
                    if self.pffast:
                        if u == 1: G[4 * 17].append("v_add_u32 v30, %d, v30" % (320 * 2048)); G[4 * 18].append("v_add_u32 v31, %d, v31" % (128 * 7168))
                        if u == 3: G[4 * 17].append("v_add_u32 v30, %d, v30" % (-960 * 2048)); G[4 * 18].append("v_add_u32 v31, %d, v31" % (128 * 7168))
                    elif u == 3:
                        G[4 * 17].append("v_add_u32 v30, %d, v30" % (-640 * 2048)); G[4 * 18].append("v_add_u32 v31, %d, v31" % (256 * 7168))
            if mode == "n":
                G[4 * 19].append("s_add_u32 s76, s76, %d" % G1_STAGE); G[4 * 20].append("s_cmp_eq_u32 s76, %d" % (G1_STAGE * G1_NSLOT))
                G[4 * 21].append("s_cselect_b32 s76, 0, s76")
                if first_wait is not None:
                    l = a.new_label("fw")
                    G[4 * 21 + 2].append("s_cmp_lg_u32 s80, 3")
                    G[4 * 22] += ["s_cbranch_scc1 %s" % l, "s_waitcnt vmcnt(%d)" % first_wait, l + ":"]
                G[4 * 22 + 2] += ["v_add_u32 v16, s76, v15", "s_waitcnt vmcnt(%d)" % bwait]
                G[4 * 22 + 3].insert(0, "s_barrier")
            if adv_end:
                for g, x in adv_end: G[g].append(x)
            k = 0
            for F in range(28):
                kk, ct = F // 14, F % 14
                for tt in range(4):
                    a(mfma(acc(ct, tt), wreg(F), TOK + 32 * u + 16 * kk + 4 * tt))
                    for x in G[k]: emit(x)
                    k += 1
            for key in list(q.pos):
                if key[0] == "c": del q.pos[key]
            for key in list(q.pos):
                if key[0] == "n": q.pos[("c",) + key[1:]] = q.pos.pop(key)
        nst = 15 + npf
        a("s_mov_b32 s80, 3")
        loop = a.new_label("g1"); a.label(loop)
        q = DSQ()
        for F in range(PD):
            for jh in range(2): q.issue(("c", F, jh))
        q.done = 2
        for u in range(4):
            stage(u, True, npf + 2 * nst, q, side=True, first_wait=(8 + npf + nst) if u == 0 else None,
                  adv_end=[(4 * 23 + 2, "s_sub_u32 s80, s80, 1"), (4 * 26 + 2, "s_cmp_lg_u32 s80, 0")] if u == 3 else None)
        a("s_cbranch_scc1 %s" % loop)
        self.mark(13)
        if "xs" in self.opt: a("s_mov_b32 s100, 0"); a("s_mov_b32 s101, 0")
        a("s_mov_b32 s%d, %d" % (RE + 2, 3584 * 2048))
        def run(c, sts): return [(st, kk, ct) for st in sts for kk in range(2) for ct in (c, 7 + c)]
        seq = run(0, (13, 14)) + run(1, (13, 14)) + run(0, (15,)) + run(1, (15,))
        done = {0: 20, 1: 24}
        for c in range(2, 7): seq += run(c, (13, 14, 15)); done[c] = len(seq)
        stage(0, True, npf + 15, q, nextf=[(14 * kk + ct, (st - 13) * G1_STAGE) for (st, kk, ct) in seq[:PD]])
        self.mark(14)
        def capture(fn):
            keep = self.a; tmp = Asm(); self.a = tmp; fn(); self.a = keep
            return [l.strip() for l in tmp.lines]
        st_ = self.stashed
        pre = self.g2_voffs() + ["v_mov_b32 v17, v15", "v_accvgpr_read_b32 v4, a%d" % st_["g1es"],
               "s_mul_i32 s58, s73, %d" % (112 * 1024), "s_mul_i32 s59, s72, 7", "s_add_u32 s60, s59, 1", "s_lshr_b32 s60, s60, 1",
               "s_lshl_b32 s60, s60, 10", "s_add_u32 s60, s60, s58", "s_and_b32 s61, s72, 1", "s_mov_b32 s62, 3072", "s_cmp_eq_u32 s61, 1", "s_cselect_b32 s62, -512, s62",
               "s_add_u32 s62, s62, s60"] + capture(self.g2_pre)
        def glue(L):
            out = []; i = 0
            while i < len(L):
                if i + 1 < len(L) and isinstance(L[i], str) and (L[i + 1].startswith("s_addc") or L[i + 1].startswith("s_cselect")):
                    out.append(L[i] + "\n" + L[i + 1]); i += 2
                else: out.append(L[i]); i += 1
            return out
        pre = glue(pre)
        vq = VMQ()
        def mul(c, tt):
            g, u = acc(c, tt), acc(7 + c, tt)
            return ["v_mul_f32 v%d, v%d, v%d" % (g + i, g + i, u + i) for i in range(4)]
        def cvt(c, tt):
            g = acc(c, tt); u = acc(7 + c, tt & ~1) + 2 * (tt & 1)
            return ["v_cvt_pk_bf16_f32 v%d, v%d, v%d" % (u, g, g + 1), "v_cvt_pk_bf16_f32 v%d, v%d, v%d" % (u + 1, g + 2, g + 3)]
        def out(c, tp):
            u = acc(7 + c, tp)
            base, off = (62, 0) if c == 6 else (60, 1024 * (c >> 1) + 512 * (c & 1))
            return ["s_add_u32 s63, s%d, %d" % (base, off + tp * 112 * 1024),
                    "v_permlane16_swap_b32 v%d, v%d" % (u, u + 2), "v_permlane16_swap_b32 v%d, v%d" % (u + 1, u + 3),
                    vq.op(("h", c, tp), "buffer_store_dwordx4 v[%d:%d], v4, s[%d:%d], s63 offen sc1" % (u, u + 3, RB, RB + 3))]
        held = []
        def epi(c, hold=False):
            o0, o2 = out(c, 0), out(c, 2)
            if hold:
                held.extend([o0[0], o0[3], o2[0], o2[3]]); o0 = o0[1:3]; o2 = ["s_nop 1"] + o2[1:3]
            return mul(c, 0) + mul(c, 1) + cvt(c, 0) + cvt(c, 1) + mul(c, 2) + mul(c, 3) + o0 + cvt(c, 2) + cvt(c, 3) + o2
        N = len(seq)
        G = [[] for _ in range(4 * N)]
        def faddr(n):
            st, kk, ct = seq[n]
            return (16, 0) if st == 13 else (16, G1_STAGE) if st == 14 else (17, 0)
        for n in range(N):
            m = n + PD
            if m < N:
                st, kk, ct = seq[m]; reg, off = faddr(m)
                for jh in range(2): G[4 * n + jh].append(dsr(q, ("c", m, jh), wreg(m) + 2 * jh, reg, off + foff(14 * kk + ct, jh)))
            if n < N - 1: G[4 * n + 3].append(lambda n=n: q.wait(("c", n + 1, 1)))
        nb = 16 - PD - 1
        assert all(x[0] != 15 for x in seq[:16])
        G[4 * nb + 2].append(lambda: "s_waitcnt vmcnt(%d)" % vq.n); G[4 * nb + 3].insert(0, "s_barrier")
        ex = []
        for st in range(4):
            ex.append("s_add_u32 m0, s88, %d" % G2_SLOT[st])
            for i in range(4): ex.append(vq.op(("w", st, i), self.g2_dma(i, G2_ROW[st])))
        exn = self.optv("exn", 4)
        ex0 = self.optv("ex0", 3)
        if ex0 <= nb:
            G[4 * (ex0 - 1) + 3].insert(0, "s_barrier")
        for i, x in enumerate(ex): G[4 * (ex0 + (i * exn) // 5) + (2 if i % 5 else 1)].append(x)
        nA, nP, nC, nB = self.nA0, self.nPoll, self.nChk, self.nA1
        G[4 * nA + 2] += [lambda: vq.wait(("h", 1, 2)), vq.op("a0", "buffer_atomic_add v6, v5, s[%d:%d], 0 offen" % (RS, RS + 3))]
        G[4 * nP + 2].append(vq.op("p0", "buffer_load_dword v31, v30, s[%d:%d], 0 offen sc1" % (RS, RS + 3)))
        slow = a.new_label("c4s"); back = a.new_label("c4b")
        G[4 * nC + 1].append(lambda: vq.wait("p0"))
        G[4 * nC + 2] += ["v_cmp_gt_u32 vcc, 16, v31", "s_cbranch_vccnz %s" % slow, back + ":"]
        self.slow.append((slow, back, "0"))
        G[4 * nB + 2] += [lambda: vq.wait(("h", 3, 2)), vq.op("a1", "buffer_atomic_add v6, v5, s[%d:%d], s79 offen" % (RS, RS + 3))]
        def place(ops, g0):
            g = g0; k = 0
            while k < len(ops) and g < 4 * N:
                if len([x for x in G[g] if not (isinstance(x, str) and x.endswith(":"))]) < 2: G[g].append(ops[k]); k += 1
                else: g += 1
            return ops[k:], g + 1
        rest, gp = place(pre, 0); assert not rest and gp <= 4 * 20, gp
        tok = []
        for st in range(4):
            tok.append("s_lshr_b32 s78, s%d, 6" % G2_ROW[st])
            for j in range(4): tok.append(vq.op(("t", st, j), self.g2_tokload(st, j)))
        tkn = self.optv("tkn", 2)
        gt = 0
        for i, x in enumerate(tok):
            gt = 4 * (nC + 1 + i // tkn) + ([2], [0, 2], [0, 1, 2], [0, 1, 2, 3])[tkn - 1][i % tkn]
            G[gt].append(x)
        nhold = self.optv("hold", 0)
        def zero(r0): return ["v_pk_mov_b32 v[%d:%d], 0, 0" % (r, r + 1) for r in range(r0, r0 + 16, 2)]
        g = 0
        left = []
        for c in range(6):
            rest, g = place(epi(c, hold=c >= 6 - nhold), max(g - 1, 4 * done[c] + 1))
            assert not rest or c == 5
            left += rest
            if c < 4: rest, g = place(zero(acc(c, 0)), g - 1); assert not rest
        rest, g = place(held, max(gt + 1, g - 1) if not left else 4 * N)
        left += rest
        k = 0
        for n in range(N):
            st, kk, ct = seq[n]
            for tt in range(4):
                a(mfma(acc(ct, tt), wreg(n), TOK + 32 * (st % 4) + 16 * kk + 4 * tt))
                for x in G[k]: emit(x)
                k += 1
            if "xm" in self.opt and n in (nA, nC, 23, 47): self.mark({nA: 26, nC: 27, 23: 24, 47: 25}[n])
        for x in left + epi(6): emit(x)
        self.mark(15)
        self.vq = vq

    def g2_pre(self):
        a = self.a
        self.unstash("g2t0", 20); self.unstash("g2t1", 21); self.unstash("g2o", 22); self.unstash("g2o4", 23)
        self.unstash("g2tab", 25); self.unstash("c4a", 5); self.unstash("c4p", 30)
        ks = 1024 if "x2nat" in self.opt else 7168
        a("v_add_u32 v18, %d, v20" % ks); a("v_add_u32 v19, %d, v21" % ks); a("v_mov_b32 v6, 1")
        self.in_srd(RD, P_OUT, 4194304)
        self.ws_srd(RA, WS_XCH, 1024 * self.xstr)
        self.ws_srd(RC, WS_H, 4194304)
        for c in range(4):
            a("v_add_u32 v%d, %d, v%d" % (12 + c, G2_SLOT[5], 26 + c)); a("v_add_u32 v%d, %d, v%d" % (26 + c, G2_BASE, 26 + c))
        a("v_readlane_b32 s75, v25, 4"); a("s_mov_b32 s76, 5"); a("s_mov_b32 s79, %d" % (128 * 128)); a("s_mov_b32 s77, %d" % (256 * 128))
    def g2_tokload(self, slot, j):
        kk, tt = j >> 1, j & 1
        r = G2_TOK[slot] + 8 * kk + 4 * tt
        fl = "nt" if "g2tnt" in self.opt else "" if "g2tpl" in self.opt else "sc1"
        return "buffer_load_dwordx4 a[%d:%d], v%d, s[%d:%d], s78 offen %s" % (r, r + 3, (18 if kk else 20) + tt, RB, RB + 3, fl)
    def gemm2(self):
        a = self.a
        ACC, HR, TOK, WF, PD, NST = 32, 96, 0, G2_WF, 7, 28
        def acc(ct, tt): return ACC + (ct * 2 + tt) * 4
        tokload = self.g2_tokload
        def fk(F): return (F >> 2) & 1, (F & 3) + (0 if F >= 8 else 4)
        def fread(slot, F, jh, ring=None):
            kk, ct = fk(F)
            r = WF + 4 * ((F if ring is None else ring) % 8) + 2 * jh
            base, so = (12, G2_SLOT[slot] - G2_SLOT[5]) if slot in (3, 5) else (26, G2_SLOT[slot] - G2_BASE)
            assert 0 <= so <= 49152
            return "ds_read_b64_tr_b16 a[%d:%d], v%d offset:%d" % (r, r + 1, base + (ct & 3), so + (2 * kk + (ct >> 2)) * 4096 + jh * 2048)
        a("s_barrier")
        for F in range(PD):
            for jh in range(2): a(fread(0, F, jh))
        a("s_add_u32 m0, s88, %d" % G2_SLOT[4])
        a(self.vq.wait(("t", 1, 3)) + " lgkmcnt(10)")
        self.mark(18)
        vq = self.vq
        def stage(u, loads, bwait, last=False, extra=None, tailops=None, first=None):
            G = [[] for _ in range(32)]
            nods = "x2nods" in self.opt
            for F in range(16):
                Fn = F + PD
                if not nods and not (last and Fn >= 16):
                    sl = u if Fn < 16 else (u + 1) % 6
                    G[2 * F].append(fread(sl, Fn % 16, 0)); G[2 * F + 1].append(fread(sl, Fn % 16, 1))
                if F & 1:
                    if not last: G[2 * F + 1].append("s_waitcnt lgkmcnt(10)")
                    elif F < 15:
                        issued = min(F + PD, 15); need = F + 2
                        G[2 * F + 1].append("s_waitcnt lgkmcnt(%d)" % max(0, 2 * (issued - need)))
            vm = []
            def check(g, wait, soff):
                slow = a.new_label("c4t"); back = a.new_label("c4u")
                G[g].append(wait); G[g + 1].append("v_cmp_gt_u32 vcc, 16, v31"); G[g + 2] += ["s_cbranch_vccnz %s" % slow, back + ":"]
                self.slow.append((slow, back, soff))
            def poll(soff): return "buffer_load_dword v31, v30, s[%d:%d], %s offen sc1" % (RS, RS + 3, soff)
            if loads:
                vm = [self.g2_dma(i, 75) for i in range(4)] + [tokload((u + 4) % 6, j) for j in range(4)]
                if "x2nodma" in self.opt: vm[:4] = ["s_nop 0"] * 4
                if "x2notok" in self.opt: vm[4:] = ["s_nop 0"] * 4
                G[1].append("s_lshr_b32 s78, s75, 6")
                G[9].append("v_readlane_b32 s75, v25, s76"); G[13].append("s_add_u32 s76, s76, 1")
                G[29].append("s_add_u32 m0, s88, %d" % G2_SLOT[(u + 5) % 6])
                if first is not None:
                    vm = [vq.op(("L", first + 4, i), x) for i, x in enumerate(vm)]
                    bwait = lambda: vq.wait(("L", first + 1, 7) if first >= 3 else ("t", first + 1, 3))
                    if first == 1: G[15].append(vq.op("p1", poll("s79")))
                    if first == 4: check(5, lambda: vq.wait("p1"), "s79")
                    if first == self.optv("nD", 2):
                        G[18] += [lambda: vq.wait(("h", 6, 2))]; G[20].append(vq.op("a2", "buffer_atomic_add v6, v5, s[%d:%d], s77 offen" % (RS, RS + 3)))
                else:
                    if u == 3: G[15].append(poll("s77"))
                    if u == 0: check(5, "s_waitcnt vmcnt(19)", "s77")
            if extra: vm = extra
            for i, x in enumerate(vm): G[2 * i].append(x)
            if not last:
                G[16].append(bwait if callable(bwait) else "s_waitcnt vmcnt(%d)" % bwait); G[17].append("s_barrier")
            if tailops:
                for g, x in tailops: G[g].append(x)
            k = 0
            for F in range(16):
                kk, ct = fk(F)
                w = WF + 4 * (F % 8)
                for tt in range(2):
                    t = G2_TOK[u] + 8 * kk + 4 * tt; c = acc(ct, tt)
                    if "x2nomfma" not in self.opt:
                        a("v_mfma_f32_16x16x32_bf16 v[%d:%d], a[%d:%d], a[%d:%d], v[%d:%d]" % (c, c + 3, w, w + 3, t, t + 3, c, c + 3))
                    for x in G[k]: a(x() if callable(x) else x)
                    k += 1
        for u in range(6):
            stage(u, True, None, first=u)
            if "xm3" in self.opt: self.mark([16, 17, 24, 25, 26, 27][u])
        a("s_mov_b32 s81, 3")
        loop = a.new_label("g2"); a.label(loop)
        for u in range(6):
            stage(u, True, [25, 24, 24, 25, 25, 25][u], tailops=[(22, "s_sub_u32 s81, s81, 1"), (30, "s_cmp_lg_u32 s81, 0")] if u == 5 else None)
        a("s_cbranch_scc1 %s" % loop)
        a("s_mov_b32 s60, 32768")
        hl = ["buffer_load_dwordx2 v[%d:%d], v22, s[%d:%d], %s offen offset:%d sc1" % (HR + 2 * e, HR + 2 * e + 1, RC, RC + 3, "s60" if e & 1 else "0", 32 * (e >> 1)) for e in range(8)]
        seq = [(u, F) for u in range(4) for F in range(8)] + [(u, F) for u in range(4) for F in range(8, 16)]
        N = len(seq)
        G = [[] for _ in range(2 * N)]
        q = DSQ()
        for n in range(PD):
            for jh in range(2): q.issue((n, jh))
        q.done = 4
        def rd(m, jh): return lambda: (q.issue((m, jh)), fread(seq[m][0], seq[m][1], jh, ring=m))[1]
        for n in range(N):
            m = n + PD
            if m < N: G[2 * n].append(rd(m, 0)); G[2 * n + 1].append(rd(m, 1))
            if n & 1 and n < N - 1: G[2 * n + 1].append(lambda n=n: q.wait((min(n + 2, N - 1), 1)))
        for u, cnt in ((1, 16), (2, 16), (3, 8)):
            n = 8 * u - PD - 1
            G[2 * n].append("s_waitcnt vmcnt(%d)" % cnt); G[2 * n + 1].insert(0, "s_barrier")
        for i, x in enumerate(hl): G[2 * (1 + i) if i < 7 else 2 * 8 - 1].append(x)
        xa = ["s_lshl_b32 s58, s2, 2", "s_add_u32 s58, s58, s%d" % S_WAVE, "s_mul_i32 s61, s58, %d" % self.xstr, "s_xor_b32 s58, s58, 4",
              "s_mul_i32 s62, s58, %d" % self.xstr, "s_add_u32 s63, s62, 4096", "s_add_u32 s58, s61, 4096"]
        for i, x in enumerate(xa): G[2 * (18 + i)].append(x)
        if self.x32:
            for e in range(8):
                c = ACC + 32 + 4 * e
                G[2 * 32 + self.optv("xsp", 1) * e + 1].append("buffer_store_dwordx4 v[%d:%d], v24, s[%d:%d], s%d offen offset:%d sc1" % (c, c + 3, RA, RA + 3, 58 if e >> 2 else 61, 1024 * (e & 3)))
        else:
            g = 2 * 31
            for p_ in range(4):
                c = ACC + 32 + 8 * p_
                ops = ["v_cvt_pk_bf16_f32 v%d, v%d, v%d" % (c + i, c + 2 * i, c + 2 * i + 1) for i in range(4)]
                ops.append("buffer_store_dwordx4 v[%d:%d], v24, s[%d:%d], s61 offen offset:%d sc1" % (c, c + 3, RA, RA + 3, 1024 * p_))
                g = max(g, 2 * (28 + p_) + 6)
                for x in ops:
                    while len(G[g]) >= 2: g += 1
                    G[g].append(x)
                g += self.optv("xsp", 1)
        k = 0
        for n in range(N):
            u, F = seq[n]; kk, ct = fk(F)
            w = WF + 4 * (n % 8)
            for tt in range(2):
                t = G2_TOK[u] + 8 * kk + 4 * tt; c = acc(ct, tt)
                a("v_mfma_f32_16x16x32_bf16 v[%d:%d], a[%d:%d], a[%d:%d], v[%d:%d]" % (c, c + 3, w, w + 3, t, t + 3, c, c + 3))
                for x in G[k]:
                    x = x() if callable(x) else x
                    if x: a(x)
                k += 1
        self.mark(19)
        R = 112
        NX = 8 if self.x32 else 4
        def xloads():
            for e in range(NX):
                a("buffer_load_dwordx4 v[%d:%d], v24, s[%d:%d], s%d offen offset:%d sc1" % (R + 4 * e, R + 4 * e + 3, RA, RA + 3, 62 + (e >> 2), 1024 * (e & 3)))
        def residual():
            for e in list(range(8)):
                c = ACC + 4 * e; r = HR + 2 * e
                a("v_lshlrev_b32 v4, 16, v%d" % r); a("v_and_b32 v5, s%d, v%d" % (S_MASK, r))
                a("v_lshlrev_b32 v6, 16, v%d" % (r + 1)); a("v_and_b32 v7, s%d, v%d" % (S_MASK, r + 1))
                for i in range(4): a("v_add_f32 v%d, v%d, v%d" % (c + i, c + i, 4 + i))
        if "reslast" not in self.opt:
            a("s_waitcnt vmcnt(%d)" % NX); residual(); xloads()
        else:
            xloads()
            a("s_waitcnt vmcnt(%d)" % (2 * NX))
            residual()
        self.mark(20)
        ok = a.new_label("xgo"); lp = a.new_label("xpl")
        a("s_mov_b32 s59, 0")
        a.label(lp)
        a("s_waitcnt vmcnt(0)")
        a("v_max3_u32 v4, v%d, v%d, v%d" % (R, R + 1, R + 2))
        for i in range(3, 4 * NX - 1, 2): a("v_max3_u32 v4, v4, v%d, v%d" % (R + i, R + i + 1))
        a("v_max_u32 v4, v4, v%d" % (R + 4 * NX - 1))
        a("v_cmp_eq_u32 vcc, -1, v4")
        a("s_add_u32 s59, s59, 1"); a("s_cmp_gt_u32 s59, %d" % SPIN_MAX); a("s_cbranch_scc1 %s" % ok)
        a("s_cbranch_vccz %s" % ok)
        xloads()
        a("s_branch %s" % lp)
        a.label(ok)
        self.mark(21)
        units = [(tt, m) for tt in range(2) for m in range(2)]
        def fin(i):
            tt, m = units[i]; up = HR + 4 * i
            a("v_permlane16_swap_b32 v%d, v%d" % (up, up + 2)); a("v_permlane16_swap_b32 v%d, v%d" % (up + 1, up + 3))
            a("buffer_store_dwordx4 v[%d:%d], v23, s[%d:%d], %s offen offset:%d" % (up, up + 3, RD, RD + 3, "s60" if tt else "0", 64 * m))
        for i, (tt, m) in enumerate(units):
            u = HR + 4 * i
            for h in range(2):
                e = 2 * (2 * m + h) + tt
                c = ACC + 4 * e; r = R + 4 * e
                if self.x32:
                    for j in range(4): a("v_add_f32 v%d, v%d, v%d" % (c + j, c + j, r + j))
                else:
                    r = R + 4 * (e >> 1) + 2 * (e & 1)
                    a("v_lshlrev_b32 v4, 16, v%d" % r); a("v_and_b32 v5, s%d, v%d" % (S_MASK, r))
                    a("v_lshlrev_b32 v6, 16, v%d" % (r + 1)); a("v_and_b32 v7, s%d, v%d" % (S_MASK, r + 1))
                    for j in range(4): a("v_add_f32 v%d, v%d, v%d" % (c + j, c + j, 4 + j))
                a("v_cvt_pk_bf16_f32 v%d, v%d, v%d" % (u + 2 * h, c, c + 1)); a("v_cvt_pk_bf16_f32 v%d, v%d, v%d" % (u + 2 * h + 1, c + 2, c + 3))
            if i > 0: fin(i - 1)
        a("s_nop 1")
        fin(3)
        self.mark(22)

    def finish(self, name):
        a = self.a
        if self.diag:
            a("s_waitcnt vmcnt(0) lgkmcnt(0)")
            self.mark(23)
            a("s_memrealtime s[92:93]"); a("s_waitcnt lgkmcnt(0)")
            a("v_accvgpr_read_b32 v1, a255"); a("s_nop 1")
            if "xs" in self.opt: a("v_writelane_b32 v1, s100, 54"); a("v_writelane_b32 v1, s101, 55")
            for i, s in enumerate((94, 95, 96, 97, 92, 93)):
                a("v_writelane_b32 v1, s%d, %d" % (s, 56 + i))
            self.ws_srd(RA, STAMP, 256 * 1024)
            a("s_lshl_b32 s58, s2, 10"); a("s_lshl_b32 s59, s%d, 8" % S_WAVE); a("s_add_u32 s58, s58, s59")
            a("v_lshlrev_b32 v3, 2, v2")
            a("buffer_store_dword v1, v3, s[%d:%d], s58 offen" % (RA, RA + 3))
            if "dbgspan" in self.opt:
                self.in_srd(RE, P_DBG, 256)
                nd = a.new_label("nodbg")
                a("s_cmp_lg_u32 s%d, 0" % S_WAVE); a("s_cbranch_scc1 %s" % nd)
                a("s_not_b32 s58, s94"); a("v_mov_b32 v4, s58"); a("v_mov_b32 v5, 16"); a("v_mov_b32 v6, s92"); a("v_mov_b32 v7, 20")
                a("s_mov_b64 exec, 1")
                a("buffer_atomic_umax v4, v5, s[%d:%d], 0 offen" % (RE, RE + 3))
                a("buffer_atomic_umax v6, v7, s[%d:%d], 0 offen" % (RE, RE + 3))
                a("s_mov_b64 exec, -1")
                a("s_cmp_lg_u32 s2, 0"); a("s_cbranch_scc1 %s" % nd)
                a("v_mov_b32 v4, 0")
                for i, m in enumerate((2, 3, 6, 8, 11, 12, 14, 17, 19, 23)):
                    a("v_readlane_b32 s58, v1, %d" % (2 * m)); a("s_nop 3"); a("s_sub_u32 s58, s58, s96"); a("v_writelane_b32 v4, s58, %d" % (6 + i)); a("s_nop 1")
                a("v_lshlrev_b32 v5, 2, v2")
                a("s_mov_b64 exec, 0xffc0")
                a("buffer_store_dword v4, v5, s[%d:%d], 0 offen" % (RE, RE + 3))
                a("s_mov_b64 exec, -1")
                a.label(nd)
        a.label(name + "_done")
        a("s_endpgm")
        for slow, back, soff in self.slow:
            a.label(slow)
            a("s_mov_b32 s80, 0")
            a.label(slow + "l")
            a("buffer_load_dword v31, v30, s[%d:%d], %s offen sc1" % (RS, RS + 3, soff))
            a("s_waitcnt vmcnt(0)")
            a("v_cmp_gt_u32 vcc, 16, v31")
            if "xs" in self.opt: a("s_add_u32 s%d, s%d, 1" % ((100, 100) if soff == "0" else (101, 101)))
            a("s_add_u32 s80, s80, 1"); a("s_cmp_gt_u32 s80, %d" % SPIN_MAX); a("s_cbranch_scc1 %s" % back)
            a("s_cbranch_vccnz %sl" % slow)
            a("s_branch %s" % back)
        if self.slow: a("s_endpgm")
    def build(self, upto=5):
        name = KNAME + "_kernel"
        self.entry(name)
        self.prep()
        if upto >= 2: self.conv()
        if upto >= 3:
            self.g1_setup(); self.ln()
        if upto >= 4: self.gemm1()
        if upto >= 5: self.gemm2()
        self.finish(name)
        hdr = "; persistent single-launch kernel generated by gen/fused.py (hand-written generator)\n"
        hdr += "; @launch grid=(256,1,1) block=(256,1,1) lds=%d\n" % LDS_TOTAL
        hdr += '.amdgcn_target "amdgcn-amd-amdhsa--gfx950"\n'
        return hdr + self.a.text() + kernel_desc(name, 512, 102, 256)

if __name__ == "__main__":
    import sys
    out = sys.argv[1]
    opt = sys.argv[2] if len(sys.argv) > 2 else ""
    diag = "diag" in opt.split(",")
    upto = 5
    for t in opt.split(","):
        if t.startswith("upto"): upto = int(t[4:])
    open(out, "w").write(Gen(opt, diag).build(upto))
```

```python
from asmlib import *
from layout import *

P_Q, P_K, P_V, P_SK, P_SSMK, P_SSMD, P_WG, P_WU, P_WD, P_OUT, P_DBG, P_WS = 4, 6, 8, 10, 12, 14, 18, 20, 22, 24, 26, 28
S_WAVE, S_X, S_J = 30, 31, 3
RA, RB, RC, RD, RE, RS = 32, 36, 40, 44, 48, 52
S_MASK, S_EPS = 56, 57
SPIN_MAX = 1 << 17

KCOPY = 4160; XB0 = 4 * KCOPY; XSTR = 4576; WREG = 25856
CSTG = 4 * WREG
PSTG = CSTG + 17408
G1_STAGE = 28672; G1_NSLOT = 5
SENT = 236
G2_WF = 204
G2_STAGE = 16384; G2_NSLOT = 6; G2_BASE = G1_STAGE
G2_SLOT = [G2_BASE, G2_BASE + G2_STAGE, G2_BASE + 2 * G2_STAGE, G1_STAGE * G1_NSLOT, G2_BASE + 3 * G2_STAGE, G2_BASE + 4 * G2_STAGE]
G2_ROW = [89, 90, 91, 93]
G2_TOK = [0, 16, 160, 176, 32, 48]
LDS_TOTAL = G1_STAGE * G1_NSLOT + G2_STAGE

class DSQ:
    def __init__(self): self.n = 0; self.pos = {}; self.done = 0
    def issue(self, tag): self.n += 1; self.pos[tag] = self.n
    def wait(self, tag):
        need = self.pos[tag]
        if need <= self.done: return None
        cnt = min(15, self.n - need); self.done = self.n - cnt
        return "s_waitcnt lgkmcnt(%d)" % cnt

class VMQ:
    def __init__(self): self.n = 0; self.pos = {}
    def op(self, tag, text): return lambda: (self.issue(tag), text)[1]
    def issue(self, tag): self.n += 1; self.pos[tag] = self.n
    def wait(self, tag): return "s_waitcnt vmcnt(%d)" % min(63, self.n - self.pos[tag])

class Gen:
    def __init__(self, opt="", diag=False):
        self.a = Asm(); self.opt = set(opt.split(",")); self.diag = diag; self.stashed = {}; self.pffast = "pfall" not in self.opt; self.slow = []
        optv = self.optv
        self.x32 = "xf32" in self.opt
        self.xbytes = 8192 if self.x32 else 4096
        self.xstr = optv("xstr", self.xbytes + 1152)
        self.nA0, self.nPoll, self.nChk, self.nA1 = optv("nA", 46), optv("nP", 62), optv("nC", 70), optv("nB", 76)
    def optv(self, name, dflt):
        for t in self.opt:
            if t.startswith(name + "="): return int(t[len(name) + 1:])
        return dflt
    def mark(self, i):
        if not self.diag: return
        a = self.a
        a("s_memtime s[98:99]"); a("s_waitcnt lgkmcnt(0)")
        a("v_accvgpr_read_b32 v1, a255"); a("s_nop 1")
        a("v_writelane_b32 v1, s98, %d" % (2 * i)); a("v_writelane_b32 v1, s99, %d" % (2 * i + 1))
        a("s_nop 1"); a("v_accvgpr_write_b32 a255, v1")
    def stash(self, name, v):
        n = len(self.stashed)
        idx = self.stashed.setdefault(name, 176 + n if n < 28 else 240 + n - 28); assert idx < 255
        self.a("v_accvgpr_write_b32 a%d, v%d" % (idx, v))
    def unstash(self, name, v):
        self.a("v_accvgpr_read_b32 v%d, a%d" % (v, self.stashed[name]))
    def ws_srd(self, dst, off, size):
        a = self.a
        a("s_add_u32 s%d, s%d, 0x%x" % (dst, P_WS, off)); a("s_addc_u32 s%d, s%d, 0" % (dst + 1, P_WS + 1))
        a("s_and_b32 s%d, s%d, 0xffff" % (dst + 1, dst + 1)); a("s_mov_b32 s%d, 0x%x" % (dst + 2, size)); a("s_mov_b32 s%d, 0x00020000" % (dst + 3))
    def in_srd(self, dst, ptr, size, soff=None):
        a = self.a
        if soff is None:
            srd(a, dst, ptr, size)
        else:
            a("s_add_u32 s%d, s%d, s%d" % (dst, ptr, soff)); a("s_addc_u32 s%d, s%d, 0" % (dst + 1, ptr + 1))
            a("s_and_b32 s%d, s%d, 0xffff" % (dst + 1, dst + 1)); a("s_mov_b32 s%d, 0x%x" % (dst + 2, size)); a("s_mov_b32 s%d, 0x00020000" % (dst + 3))
    def arrive(self, addr, nlanes=1, vm=0, check_init=None, init_target=1):
        a = self.a
        for s in addr: a(s)
        a("s_waitcnt vmcnt(%d)" % vm)
        a("s_barrier")
        sk = a.new_label("arr")
        a("s_cmp_lg_u32 s%d, 0" % S_WAVE); a("s_cbranch_scc1 %s" % sk)
        if check_init is not None:
            ok = a.new_label("ini"); lp = a.new_label("inip")
            a("s_mov_b32 s59, 0")
            a.label(lp)
            a("v_readfirstlane_b32 s58, v%d" % check_init)
            a("s_cmp_ge_u32 s58, %d" % init_target); a("s_cbranch_scc1 %s" % ok)
            a("s_add_u32 s59, s59, 1"); a("s_cmp_gt_u32 s59, %d" % SPIN_MAX); a("s_cbranch_scc1 %s" % ok)
            a("v_mov_b32 v6, 0")
            a("buffer_load_dword v%d, v6, s[%d:%d], 0 offen sc1" % (check_init, RE, RE + 3))
            a("s_waitcnt vmcnt(0)")
            a("s_branch %s" % lp)
            a.label(ok)
        a("v_mov_b32 v6, 1")
        a("s_mov_b64 exec, 0x%x" % ((1 << nlanes) - 1))
        a("buffer_atomic_add v6, v7, s[%d:%d], 0 offen" % (RS, RS + 3))
        a("s_mov_b64 exec, -1")
        a.label(sk)
    def wait(self, line_sgpr, nlines, target, shadow=None):
        a = self.a
        sk = a.new_label("wt"); lp = a.new_label("wtp"); s0 = a.new_label("wt0")
        mask = "0x%x" % ((1 << nlines) - 1)
        a("s_cmp_lg_u32 s%d, 0" % S_WAVE); a("s_cbranch_scc1 %s" % s0)
        a("v_min_u32 v6, %d, v2" % (nlines - 1)); a("v_lshlrev_b32 v6, 7, v6"); a("v_add_u32 v6, s%d, v6" % line_sgpr)
        a("s_mov_b64 exec, %s" % mask)
        a("buffer_load_dword v7, v6, s[%d:%d], 0 offen sc1" % (RS, RS + 3))
        a("s_mov_b64 exec, -1")
        a.label(s0)
        if shadow: shadow()
        a("s_cmp_lg_u32 s%d, 0" % S_WAVE); a("s_cbranch_scc1 %s" % sk)
        a("s_mov_b32 s59, 0")
        a("s_mov_b64 exec, %s" % mask)
        a.label(lp)
        a("s_waitcnt vmcnt(0)")
        a("v_cmp_gt_u32 vcc, %d, v7" % target)
        a("s_add_u32 s59, s59, 1")
        a("s_cmp_gt_u32 s59, %d" % SPIN_MAX); a("s_cbranch_scc1 %s" % (sk + "x"))
        a("s_cbranch_vccz %s" % (sk + "x"))
        a("buffer_load_dword v7, v6, s[%d:%d], 0 offen sc1" % (RS, RS + 3))
        a("s_branch %s" % lp)
        a.label(sk + "x")
        a("s_mov_b64 exec, -1")
        a.label(sk)
        a("s_barrier")

    def entry(self, name):
        a = self.a
        kernel_begin(a, name)
        a("s_cmp_ge_u32 s2, 256"); a("s_cbranch_scc1 %s_done" % name)
        if self.diag:
            a("s_memrealtime s[94:95]"); a("s_memtime s[96:97]"); a("v_accvgpr_write_b32 a255, 0")
        a("s_load_dwordx16 s[4:19], s[0:1], 0")
        a("s_load_dwordx8 s[20:27], s[0:1], 64")
        a("s_load_dwordx2 s[28:29], s[0:1], 96")
        a("v_lshrrev_b32 v1, 6, v0")
        a("v_and_b32 v2, 63, v0")
        a("v_readfirstlane_b32 s%d, v1" % S_WAVE)
        a("s_and_b32 s%d, s2, 7" % S_X); a("s_lshr_b32 s%d, s2, 3" % S_J)
        a("s_mov_b32 s%d, 0xffff0000" % S_MASK); a("s_mov_b32 s%d, 0x3727c5ac" % S_EPS)

    def prep(self):
        a = self.a
        a("v_and_b32 v8, 7, v0")
        a("v_lshrrev_b32 v9, 3, v0")
        a("s_lshr_b32 s60, s2, 4")
        a("s_and_b32 s61, s2, 15")
        a("s_lshl_b32 s62, s60, 18"); a("s_lshl_b32 s63, s61, 7"); a("s_add_u32 s62, s62, s63")
        a("v_lshlrev_b32 v3, 13, v9"); a("v_lshl_add_u32 v3, v8, 4, v3"); a("v_add_u32 v3, s62, v3")
        a("v_subrev_u32 v4, 6144, v3")
        a("s_lshl_b32 s63, s61, 9"); a("v_lshlrev_b32 v5, 6, v8"); a("v_add_u32 v5, s63, v5")
        a("s_mov_b32 s64, 4096")
        a("s_lshl_b32 s65, s%d, 5" % S_X); a("s_add_u32 s65, s65, s%d" % S_J)
        a("s_lshl_b32 s66, s65, 2"); a("s_add_u32 s66, s66, s%d" % S_WAVE)
        a("s_mul_i32 s67, s%d, %d" % (S_WAVE, WREG))
        a("s_lshl_b32 s68, s66, 12")
        a("v_lshlrev_b32 v10, 4, v2")
        a("v_lshlrev_b32 v11, 2, v2")
        a("v_add_u32 v12, 196, v10")
        a("s_lshl_b32 s69, s2, 3"); a("s_lshl_b32 s70, s%d, 1" % S_WAVE); a("s_add_u32 s69, s69, s70"); a("s_lshl_b32 s70, s69, 11")
        a("v_lshlrev_b32 v13, 3, v2")
        for i in range(4): a("v_accvgpr_write_b32 a%d, -1" % (SENT + i))
        a("s_waitcnt lgkmcnt(0)")
        self.ws_srd(RS, WS_SYNC, NLINES * 128)
        NCLR = NLINES // 64
        ni = a.new_label("noinit")
        a("s_lshl_b32 s58, s%d, 8" % S_WAVE); a("s_or_b32 s58, s58, s2"); a("s_cmp_ge_u32 s58, %d" % NCLR); a("s_cbranch_scc1 %s" % ni)
        a("v_lshlrev_b32 v6, 7, v2"); a("v_mov_b32 v7, 0"); a("s_lshl_b32 s58, s2, 13")
        a("buffer_store_dword v7, v6, s[%d:%d], s58 offen sc1" % (RS, RS + 3))
        a.label(ni)
        self.in_srd(RA, P_K, 4194304); self.in_srd(RB, P_V, 4194304); self.in_srd(RC, P_SK, 8192)
        KR, VR, SK = 16, 44, 60
        nt = "" if "p1nont" in self.opt else "nt"
        def ld(dst, voff, s, soff, off, fl=""):
            a("buffer_load_dwordx4 v[%d:%d], v%d, s[%d:%d], %s offen%s %s" % (dst, dst + 3, voff, s, s + 3, soff, " offset:%d" % off if off else "", fl))
        for i in range(4): ld(SK + 4 * i, 5, RC, "0", 16 * i)
        ld(KR + 0, 4, RA, "0", 0, nt); ld(KR + 4, 4, RA, "0", 2048, nt); ld(KR + 8, 4, RA, "s64", 0, nt)
        ld(KR + 12, 3, RA, "0", 0, nt); ld(KR + 16, 3, RA, "0", 2048, nt); ld(KR + 20, 3, RA, "s64", 0, nt); ld(KR + 24, 3, RA, "s64", 2048, nt)
        ld(VR + 0, 3, RB, "0", 0, nt); ld(VR + 4, 3, RB, "0", 2048, nt); ld(VR + 8, 3, RB, "s64", 0, nt); ld(VR + 12, 3, RB, "s64", 2048, nt)
        self.in_srd(RE, P_DBG, 256)
        ni = a.new_label("noflag")
        a("s_lshl_b32 s58, s%d, 8" % S_WAVE); a("s_or_b32 s58, s58, s2"); a("s_cmp_ge_u32 s58, %d" % NCLR); a("s_cbranch_scc1 %s" % ni)
        a("s_waitcnt vmcnt(15)")
        a("v_mov_b32 v6, 0"); a("v_mov_b32 v7, 1")
        a("s_mov_b64 exec, 1")
        a("buffer_atomic_add v7, v6, s[%d:%d], 0 offen" % (RE, RE + 3))
        a("s_mov_b64 exec, -1")
        a.label(ni)
        self.in_srd(RD, P_SSMK, 4096, 68)
        sknt = "" if "sknont" in self.opt else "nt"
        for i in range(16):
            a("buffer_load_dword v%d, v11, s[%d:%d], 0 offen offset:%d %s" % (128 + i, RD, RD + 3, 256 * i, sknt))
        nclr = 0
        if "clrprep" in self.opt:
            nclr = self.xbytes // 1024
            self.xch_srd(RA)
            for i in range(nclr):
                a("buffer_store_dwordx4 a[%d:%d], v10, s[%d:%d], %s offen offset:%d sc1" % (SENT, SENT + 3, RA, RA + 3, "0" if i < 4 else "s64", 1024 * (i & 3)))
        a("s_lshr_b32 s58, s66, 1"); a("s_lshl_b32 s58, s58, 2")
        a("s_load_dword s71, s[%d:%d], s58" % (P_SSMD, P_SSMD + 1))
        self.ws_srd(RC, WS_XRT, 4194304)
        a("v_sub_u32 v6, 31, v9"); a("v_lshlrev_b32 v7, 1, v8"); a("v_xor_b32 v6, v6, v7"); a("v_lshlrev_b32 v6, 3, v6")
        a("v_lshl_add_u32 v6, v8, 11, v6"); a("v_add_u32 v14, %d, v6" % PSTG)
        W, K, V, O = 80, 84, 92, 96
        def unpack(dst, src, hi):
            if hi: a("v_and_b32 v%d, s%d, v%d" % (dst, S_MASK, src))
            else: a("v_lshlrev_b32 v%d, 16, v%d" % (dst, src))
        self.shadow()
        a("s_waitcnt vmcnt(%d)" % (16 + nclr))
        self.mark(0)
        W, K, V, O = 80, 88, 102, 110
        for d in range(4):
            for tap in range(4):
                for hi in range(2): unpack(W + 2 * tap + hi, SK + 2 * (2 * d + hi) + (tap >> 1), tap & 1)
            for i in range(7):
                for hi in range(2): unpack(K + 2 * i + hi, KR + 4 * i + d, hi)
            for j in range(4):
                for hi in range(2): unpack(V + 2 * j + hi, VR + 4 * j + d, hi)
            def pk(op, dst, *src): a("%s v[%d:%d], %s" % (op, dst, dst + 1, ", ".join("v[%d:%d]" % (r, r + 1) for r in src)))
            for j in range(4): pk("v_pk_mul_f32", O + 2 * j, K + 2 * j, W + 6)
            for tap in (1, 2, 3):
                for j in range(4): pk("v_pk_fma_f32", O + 2 * j, K + 2 * (j + tap), W + 2 * (3 - tap), O + 2 * j)
            for j in range(4): pk("v_pk_mul_f32", O + 2 * j, O + 2 * j, V + 2 * j)
            for hi in range(2):
                P = 120 + 2 * hi
                a("v_cvt_pk_bf16_f32 v%d, v%d, v%d" % (P, O + 6 + hi, O + 4 + hi))
                a("v_cvt_pk_bf16_f32 v%d, v%d, v%d" % (P + 1, O + 2 + hi, O + hi))
                a("ds_write_b64 v14, v[%d:%d] offset:%d" % (P, P + 1, (2 * d + hi) * 256))
        a("v_lshrrev_b32 v16, 4, v0"); a("v_and_b32 v17, 15, v0"); a("v_lshrrev_b32 v18, 7, v0")
        a("s_lshl_b32 s62, s61, 18"); a("s_lshl_b32 s63, s60, 8"); a("s_sub_u32 s62, s62, s63"); a("s_add_u32 s62, s62, 3840")
        a("v_lshlrev_b32 v19, 12, v16"); a("v_lshl_add_u32 v19, v17, 4, v19"); a("v_add_u32 v19, s62, v19")
        a("s_waitcnt lgkmcnt(0)")
        a("s_barrier")
        for i in range(4):
            a("v_add_u32 v20, %d, v18" % (2 * i)); a("v_xor_b32 v20, v20, v17"); a("v_lshlrev_b32 v20, 4, v20")
            a("v_lshl_add_u32 v20, v16, 8, v20"); a("v_add_u32 v20, %d, v20" % PSTG)
            a("ds_read_b128 v[%d:%d], v20 offset:%d" % (24 + 4 * i, 27 + 4 * i, i * 4096))
        a("v_mov_b32 v6, 0")
        a("buffer_load_dword v15, v6, s[%d:%d], 0 offen sc1" % (RE, RE + 3))
        for i in range(4):
            a("s_mov_b32 s63, %d" % (i * 16 * 4096))
            a("s_waitcnt lgkmcnt(%d)" % (3 - i))
            a("buffer_store_dwordx4 v[%d:%d], v19, s[%d:%d], s63 offen sc1" % (24 + 4 * i, 27 + 4 * i, RC, RC + 3))
        nyoung = 0
        if "qw1" in self.opt:
            self.q_loads(); nyoung += 8
        self.mark(1)
        self.arrive(["s_lshl_b32 s58, s61, 7", "s_add_u32 s60, s58, %d" % (C1 * 128), "v_mov_b32 v7, s60"], vm=nyoung, check_init=15, init_target=NCLR)
        self.mark(2)

    def xch_srd(self, R):
        a = self.a
        a("s_lshl_b32 s58, s2, 2"); a("s_add_u32 s58, s58, s%d" % S_WAVE); a("s_mul_i32 s58, s58, %d" % self.xstr); a("s_add_u32 s58, s58, 0x%x" % WS_XCH)
        a("s_add_u32 s%d, s%d, s58" % (R, P_WS)); a("s_addc_u32 s%d, s%d, 0" % (R + 1, P_WS + 1))
        a("s_and_b32 s%d, s%d, 0xffff" % (R + 1, R + 1)); a("s_mov_b32 s%d, %d" % (R + 2, self.xbytes)); a("s_mov_b32 s%d, 0x00020000" % (R + 3))
    def q_loads(self):
        a = self.a
        self.in_srd(RD, P_Q, 4194304)
        qf = "" if "qnont" in self.opt else "nt"
        a("v_lshlrev_b32 v13, 3, v2")
        for tok in range(2):
            for i in range(4):
                r = 160 + 8 * tok + 2 * i
                a("buffer_load_dwordx2 a[%d:%d], v13, s[%d:%d], s70 offen offset:%d %s" % (r, r + 1, RD, RD + 3, 512 * i + 2048 * tok, qf))

    def conv(self):
        a = self.a
        a("s_add_u32 s58, s68, 0x%x" % WS_XRT)
        a("s_add_u32 s%d, s%d, s58" % (RA, P_WS)); a("s_addc_u32 s%d, s%d, 0" % (RA + 1, P_WS + 1))
        a("s_and_b32 s%d, s%d, 0xffff" % (RA + 1, RA + 1)); a("s_mov_b32 s%d, 4096" % (RA + 2)); a("s_mov_b32 s%d, 0x00020000" % (RA + 3))
        self.ws_srd(RB, WS_YB, 4194304)
        a("v_and_b32 v8, 15, v2"); a("v_lshrrev_b32 v9, 4, v2")
        a("v_and_b32 v3, 3, v8"); a("v_lshrrev_b32 v4, 2, v8")
        a("v_mul_u32_u24 v12, %d, v3" % KCOPY)
        a("v_add_u32 v13, v4, v9"); a("v_lshl_add_u32 v12, v13, 4, v12"); a("v_add_u32 v12, s67, v12")
        a("v_and_b32 v13, 1, v8"); a("v_lshrrev_b32 v14, 1, v8")
        a("v_mul_u32_u24 v15, %d, v13" % XSTR); a("v_lshl_add_u32 v15, v9, 4, v15")
        a("v_lshlrev_b32 v14, 6, v14"); a("v_sub_u32 v15, v15, v14")
        a("s_add_u32 s58, s67, %d" % (XB0 + 64 * 63 - 3584)); a("v_add_u32 v14, s58, v15")
        AD = 60
        a("v_lshlrev_b32 v15, 3, v4"); a("v_lshl_add_u32 v15, v3, 1, v15"); a("v_lshl_add_u32 v15, v9, 3, v15")
        a("s_and_b32 s58, s66, 1"); a("s_lshl_b32 s58, s58, 4"); a("s_lshr_b32 s71, s71, s58"); a("s_and_b32 s71, s71, 0xffff")
        a("v_mov_b32 v1, s71")
        for dd in range(4):
            a("v_cmp_eq_u32 vcc, %d, v15" % (30 - 2 * dd)); a("s_nop 1"); a("v_cndmask_b32 v%d, 0, v1, vcc" % (AD + dd))
        a("v_lshrrev_b32 v4, 4, v2"); a("v_mul_u32_u24 v4, %d, v4" % KCOPY); a("v_and_b32 v5, 15, v2"); a("v_lshl_add_u32 v4, v5, 2, v4")
        a("v_add_u32 v4, s67, v4"); a("v_mov_b32 v5, 0")
        a("ds_write_b32 v4, v5")
        a("s_add_u32 s58, s67, 60"); a("v_add_u32 v4, s58, v11")
        for phi in range(4):
            if phi: a("v_add_u32 v4, %d, v4" % (KCOPY - 4))
            for i in range(8):
                a("ds_write2st64_b32 v4, v%d, v%d offset0:%d offset1:%d" % (128 + 2 * i, 129 + 2 * i, 2 * i, 2 * i + 1))
        a("s_add_u32 s58, s67, %d" % XB0); a("v_add_u32 v4, s58, v10")
        for r in range(56, 60): a("v_mov_b32 v%d, 0" % r)
        a("s_mov_b64 exec, 0xfffffff")
        a("ds_write_b128 v4, v[56:59] offset:4096"); a("ds_write_b128 v4, v[56:59] offset:%d" % (XSTR + 4096))
        a("s_mov_b64 exec, -1")
        a("v_add_u32 v5, 16, v10")
        a("s_lshr_b32 s58, s65, 4"); a("s_lshl_b32 s58, s58, 7"); a("s_add_u32 s60, s58, %d" % (C1 * 128))
        self.wait(60, 1, 16)
        self.mark(3)
        XD = 16
        for i in range(4):
            a("buffer_load_dwordx4 v[%d:%d], v10, s[%d:%d], 0 offen offset:%d" % (XD + 8 * i, XD + 8 * i + 3, RA, RA + 3, 1024 * i))
        for i in range(4):
            a("buffer_load_dword v%d, v5, s[%d:%d], 0 offen offset:%d" % (XD + 8 * i + 4, RA, RA + 3, 1024 * i))
        for i in range(4):
            d = XD + 8 * i
            a("s_waitcnt vmcnt(%d)" % (7 - i))
            a("ds_write_b128 v4, v[%d:%d] offset:%d" % (d, d + 3, XSTR + 1024 * i))
        for i in range(4):
            d = XD + 8 * i
            a("s_waitcnt vmcnt(%d)" % (3 - i))
            for j in range(4):
                a("v_alignbit_b32 v%d, v%d, v%d, 16" % (48 + j + 4 * (i & 1), d + j + 1, d + j))
            a("ds_write_b128 v4, v[%d:%d] offset:%d" % (48 + 4 * (i & 1), 51 + 4 * (i & 1), 1024 * i))
        a("s_cmp_lt_u32 s%d, 2" % S_WAVE)
        a("s_cselect_b32 s%d, s%d, s%d" % (RC, P_WG, P_WU)); a("s_cselect_b32 s%d, s%d, s%d" % (RC + 1, P_WG + 1, P_WU + 1))
        a("s_and_b32 s%d, s%d, 0xffff" % (RC + 1, RC + 1)); a("s_mov_b32 s%d, %d" % (RC + 2, 1024 * 7168)); a("s_mov_b32 s%d, 0x00020000" % (RC + 3))
        if True:
            a("s_lshl_b32 s58, s2, 2"); a("s_add_u32 s58, s58, s%d" % S_WAVE); a("s_mul_i32 s58, s58, %d" % self.xstr); a("s_add_u32 s58, s58, 0x%x" % WS_XCH)
            a("s_add_u32 s%d, s%d, s58" % (RE, P_WS)); a("s_addc_u32 s%d, s%d, 0" % (RE + 1, P_WS + 1))
            a("s_and_b32 s%d, s%d, 0xffff" % (RE + 1, RE + 1)); a("s_mov_b32 s%d, %d" % (RE + 2, self.xbytes)); a("s_mov_b32 s%d, 0x00020000" % (RE + 3))
            a("s_mov_b32 s59, 0")
        if "hhpf" in self.opt:
            self.ws_srd(RA, WS_HH, 128 * 112 * 1024)
            a("s_lshl_b32 s60, s2, 2"); a("s_add_u32 s60, s60, s%d" % S_WAVE); a("s_mul_i32 s60, s60, 14336"); a("s_add_u32 s61, s60, 6144")
            a("v_lshlrev_b32 v3, 7, v2")
            fl = "nt" if "hhnt" in self.opt else "sc1" if "hhsc1" in self.opt else ""
            a("buffer_load_dword v15, v3, s[%d:%d], s60 offen %s" % (RA, RA + 3, fl))
            a("buffer_load_dword v15, v3, s[%d:%d], s61 offen %s" % (RA, RA + 3, fl))
        a("s_waitcnt lgkmcnt(0)")
        self.mark(4)
        ACC = 192
        def A(s, i): return 64 + 64 * s + 4 * i
        def B(s, i): return 96 + 64 * s + 4 * i
        def reads(s, rho_off):
            out = []
            for i in range(8):
                out.append("ds_read_b128 v[%d:%d], v14 offset:%d" % (B(s, i), B(s, i) + 3, 3584 - 512 * i + rho_off))
                out.append("ds_read_b128 v[%d:%d], v12 offset:%d" % (A(s, i), A(s, i) + 3, 512 * i + rho_off))
            return out
        def mfmas(s):
            out = []
            for m in range(8):
                for (x, y) in [(i, m) for i in range(m + 1)] + [(m, i) for i in range(m)]:
                    if x + y <= 7:
                        t = ACC + 4 * (x + y)
                        out.append("v_mfma_f32_16x16x32_bf16 v[%d:%d], v[%d:%d], v[%d:%d], v[%d:%d]" % (
                            t, t + 3, A(s, x), A(s, x) + 3, B(s, y), B(s, y) + 3, t, t + 3))
            return out
        for r in reads(0, 0): a(r)
        a("s_waitcnt lgkmcnt(0)")
        for tau in range(8):
            t = ACC + 4 * tau
            a("v_mfma_f32_16x16x32_bf16 v[%d:%d], v[%d:%d], v[%d:%d], 0" % (t, t + 3, AD, AD + 3, B(0, tau), B(0, tau) + 3))
        a("s_mov_b32 s58, 4")
        loop = a.new_label("conv"); a.label(loop)
        if "qw1" not in self.opt:
            nq = a.new_label("noq")
            a("s_cmp_lg_u32 s58, 3"); a("s_cbranch_scc1 %s" % nq)
            self.q_loads()
            a.label(nq)
        for half in range(2):
            if "nopf1" not in self.opt:
                a("buffer_load_dword v15, v224, s[%d:%d], 0 offen" % (RC, RC + 3))
                a("v_add_u32 v224, %d, v224" % (64 * 7168))
            rd = reads(1 - half, 64 * (half + 1)); mf = mfmas(half)
            k = 0
            for i, m in enumerate(mf):
                a(m)
                if i % 2 == 0 and k < len(rd): a(rd[k]); k += 1
                if (self.x32 or half == 0) and "x3noclr" not in self.opt and "clrprep" not in self.opt:
                    if i == 33: a("buffer_store_dwordx4 a[%d:%d], v10, s[%d:%d], s59 offen sc1" % (SENT, SENT + 3, RE, RE + 3))
                    if i == 35: a("s_add_u32 s59, s59, 1024")
            a("s_waitcnt lgkmcnt(0)")
        a("v_add_u32 v12, 128, v12"); a("v_add_u32 v14, 128, v14")
        a("s_sub_u32 s58, s58, 1"); a("s_cmp_lg_u32 s58, 0"); a("s_cbranch_scc1 %s" % loop)
        self.mark(5)
        a("s_nop 7")
        for tau in range(8):
            t = ACC + 4 * tau; P = 16 + 8 * (tau & 1)
            a("v_cvt_pk_bf16_f32 v%d, v%d, v%d" % (P, t, t + 2)); a("v_cvt_pk_bf16_f32 v%d, v%d, v%d" % (P + 1, t + 1, t + 3))
            a("s_nop 1")
            a("v_mov_b32_dpp v%d, v%d quad_perm:[1,0,3,2] row_mask:0xf bank_mask:0xf" % (P + 2, P))
            a("v_mov_b32_dpp v%d, v%d quad_perm:[1,0,3,2] row_mask:0xf bank_mask:0xf" % (P + 3, P + 1))
            a("v_perm_b32 v%d, v%d, v%d, v226" % (P + 4, P + 2, P)); a("v_perm_b32 v%d, v%d, v%d, v226" % (P + 5, P + 3, P + 1))
            off = tau * (32 * 64 + 8 * 16)
            a("ds_write_b32 v227, v%d offset:%d" % (P + 4, off)); a("ds_write_b32 v227, v%d offset:%d" % (P + 5, off + 16))
        a("s_waitcnt lgkmcnt(0)")
        a("s_barrier")
        for i in range(4):
            a("ds_read_b128 v[%d:%d], v228 offset:%d" % (16 + 4 * i, 19 + 4 * i, i * (64 * 64 + 16 * 16)))
        for i in range(4):
            a("s_mov_b32 s58, %d" % (i * 64 * 16384))
            a("s_waitcnt lgkmcnt(%d)" % (3 - i))
            a("buffer_store_dwordx4 v[%d:%d], v229, s[%d:%d], s58 offen sc1" % (16 + 4 * i, 19 + 4 * i, RB, RB + 3))
        self.arrive(["s_and_b32 s58, s2, 15", "s_lshl_b32 s58, s58, 7", "s_add_u32 s60, s58, %d" % (C2 * 128),
                     "v_lshlrev_b32 v7, 11, v2", "v_add_u32 v7, s60, v7"], nlanes=16)
        self.mark(6)

    def shadow(self):
        a = self.a
        T = 104
        a("s_and_b32 s83, s%d, 7" % S_J); a("s_lshr_b32 s59, s%d, 3" % S_J)
        a("s_lshl_b32 s72, s%d, 2" % S_X); a("s_add_u32 s72, s72, s59")
        a("s_lshl_b32 s73, s83, 4"); a("s_lshl_b32 s59, s%d, 2" % S_WAVE); a("s_add_u32 s73, s73, s59")
        a("s_mul_i32 s74, s%d, 7168" % S_WAVE)
        a("s_mov_b32 s75, 0"); a("s_mov_b32 s76, 0"); a("s_mov_b32 s77, 0"); a("s_mov_b32 s78, 0")
        a("s_and_b32 s58, s%d, 1" % S_WAVE); a("s_lshl_b32 s58, s58, 5")
        a("s_mul_i32 s59, s72, 224")
        a("s_mov_b32 s62, 4682"); a("s_mov_b32 s63, 7168")
        a("s_and_b32 s101, s72, 1"); a("s_lshl_b32 s101, s101, 1")
        for i in range(7):
            a("v_add_u32 v%d, %d, v2" % (T, 64 * i))
            a("v_mul_u32_u24 v%d, s62, v%d" % (T + 1, T)); a("v_lshrrev_b32 v%d, 16, v%d" % (T + 1, T + 1))
            a("v_mul_u32_u24 v%d, 14, v%d" % (T + 2, T + 1)); a("v_sub_u32 v%d, v%d, v%d" % (T + 2, T, T + 2))
            a("v_add_u32 v%d, s101, v%d" % (T + 2, T + 2)); a("v_subrev_u32 v%d, 14, v%d" % (T + 4, T + 2)); a("v_min_u32 v%d, v%d, v%d" % (T + 2, T + 2, T + 4))
            a("v_bfe_u32 v%d, v%d, 2, 2" % (T + 3, T + 1)); a("v_lshlrev_b32 v%d, 3, v%d" % (T + 3, T + 3))
            a("v_lshrrev_b32 v%d, 4, v%d" % (T + 4, T + 1)); a("v_lshl_add_u32 v%d, v%d, 2, v%d" % (T + 3, T + 4, T + 3))
            a("v_and_b32 v%d, 3, v%d" % (T + 4, T + 1)); a("v_add3_u32 v%d, v%d, v%d, s58" % (T + 3, T + 3, T + 4))
            a("v_mul_u32_u24 v%d, s63, v%d" % (T + 3, T + 3))
            a("v_lshl_add_u32 v%d, v%d, 4, v%d" % (T + 3, T + 2, T + 3))
            a("v_add_u32 v%d, s59, v%d" % (T + 3, T + 3))
            if i & 3: a("v_subrev_u32 v%d, %d, v%d" % (T + 3, 1024 * (i & 3), T + 3))
            self.stash("g1w%d" % i, T + 3)
        a("v_lshlrev_b32 v%d, 4, v2" % T)
        a("s_lshl_b32 s58, s73, 15"); a("v_add_u32 v%d, s58, v%d" % (T + 1, T)); self.stash("g1t", T + 1)
        a("v_lshrrev_b32 v%d, 2, v2" % (T + 1)); a("v_mul_u32_u24 v%d, 224, v%d" % (T + 1, T + 1))
        a("v_and_b32 v%d, 3, v2" % (T + 2)); a("v_lshl_add_u32 v%d, v%d, 3, v%d" % (T + 1, T + 2, T + 1)); self.stash("g1f", T + 1)
        a("v_and_b32 v%d, 15, v2" % (T + 1)); a("v_lshlrev_b32 v%d, 4, v%d" % (T + 1, T + 1)); a("v_lshrrev_b32 v%d, 5, v2" % (T + 2))
        a("v_lshl_add_u32 v%d, v%d, 8, v%d" % (T + 1, T + 2, T + 1)); a("v_bfe_u32 v%d, v2, 4, 1" % (T + 2))
        a("v_lshl_add_u32 v%d, v%d, 9, v%d" % (T + 3, T + 2, T + 1)); self.stash("g1ep", T + 3)
        a("v_mul_u32_u24 v%d, %d, v%d" % (T + 2, 112 * 1024, T + 2)); a("v_add_u32 v%d, v%d, v%d" % (T + 3, T + 2, T + 1)); self.stash("g1es", T + 3)
        a("s_and_b32 s86, s%d, 1" % S_X)
        a("s_bfe_u32 s58, s%d, 0x10001" % S_X); a("s_lshl_b32 s58, s58, 3"); a("s_and_b32 s59, s%d, 7" % S_J); a("s_add_u32 s84, s58, s59")
        a("s_lshr_b32 s58, s%d, 2" % S_X); a("s_lshl_b32 s58, s58, 2"); a("s_lshr_b32 s59, s%d, 3" % S_J); a("s_add_u32 s85, s58, s59")
        a("s_lshl_b32 s87, s84, 3"); a("s_lshl_b32 s58, s%d, 1" % S_WAVE); a("s_add_u32 s87, s87, s58")
        a("s_mul_i32 s58, s86, 1792"); a("s_lshr_b32 s59, s%d, 1" % S_WAVE); a("s_mul_i32 s59, s59, %d" % (32 if "x2nat" in self.opt else 224)); a("s_add_u32 s58, s58, s59")
        a("s_lshl_b32 s58, s58, 11")
        a("s_lshl_b32 s59, s85, 8"); a("s_add_u32 s58, s58, s59")
        a("s_and_b32 s59, s%d, 1" % S_WAVE); a("s_xor_b32 s59, s59, s86"); a("s_lshl_b32 s59, s59, 7"); a("s_add_u32 s58, s58, s59")
        a("v_lshrrev_b32 v%d, 5, v2" % T); a("v_lshlrev_b32 v%d, 3, v%d" % (T, T)); a("v_bfe_u32 v%d, v2, 3, 2" % (T + 1))
        a("v_add_u32 v%d, v%d, v%d" % (T, T, T + 1)); a("v_lshlrev_b32 v%d, 11, v%d" % (T, T))
        a("v_bfe_u32 v%d, v2, 4, 2" % (T + 1)); a("v_lshlrev_b32 v%d, 1, v%d" % (T + 1, T + 1)); a("v_and_b32 v%d, 7, v2" % (T + 2))
        a("v_xor_b32 v%d, v%d, v%d" % (T + 1, T + 1, T + 2))
        a("v_lshl_add_u32 v%d, v%d, 4, v%d" % (T, T + 1, T)); a("v_add_u32 v%d, s58, v%d" % (T, T)); self.stash("g2w", T)
        a("v_lshrrev_b32 v%d, 2, v2" % T); a("v_lshlrev_b32 v%d, 7, v%d" % (T, T))
        a("v_and_b32 v%d, 3, v2" % (T + 1)); a("v_lshl_add_u32 v%d, v%d, 3, v%d" % (T, T + 1, T))
        a("v_bfe_u32 v%d, v2, 3, 2" % (T + 1))
        for c in range(4):
            a("v_xor_b32 v%d, %d, v%d" % (T + 2, c, T + 1)); a("v_lshl_add_u32 v%d, v%d, 5, v%d" % (T + 2, T + 2, T)); self.stash("g2f%d" % c, T + 2)
        a("s_lshl_b32 s88, s%d, 12" % S_WAVE)
        a("v_lshlrev_b32 v%d, 4, v2" % T)
        a("s_mul_i32 s58, s87, %d" % (112 * 1024)); a("s_mul_i32 s59, s86, %d" % (56 * 1024)); a("s_add_u32 s58, s58, s59")
        a("v_add_u32 v%d, s58, v%d" % (T + 1, T)); self.stash("g2t0", T + 1)
        a("v_add_u32 v%d, %d, v%d" % (T + 1, 112 * 1024, T + 1)); self.stash("g2t1", T + 1)
        a("v_and_b32 v%d, 15, v2" % T); a("v_lshlrev_b32 v%d, 11, v%d" % (T, T))
        a("v_lshrrev_b32 v%d, 4, v2" % (T + 1)); a("v_lshl_add_u32 v%d, v%d, 3, v%d" % (T, T + 1, T))
        a("s_lshl_b32 s58, s87, 15"); a("s_lshl_b32 s59, s85, 8"); a("s_add_u32 s58, s58, s59"); a("s_lshl_b32 s59, s86, 7"); a("s_add_u32 s58, s58, s59")
        a("v_add_u32 v%d, s58, v%d" % (T, T)); self.stash("g2o", T)
        a("v_and_b32 v%d, 15, v2" % T); a("v_lshlrev_b32 v%d, 11, v%d" % (T, T))
        a("v_bfe_u32 v%d, v2, 4, 1" % (T + 1)); a("v_lshl_add_u32 v%d, v%d, 5, v%d" % (T, T + 1, T))
        a("v_lshrrev_b32 v%d, 5, v2" % (T + 1)); a("v_lshl_add_u32 v%d, v%d, 4, v%d" % (T, T + 1, T))
        a("v_add_u32 v%d, s58, v%d" % (T, T)); self.stash("g2o4", T)
        a("v_lshrrev_b32 v%d, 2, v2" % T); a("v_lshrrev_b32 v%d, 1, v%d" % (T + 1, T)); a("v_and_b32 v%d, 1, v%d" % (T, T))
        a("v_lshl_add_u32 v%d, v%d, 2, v%d" % (T, T, T + 1))
        if "rot2" in self.opt:
            a("s_lshr_b32 s58, s%d, 3" % S_J); a("s_add_u32 s58, s58, s%d" % S_J); a("v_add_u32 v%d, s58, v2" % (T + 1)); a("v_and_b32 v%d, 3, v%d" % (T + 1, T + 1))
        elif "rot2b" in self.opt:
            a("v_add_u32 v%d, s%d, v2" % (T + 1, S_J)); a("v_and_b32 v%d, 3, v%d" % (T + 1, T + 1))
        elif "rot2c" in self.opt:
            a("s_lshr_b32 s58, s%d, 3" % S_J); a("v_add_u32 v%d, s58, v2" % (T + 1)); a("v_and_b32 v%d, 3, v%d" % (T + 1, T + 1))
        else:
            a("v_and_b32 v%d, 3, v2" % (T + 1))
        a("v_mad_u32_u24 v%d, v%d, 14, v%d" % (T, T + 1, T))
        if "x2nat" in self.opt: a("v_lshlrev_b32 v%d, 1, v2" % T)
        a("v_lshlrev_b32 v%d, 16, v%d" % (T, T)); self.stash("g2tab", T)
        for t in range(4): a("v_readlane_b32 s%d, v%d, %d" % (G2_ROW[t], T, t))
        a("s_lshl_b32 s58, s83, 1"); a("s_lshr_b32 s59, s72, 4"); a("s_add_u32 s58, s58, s59"); a("s_lshl_b32 s58, s58, 2"); a("s_add_u32 s58, s58, s%d" % S_WAVE)
        a("s_lshl_b32 s58, s58, 8"); a("s_add_u32 s58, s58, %d" % (C4 * 128))
        a("v_lshlrev_b32 v%d, 7, v2" % T); a("v_add_u32 v%d, s58, v%d" % (T, T)); a("v_mov_b32 v%d, 0x7fffff00" % (T + 1))
        a("v_cmp_gt_u32 vcc, 2, v2"); a("s_nop 1"); a("v_cndmask_b32 v%d, v%d, v%d, vcc" % (T, T + 1, T)); self.stash("c4a", T)
        a("s_lshr_b32 s58, s84, 1"); a("s_lshl_b32 s58, s58, 1"); a("s_add_u32 s58, s58, s86"); a("s_lshl_b32 s58, s58, 2")
        a("s_and_b32 s59, s84, 1"); a("s_lshl_b32 s59, s59, 1"); a("s_add_u32 s58, s58, s59"); a("s_lshr_b32 s59, s%d, 1" % S_WAVE); a("s_add_u32 s58, s58, s59")
        a("s_lshl_b32 s58, s58, 1"); a("s_lshr_b32 s59, s%d, 2" % S_X); a("s_add_u32 s58, s58, s59"); a("s_lshl_b32 s58, s58, 7"); a("s_add_u32 s58, s58, %d" % (C4 * 128))
        a("v_mov_b32 v%d, s58" % T); self.stash("c4p", T)
        a("v_mov_b32 v%d, 0x7fffffff" % (T + 3))
        a("s_lshl_b32 s58, s%d, 1" % S_J); a("s_and_b32 s59, s%d, 1" % S_WAVE); a("s_add_u32 s58, s58, s59")
        a("s_mul_i32 s62, s58, 7168"); a("s_mul_i32 s59, s%d, 896" % S_X); a("s_add_u32 s62, s62, s59")
        a("v_lshlrev_b32 v%d, 7, v2" % T); a("v_add_u32 v%d, s62, v%d" % (T + 1, T))
        a("v_cmp_gt_u32 vcc, 7, v2"); a("s_nop 1"); a("v_cndmask_b32 v224, v%d, v%d, vcc" % (T + 3, T + 1))
        if self.pffast:
            a("s_and_b32 s58, s%d, 7" % S_J); a("s_lshr_b32 s62, s%d, 4" % S_J); a("s_lshl_b32 s62, s62, 3"); a("s_add_u32 s100, s58, s62")
            a("s_lshl_b32 s58, s100, 1"); a("s_and_b32 s62, s%d, 1" % S_WAVE); a("s_add_u32 s58, s58, s62")
        a("s_lshl_b32 s58, s58, 2"); a("s_add_u32 s58, s58, 512"); a("s_mul_i32 s58, s58, 7168"); a("s_add_u32 s58, s58, s59")
        a("s_mov_b32 s62, 9363")
        a("v_mul_u32_u24 v%d, s62, v2" % T); a("v_lshrrev_b32 v%d, 16, v%d" % (T, T))
        a("v_mul_u32_u24 v%d, 7, v%d" % (T + 1, T)); a("v_sub_u32 v%d, v2, v%d" % (T + 1, T + 1))
        a("v_mul_u32_u24 v%d, 7168, v%d" % (T, T)); a("v_lshl_add_u32 v%d, v%d, 7, v%d" % (T, T + 1, T)); a("v_add_u32 v%d, s58, v%d" % (T, T))
        a("v_cmp_gt_u32 vcc, 28, v2"); a("s_nop 1"); a("v_cndmask_b32 v%d, v%d, v%d, vcc" % (T, T + 3, T)); self.stash("pfw", T)
        a("s_lshl_b32 s58, s%d, 2" % (100 if self.pffast else S_J)); a("s_add_u32 s58, s58, s%d" % S_WAVE); a("s_mul_i32 s58, s58, 5"); a("s_add_u32 s58, s58, 1152")
        a("s_mul_i32 s59, s86, 1792"); a("s_add_u32 s58, s58, s59"); a("s_lshl_b32 s58, s58, 11")
        a("s_lshr_b32 s59, s85, 2"); a("s_lshl_b32 s59, s59, 10"); a("s_add_u32 s58, s58, s59")
        a("v_lshrrev_b32 v%d, 3, v2" % T); a("v_lshlrev_b32 v%d, 11, v%d" % (T, T)); a("v_and_b32 v%d, 7, v2" % (T + 1))
        a("v_lshl_add_u32 v%d, v%d, 7, v%d" % (T, T + 1, T)); a("v_add_u32 v%d, s58, v%d" % (T, T))
        a("v_cmp_gt_u32 vcc, 40, v2"); a("s_nop 1"); a("v_cndmask_b32 v%d, v%d, v%d, vcc" % (T, T + 3, T)); self.stash("pfd", T)
        if self.pffast:
            a("s_and_b32 s92, s%d, 1" % S_J)
            a("s_lshr_b32 s58, s%d, 3" % S_J); a("s_add_u32 s58, s58, 1"); a("s_and_b32 s58, s58, 2"); a("s_or_b32 s92, s92, s58")
        else:
            a("s_and_b32 s92, s%d, 3" % S_J)
        a("v_and_b32 v%d, 1, v2" % T); a("v_lshrrev_b32 v%d, 1, v2" % (T + 1))
        a("v_lshlrev_b32 v%d, 11, v%d" % (T + 2, T)); a("v_lshl_add_u32 v%d, v%d, 4, v%d" % (T + 2, T + 1, T + 2)); self.stash("lnh", T + 2)
        a("s_lshl_b32 s58, s%d, 4" % S_WAVE); a("s_add_u32 s58, s58, %d" % PSTG)
        a("v_lshlrev_b32 v%d, 6, v2" % (T + 2)); a("v_add_u32 v%d, s58, v%d" % (T + 2, T + 2)); self.stash("lny", T + 2)
        a("s_lshl_b32 s58, s%d, 5" % S_WAVE); a("s_add_u32 s58, s58, %d" % CSTG)
        a("v_lshlrev_b32 v%d, 7, v%d" % (T + 2, T + 1)); a("v_lshl_add_u32 v%d, v%d, 4, v%d" % (T + 2, T, T + 2)); a("v_add_u32 v%d, s58, v%d" % (T + 2, T + 2))
        self.stash("lnw", T + 2)
        a("v_lshlrev_b32 v%d, 4, v0" % (T + 2)); a("v_add_u32 v%d, %d, v%d" % (T + 2, CSTG, T + 2)); self.stash("lnr", T + 2)
        a("v_lshrrev_b32 v%d, 5, v0" % (T + 2)); a("v_lshlrev_b32 v%d, 10, v%d" % (T + 2, T + 2))
        a("v_bfe_u32 v%d, v0, 3, 2" % (T + 3)); a("v_lshl_add_u32 v%d, v%d, 8, v%d" % (T + 2, T + 3, T + 2))
        a("v_and_b32 v%d, 7, v0" % (T + 3)); a("v_lshl_add_u32 v%d, v%d, 4, v%d" % (T + 2, T + 3, T + 2)); self.stash("lng", T + 2)
        a("v_and_b32 v%d, 1, v2" % T)
        a("v_mov_b32 v226, 0x05040100"); a("v_mov_b32 v%d, 0x03020706" % (T + 1))
        a("v_cmp_eq_u32 vcc, 1, v%d" % T); a("s_nop 1"); a("v_cndmask_b32 v226, v226, v%d, vcc" % (T + 1))
        a("v_bfe_u32 v%d, v2, 1, 3" % (T + 1)); a("v_lshrrev_b32 v%d, 4, v2" % (T + 2))
        a("v_mul_u32_u24 v227, 272, v%d" % (T + 1)); a("v_lshl_add_u32 v227, v%d, 6, v227" % (T + 2)); a("v_lshl_add_u32 v227, v%d, 5, v227" % T)
        a("s_lshl_b32 s58, s%d, 2" % S_WAVE); a("s_add_u32 s58, s58, %d" % CSTG); a("v_add_u32 v227, s58, v227")
        a("v_lshrrev_b32 v%d, 2, v0" % T); a("v_and_b32 v%d, 3, v0" % (T + 1)); a("v_lshrrev_b32 v%d, 4, v0" % (T + 2))
        a("v_lshlrev_b32 v228, 6, v%d" % T); a("v_lshl_add_u32 v228, v%d, 4, v228" % (T + 2)); a("v_lshl_add_u32 v228, v%d, 4, v228" % (T + 1))
        a("v_add_u32 v228, %d, v228" % CSTG)
        a("v_lshlrev_b32 v229, 14, v%d" % T); a("v_lshl_add_u32 v229, v%d, 4, v229" % (T + 1)); a("s_lshl_b32 s58, s65, 6"); a("v_add_u32 v229, s58, v229")

    def g1_setup(self):
        a = self.a
        a("s_cmp_lt_u32 s%d, 2" % S_WAVE)
        a("s_cselect_b32 s%d, s%d, s%d" % (RA, P_WG, P_WU)); a("s_cselect_b32 s%d, s%d, s%d" % (RA + 1, P_WG + 1, P_WU + 1))
        a("s_and_b32 s%d, s%d, 0xffff" % (RA + 1, RA + 1)); a("s_mov_b32 s%d, %d" % (RA + 2, 1024 * 7168)); a("s_mov_b32 s%d, 0x00020000" % (RA + 3))
        for i in range(7): self.unstash("g1w%d" % i, 8 + i)
        self.in_srd(RE, P_WD, 3584 * 2048)
    def g1_wload_list(self):
        L = []
        for st in range(3):
            L.append("s_add_u32 m0, s75, s74")
            for i in range(7):
                if i == 4: L.append("s_add_u32 m0, m0, 4096")
                L.append(self.g1_dma(i))
            L.append("s_add_u32 s77, s77, %d" % (64 * 7168)); L.append("s_add_u32 s75, s75, %d" % G1_STAGE)
        return L
    def merged(self, body, fillers, start=0):
        keep = self.a; tmp = Asm(); tmp.uid = keep.uid + 1000; self.a = tmp
        body()
        self.a = keep; keep.uid = tmp.uid
        lines = tmp.lines
        n = max(1, (len(lines) - start) // (len(fillers) + 1))
        k = 0
        for i, l in enumerate(lines):
            keep.lines.append(l)
            if i >= start and (i - start) % n == n - 1 and k < len(fillers): keep(fillers[k]); k += 1
        for x in fillers[k:]: keep("s_nop 0"); keep(x)
    def g1_dma(self, i):
        fl = "nt" if "g1nt" in self.opt else "sc1" if "g1sc1" in self.opt else ""
        return "buffer_load_dwordx4 v%d, s[%d:%d], s77 offen offset:%d %s lds" % (8 + i, RA, RA + 3, 1024 * (i & 3), fl)
    def g1_wload_all(self):
        a = self.a
        a("s_add_u32 m0, s75, s74"); a("s_nop 0")
        for i in range(7):
            if i == 4: a("s_add_u32 m0, m0, 4096"); a("s_nop 0")
            a(self.g1_dma(i))
        a("s_add_u32 s77, s77, %d" % (64 * 7168)); a("s_add_u32 s75, s75, %d" % G1_STAGE)

    def reduce4(self, regs, sdst):
        a = self.a
        def step(mod):
            for r in regs: a("v_add_f32_dpp v%d, v%d, v%d %s" % (r, r, r, mod))
        a("s_nop 1")
        step("quad_perm:[1,0,3,2] row_mask:0xf bank_mask:0xf"); step("quad_perm:[2,3,0,1] row_mask:0xf bank_mask:0xf")
        step("row_half_mirror row_mask:0xf bank_mask:0xf"); step("row_mirror row_mask:0xf bank_mask:0xf")
        step("row_bcast:15 row_mask:0xa bank_mask:0xf"); step("row_bcast:31 row_mask:0xc bank_mask:0xf")
        a("s_nop 0")
        for r, s in zip(regs, sdst): a("v_readlane_b32 s%d, v%d, 63" % (s, r))
    def ln_scalars(self, sS, T):
        a = self.a
        t0, t1, t2, t3, t4, t5 = T + 8, T + 9, T + 10, T + 11, T + 12, T + 13
        M = S_MASK
        a("s_nop 1")
        a("v_mul_f32 v%d, s%d, v%d" % (t0, sS[0], T + 14)); a("v_mul_f32 v%d, s%d, v%d" % (t1, sS[2], T + 14))
        a("v_mul_f32 v%d, s%d, v%d" % (t2, sS[1], T + 14)); a("v_mul_f32 v%d, s%d, v%d" % (t3, sS[3], T + 14))
        a("v_fma_f32 v%d, -v%d, v%d, v%d" % (t2, t0, t0, t2)); a("v_fma_f32 v%d, -v%d, v%d, v%d" % (t3, t1, t1, t3))
        a("v_max_f32 v%d, 0, v%d" % (t2, t2)); a("v_max_f32 v%d, 0, v%d" % (t3, t3))
        a("v_cvt_pk_bf16_f32 v%d, v%d, v%d" % (t4, t0, t1)); a("v_cvt_pk_bf16_f32 v%d, v%d, v%d" % (t5, t2, t3))
        a("v_lshlrev_b32 v%d, 16, v%d" % (t0, t4)); a("v_and_b32 v%d, s%d, v%d" % (t1, M, t4))
        a("v_lshlrev_b32 v%d, 16, v%d" % (t2, t5)); a("v_and_b32 v%d, s%d, v%d" % (t3, M, t5))
        a("v_add_f32 v%d, s%d, v%d" % (t2, S_EPS, t2)); a("v_add_f32 v%d, s%d, v%d" % (t3, S_EPS, t3))
        a("v_cvt_pk_bf16_f32 v%d, v%d, v%d" % (t5, t2, t3))
        a("v_lshlrev_b32 v%d, 16, v%d" % (t2, t5)); a("v_and_b32 v%d, s%d, v%d" % (t3, M, t5))
        a("v_sqrt_f32 v%d, v%d" % (t2, t2)); a("v_sqrt_f32 v%d, v%d" % (t3, t3)); a("s_nop 0")
        a("v_cvt_pk_bf16_f32 v%d, v%d, v%d" % (t5, t2, t3))
        a("v_lshlrev_b32 v%d, 16, v%d" % (t2, t5)); a("v_and_b32 v%d, s%d, v%d" % (t3, M, t5))
        a("v_rcp_f32 v%d, v%d" % (T + 0, t2)); a("v_rcp_f32 v%d, v%d" % (T + 4, t3)); a("s_nop 0")
        a("v_mul_f32 v%d, v%d, v%d" % (T + 2, t0, T + 0)); a("v_mul_f32 v%d, v%d, v%d" % (T + 6, t1, T + 4))
        a("v_sub_f32 v%d, 0, v%d" % (T + 2, T + 2)); a("v_sub_f32 v%d, 0, v%d" % (T + 6, T + 6))
    def stats(self, X, acc):
        a = self.a
        for tok in range(2):
            b = X + 16 * tok; S = acc + 4 * tok; Q = S + 2
            a("v_pk_add_f32 v[%d:%d], v[%d:%d], v[%d:%d]" % (S, S + 1, b, b + 1, b + 2, b + 3))
            a("v_pk_mul_f32 v[%d:%d], v[%d:%d], v[%d:%d]" % (Q, Q + 1, b, b + 1, b, b + 1))
        for p in range(1, 8):
            for tok in range(2):
                b = X + 16 * tok + 2 * p; S = acc + 4 * tok; Q = S + 2
                if p >= 2: a("v_pk_add_f32 v[%d:%d], v[%d:%d], v[%d:%d]" % (S, S + 1, S, S + 1, b, b + 1))
                a("v_pk_fma_f32 v[%d:%d], v[%d:%d], v[%d:%d], v[%d:%d]" % (Q, Q + 1, b, b + 1, b, b + 1, Q, Q + 1))
        for r in (0, 2, 4, 6): a("v_add_f32 v%d, v%d, v%d" % (acc + r, acc + r, acc + r + 1))
    def ln(self):
        a = self.a
        M = S_MASK
        X, L1, Y, YR, HP, ACC, T = 32, 64, 96, 128, 144, 160, 168
        LP, U = 128, 96
        def ln1():
            a = self.a
            a("v_mov_b32 v%d, 0x3a800000" % (T + 14))
            for tok in range(2):
                for p in range(8):
                    dst = X + 16 * tok + 2 * p
                    a("v_accvgpr_read_b32 v3, a%d" % (160 + 8 * tok + p))
                    a("v_lshlrev_b32 v%d, 16, v3" % dst); a("v_and_b32 v%d, s%d, v3" % (dst + 1, M))
            self.stats(X, ACC)
            self.reduce4([ACC, ACC + 2, ACC + 4, ACC + 6], [60, 61, 62, 63])
            self.ln_scalars([60, 61, 62, 63], T)
            for tok in range(2):
                r, c = T + 4 * tok, T + 4 * tok + 2
                for p in range(8):
                    x = X + 16 * tok + 2 * p; l = L1 + 16 * tok + 2 * p
                    a("v_pk_fma_f32 v[%d:%d], v[%d:%d], v[%d:%d], v[%d:%d] op_sel_hi:[1,0,0]" % (l, l + 1, x, x + 1, r, r + 1, c, c + 1))
        self.merged(ln1, self.g1_wload_list())
        self.ws_srd(RB, WS_YB, 4194304); self.ws_srd(RC, WS_H, 4194304); self.ws_srd(RD, WS_LN2, 4194304)
        a("v_lshlrev_b32 v24, 4, v2")
        self.unstash("lnh", 4); self.unstash("lny", 5); self.unstash("lnw", 16); self.unstash("lnr", 17); self.unstash("lng", 18)
        a("s_lshl_b32 s61, s%d, 12" % S_WAVE); a("s_lshl_b32 s62, s2, 14"); a("s_add_u32 s62, s62, s61")
        a("s_add_u32 s61, s61, %d" % PSTG)
        a("s_and_b32 s60, s2, 15"); a("s_lshl_b32 s60, s60, 11"); a("s_add_u32 s60, s60, %d" % (C2 * 128))
        self.mark(7)
        self.wait(60, 16, 16)
        self.mark(8)
        a("s_mov_b32 m0, s61"); a("s_nop 0")
        for i in range(4):
            a("buffer_load_dwordx4 v24, s[%d:%d], s62 offen offset:%d lds" % (RB, RB + 3, 1024 * i))
        a("s_waitcnt vmcnt(0)")
        a("s_barrier")
        for i in range(4):
            a("ds_read_b128 v[%d:%d], v5 offset:%d" % (YR + 4 * i, YR + 4 * i + 3, 4096 * i))
        for i in range(4):
            a("s_waitcnt lgkmcnt(%d)" % (3 - i))
            for c in range(4):
                a("v_lshlrev_b32 v%d, 16, v%d" % (Y + 4 * i + c, YR + 4 * i + c)); a("v_and_b32 v%d, s%d, v%d" % (Y + 16 + 4 * i + c, M, YR + 4 * i + c))
        for tok in range(2):
            for p in range(8):
                x = X + 16 * tok + 2 * p; y = Y + 16 * tok + 2 * p; l = L1 + 16 * tok + 2 * p
                a("v_pk_fma_f32 v[%d:%d], v[%d:%d], v[%d:%d], v[%d:%d]" % (l, l + 1, l, l + 1, y, y + 1, x, x + 1))
                a("v_cvt_pk_bf16_f32 v%d, v%d, v%d" % (HP + 8 * tok + p, l, l + 1))
        HU = 184
        a("s_mov_b32 vcc_lo, 0x55555555"); a("s_mov_b32 vcc_hi, 0x55555555"); a("s_nop 1")
        for i in range(4):
            for d in range(2):
                a("v_cndmask_b32_dpp v%d, v%d, v%d, vcc quad_perm:[1,0,3,2] row_mask:0xf bank_mask:0xf" % (HU + 4 * i + d, HP + 8 + 2 * i + d, HP + 2 * i + d))
        a("s_mov_b32 vcc_lo, 0xaaaaaaaa"); a("s_mov_b32 vcc_hi, 0xaaaaaaaa"); a("s_nop 1")
        for i in range(4):
            for d in range(2):
                a("v_cndmask_b32_dpp v%d, v%d, v%d, vcc quad_perm:[1,0,3,2] row_mask:0xf bank_mask:0xf" % (HU + 4 * i + 2 + d, HP + 2 * i + d, HP + 8 + 2 * i + d))
        for i in range(4):
            if "x3noh" in self.opt: continue
            a("buffer_store_dwordx4 v[%d:%d], v4, s[%d:%d], s70 offen offset:%d sc1" % (HU + 4 * i, HU + 4 * i + 3, RC, RC + 3, 512 * i))
        for tok in range(2):
            for p in range(8):
                src = HP + 8 * tok + p; dst = X + 16 * tok + 2 * p
                a("v_lshlrev_b32 v%d, 16, v%d" % (dst, src)); a("v_and_b32 v%d, s%d, v%d" % (dst + 1, M, src))
        self.stats(X, ACC)
        self.reduce4([ACC, ACC + 2, ACC + 4, ACC + 6], [60, 61, 62, 63])
        self.ln_scalars([60, 61, 62, 63], T)
        for tok in range(2):
            r, c = T + 4 * tok, T + 4 * tok + 2
            for p in range(8):
                x = X + 16 * tok + 2 * p
                a("v_pk_fma_f32 v[%d:%d], v[%d:%d], v[%d:%d], v[%d:%d] op_sel_hi:[1,0,0]" % (ACC, ACC + 1, x, x + 1, r, r + 1, c, c + 1))
                a("v_cvt_pk_bf16_f32 v%d, v%d, v%d" % (LP + 8 * tok + p, ACC, ACC + 1))
        a("s_mov_b32 vcc_lo, 0x55555555"); a("s_mov_b32 vcc_hi, 0x55555555"); a("s_nop 1")
        for i in range(4):
            for d in range(2):
                a("v_cndmask_b32_dpp v%d, v%d, v%d, vcc quad_perm:[1,0,3,2] row_mask:0xf bank_mask:0xf" % (U + 4 * i + d, LP + 8 + 2 * i + d, LP + 2 * i + d))
        a("s_mov_b32 vcc_lo, 0xaaaaaaaa"); a("s_mov_b32 vcc_hi, 0xaaaaaaaa"); a("s_nop 1")
        for i in range(4):
            for d in range(2):
                a("v_cndmask_b32_dpp v%d, v%d, v%d, vcc quad_perm:[1,0,3,2] row_mask:0xf bank_mask:0xf" % (U + 4 * i + 2 + d, LP + 2 * i + d, LP + 8 + 2 * i + d))
        for i in range(4):
            a("ds_write_b128 v16, v[%d:%d] offset:%d" % (U + 4 * i, U + 4 * i + 3, 4096 * i))
        a("s_lshr_b32 s58, s2, 1"); a("s_lshl_b32 s58, s58, 15"); a("s_and_b32 s59, s2, 1"); a("s_lshl_b32 s59, s59, 7"); a("s_add_u32 s58, s58, s59")
        a("s_waitcnt lgkmcnt(0)")
        a("s_barrier")
        for i in range(4):
            a("ds_read_b128 v[%d:%d], v17 offset:%d" % (LP + 4 * i, LP + 4 * i + 3, 4096 * i))
        for i in range(4):
            a("s_add_u32 s59, s58, %d" % (8192 * i))
            a("s_waitcnt lgkmcnt(%d)" % (3 - i))
            a("buffer_store_dwordx4 v[%d:%d], v18, s[%d:%d], s59 offen sc1" % (LP + 4 * i, LP + 4 * i + 3, RD, RD + 3))
        self.mark(9)
        self.unstash("g1t", 20); self.unstash("g1f", 15); self.unstash("g2w", 25)
        for c in range(4): self.unstash("g2f%d" % c, 26 + c)
        self.unstash("pfd", 30); self.unstash("pfw", 31)
        for tt in range(1, 4): a("v_add_u32 v%d, %d, v20" % (20 + tt, 32768 * tt))
        self.arrive(["s_lshr_b32 s58, s2, 5", "s_lshl_b32 s58, s58, 4", "s_and_b32 s59, s2, 1", "s_add_u32 s58, s58, s59", "s_lshl_b32 s58, s58, 7",
                     "s_add_u32 s60, s58, %d" % (C3 * 128), "v_lshlrev_b32 v7, 8, v2", "v_add_u32 v7, s60, v7"], nlanes=8)
        self.mark(10)

    def g2_dma(self, i, soff):
        fl = "nt" if "g2nt" in self.opt else "sc1" if "g2sc1" in self.opt else ""
        return "buffer_load_dwordx4 v%d, s[%d:%d], s%d offen offset:%d %s lds" % (8 + i, RE, RE + 3, soff, 1024 * i, fl)
    def g2_voffs(self):
        return ["v_add_u32 v%d, %d, v25" % (8 + i, 2048 * (16 * (i & 1) + 4 * (i >> 1)) - 1024 * i) for i in range(4)]

    def gemm1(self):
        a = self.a
        ACC, TOK, WF, PD = 32, 0, 128, 5
        def acc(ct, tt): return ACC + (ct * 4 + tt) * 4
        def wreg(F): return WF + 4 * (F % 7)
        def lreg(F):
            return 4 * F if F < 16 else 160 + 4 * (F - 16) if F < 20 else 204 + 4 * (F - 20)
        def foff(F, jh):
            kk, ct = F // 14, F % 14
            return (ct // 7) * 14336 + kk * 7168 + jh * 3584 + (ct % 7) * 32
        def tokload(slot, j):
            kk, tt = j >> 2, j & 3
            r = TOK + 32 * slot + 16 * kk + 4 * tt
            fl = "nt" if "g1tnt" in self.opt else "" if "g1tpl" in self.opt else "sc1"
            return "buffer_load_dwordx4 a[%d:%d], v%d, s[%d:%d], s78 offen offset:%d %s" % (r, r + 3, 20 + tt, RD, RD + 3, 1024 * kk, fl)
        def mfma(c, w, t): return "v_mfma_f32_16x16x32_bf16 v[%d:%d], a[%d:%d], a[%d:%d], v[%d:%d]" % (c, c + 3, w, w + 3, t, t + 3, c, c + 3)
        def dsr(q, tag, reg, addr, off):
            return lambda: (q.issue(tag), "ds_read_b64_tr_b16 a[%d:%d], v%d offset:%d" % (reg, reg + 1, addr, off))[1]
        def emit(x):
            if callable(x): x = x()
            if x: a(x)
        pf = "nopf2" not in self.opt
        npf = 2 if pf else 0
        def pfops():
            return ["buffer_load_dword v7, v30, s[%d:%d], 0 offen" % (RE, RE + 3), "buffer_load_dword v7, v31, s[%d:%d], 0 offen" % (RC, RC + 3)]
        def pfturn(u):
            return ["s_cmp_eq_u32 s92, %d" % (((u + 1) & 1) if self.pffast else u), "s_cselect_b32 s%d, %d, 0" % (RE + 2, 3584 * 2048), "s_cselect_b32 s%d, %d, 0" % (RC + 2, 1024 * 7168)]
        if pf:
            for i in range(4): a("s_mov_b32 s%d, s%d" % (RC + i, RA + i))
            a("s_mov_b32 s%d, 0" % (RC + 2)); a("s_mov_b32 s%d, 0" % (RE + 2))
        self.ws_srd(RB, WS_HH, 128 * 112 * 1024)
        a("s_lshl_b32 s58, s83, 4"); a("s_lshl_b32 s59, s%d, 1" % S_X); a("s_add_u32 s58, s58, s59"); a("s_lshl_b32 s58, s58, 7")
        a("s_add_u32 s60, s58, %d" % (C3 * 128))
        def zero_acc():
            for r in range(32, 256, 2): a("v_pk_mov_b32 v[%d:%d], 0, 0" % (r, r + 1))
        self.wait(60, 2, 16, shadow=zero_acc)
        self.mark(11)
        for st in range(3):
            for j in range(8): a(tokload(st, j))
            a("s_add_u32 s78, s78, 2048")
        if pf:
            for op in pfops(): a(op)
        a("v_mov_b32 v16, v15")
        q0 = DSQ()
        for F in range(PD):
            for jh in range(2): emit(dsr(q0, ("c", F, jh), wreg(F) + 2 * jh, 16, foff(F, jh)))
        fine = "nofine" not in self.opt
        a("s_waitcnt vmcnt(%d) lgkmcnt(8)" % ((20 if fine else 16) + npf))
        self.mark(12)

        def stage(u, loads, bwait, q, side=False, first_wait=None, mode="n", adv_end=None, nextf=None):
            pfop = side and pf
            G = [[] for _ in range(112)]
            for F in range(28):
                Fn = F + PD
                if Fn < 28:
                    for jh in range(2): G[4 * F + jh].append(dsr(q, ("c", Fn, jh), wreg(Fn) + 2 * jh, 16, foff(Fn, jh)))
                elif mode == "n":
                    for jh in range(2): G[4 * F + jh].append(dsr(q, ("n", Fn - 28, jh), wreg(Fn) + 2 * jh, 16, (foff(nextf[Fn - 28][0], jh) + nextf[Fn - 28][1]) if nextf else foff(Fn - 28, jh)))
                if mode == "m":
                    for jh in range(2): G[4 * F + 2 + jh].append(dsr(q, ("l", F, jh), lreg(F) + 2 * jh, 17, foff(F, jh)))
                if F < 27: G[4 * F + 3].append(lambda F=F: q.wait(("c", F + 1, 1)))
                elif mode == "n": G[4 * F + 3].append(lambda: q.wait(("n", 0, 1)))
            if loads:
                G[1].append("s_add_u32 m0, s75, s74")
                G[16].append("s_add_u32 m0, m0, 4096")
                vm = [self.g1_dma(i) for i in range(7)] + [tokload((u + 3) % 4, j) for j in range(8)]
                if pfop: vm += pfops()
                for i, x in enumerate(vm): G[4 * i + 2].append(x)
                G[4 * 8].append("s_add_u32 s77, s77, %d" % (64 * 7168))
                G[4 * 9].append("s_add_u32 s75, s75, %d" % G1_STAGE); G[4 * 10].append("s_cmp_eq_u32 s75, %d" % (G1_STAGE * G1_NSLOT))
                G[4 * 11].append("s_cselect_b32 s75, 0, s75")
                G[4 * 16].append("s_add_u32 s78, s78, 2048")
                if pfop:
                    for i, x in enumerate(pfturn(u)): G[4 * (12 + i)].append(x)
                    if self.pffast:
                        if u == 1: G[4 * 17].append("v_add_u32 v30, %d, v30" % (320 * 2048)); G[4 * 18].append("v_add_u32 v31, %d, v31" % (128 * 7168))
                        if u == 3: G[4 * 17].append("v_add_u32 v30, %d, v30" % (-960 * 2048)); G[4 * 18].append("v_add_u32 v31, %d, v31" % (128 * 7168))
                    elif u == 3:
                        G[4 * 17].append("v_add_u32 v30, %d, v30" % (-640 * 2048)); G[4 * 18].append("v_add_u32 v31, %d, v31" % (256 * 7168))
            if mode == "n":
                G[4 * 19].append("s_add_u32 s76, s76, %d" % G1_STAGE); G[4 * 20].append("s_cmp_eq_u32 s76, %d" % (G1_STAGE * G1_NSLOT))
                G[4 * 21].append("s_cselect_b32 s76, 0, s76")
                if first_wait is not None and fine:
                    l = a.new_label("fk")
                    G[45].append("s_cmp_lg_u32 s80, 3")
                    G[47] += ["s_cbranch_scc1 %s" % l, "s_waitcnt vmcnt(%d)" % (16 + npf + 12), l + ":"]
                if first_wait is not None:
                    l = a.new_label("fw")
                    G[4 * 21 + 2].append("s_cmp_lg_u32 s80, 3")
                    G[4 * 22] += ["s_cbranch_scc1 %s" % l, "s_waitcnt vmcnt(%d)" % first_wait, l + ":"]
                G[4 * 22 + 2] += ["v_add_u32 v16, s76, v15", "s_waitcnt vmcnt(%d)" % bwait]
                G[4 * 22 + 3].insert(0, "s_barrier")
            if adv_end:
                for g, x in adv_end: G[g].append(x)
            k = 0
            for F in range(28):
                kk, ct = F // 14, F % 14
                for tt in range(4):
                    a(mfma(acc(ct, tt), wreg(F), TOK + 32 * u + 16 * kk + 4 * tt))
                    for x in G[k]: emit(x)
                    k += 1
            for key in list(q.pos):
                if key[0] == "c": del q.pos[key]
            for key in list(q.pos):
                if key[0] == "n": q.pos[("c",) + key[1:]] = q.pos.pop(key)
        nst = 15 + npf
        a("s_mov_b32 s80, 3")
        loop = a.new_label("g1"); a.label(loop)
        q = DSQ()
        for F in range(PD):
            for jh in range(2): q.issue(("c", F, jh))
        q.done = 2
        for u in range(4):
            stage(u, True, npf + 2 * nst, q, side=True, first_wait=(8 + npf + nst) if u == 0 else None,
                  adv_end=[(4 * 23 + 2, "s_sub_u32 s80, s80, 1"), (4 * 26 + 2, "s_cmp_lg_u32 s80, 0")] if u == 3 else None)
        a("s_cbranch_scc1 %s" % loop)
        self.mark(13)
        if "xs" in self.opt: a("s_mov_b32 s100, 0"); a("s_mov_b32 s101, 0")
        a("s_mov_b32 s%d, %d" % (RE + 2, 3584 * 2048))
        def run(c, sts): return [(st, kk, ct) for st in sts for kk in range(2) for ct in (c, 7 + c)]
        seq = run(0, (13, 14)) + run(1, (13, 14)) + run(0, (15,)) + run(1, (15,))
        done = {0: 20, 1: 24}
        for c in range(2, 7): seq += run(c, (13, 14, 15)); done[c] = len(seq)
        stage(0, True, npf + 15, q, nextf=[(14 * kk + ct, (st - 13) * G1_STAGE) for (st, kk, ct) in seq[:PD]])
        self.mark(14)
        def capture(fn):
            keep = self.a; tmp = Asm(); self.a = tmp; fn(); self.a = keep
            return [l.strip() for l in tmp.lines]
        st_ = self.stashed
        pre = self.g2_voffs() + ["v_mov_b32 v17, v15", "v_accvgpr_read_b32 v4, a%d" % st_["g1es"],
               "s_mul_i32 s58, s73, %d" % (112 * 1024), "s_mul_i32 s59, s72, 7", "s_add_u32 s60, s59, 1", "s_lshr_b32 s60, s60, 1",
               "s_lshl_b32 s60, s60, 10", "s_add_u32 s60, s60, s58", "s_and_b32 s61, s72, 1", "s_mov_b32 s62, 3072", "s_cmp_eq_u32 s61, 1", "s_cselect_b32 s62, -512, s62",
               "s_add_u32 s62, s62, s60"] + capture(self.g2_pre)
        def glue(L):
            out = []; i = 0
            while i < len(L):
                if i + 1 < len(L) and isinstance(L[i], str) and (L[i + 1].startswith("s_addc") or L[i + 1].startswith("s_cselect")):
                    out.append(L[i] + "\n" + L[i + 1]); i += 2
                else: out.append(L[i]); i += 1
            return out
        pre = glue(pre)
        vq = VMQ()
        def mul(c, tt):
            g, u = acc(c, tt), acc(7 + c, tt)
            return ["v_mul_f32 v%d, v%d, v%d" % (g + i, g + i, u + i) for i in range(4)]
        def cvt(c, tt):
            g = acc(c, tt); u = acc(7 + c, tt & ~1) + 2 * (tt & 1)
            return ["v_cvt_pk_bf16_f32 v%d, v%d, v%d" % (u, g, g + 1), "v_cvt_pk_bf16_f32 v%d, v%d, v%d" % (u + 1, g + 2, g + 3)]
        def out(c, tp):
            u = acc(7 + c, tp)
            base, off = (62, 0) if c == 6 else (60, 1024 * (c >> 1) + 512 * (c & 1))
            return ["s_add_u32 s63, s%d, %d" % (base, off + tp * 112 * 1024),
                    "v_permlane16_swap_b32 v%d, v%d" % (u, u + 2), "v_permlane16_swap_b32 v%d, v%d" % (u + 1, u + 3),
                    vq.op(("h", c, tp), "buffer_store_dwordx4 v[%d:%d], v4, s[%d:%d], s63 offen sc1" % (u, u + 3, RB, RB + 3))]
        held = []
        def epi(c, hold=False):
            o0, o2 = out(c, 0), out(c, 2)
            if hold:
                held.extend([o0[0], o0[3], o2[0], o2[3]]); o0 = o0[1:3]; o2 = ["s_nop 1"] + o2[1:3]
            return mul(c, 0) + mul(c, 1) + cvt(c, 0) + cvt(c, 1) + mul(c, 2) + mul(c, 3) + o0 + cvt(c, 2) + cvt(c, 3) + o2
        N = len(seq)
        G = [[] for _ in range(4 * N)]
        def faddr(n):
            st, kk, ct = seq[n]
            return (16, 0) if st == 13 else (16, G1_STAGE) if st == 14 else (17, 0)
        for n in range(N):
            m = n + PD
            if m < N:
                st, kk, ct = seq[m]; reg, off = faddr(m)
                for jh in range(2): G[4 * n + jh].append(dsr(q, ("c", m, jh), wreg(m) + 2 * jh, reg, off + foff(14 * kk + ct, jh)))
            if n < N - 1: G[4 * n + 3].append(lambda n=n: q.wait(("c", n + 1, 1)))
        nb = 16 - PD - 1
        assert all(x[0] != 15 for x in seq[:16])
        G[4 * nb + 2].append(lambda: "s_waitcnt vmcnt(%d)" % vq.n); G[4 * nb + 3].insert(0, "s_barrier")
        ex = []
        for st in range(4):
            ex.append("s_add_u32 m0, s88, %d" % G2_SLOT[st])
            for i in range(4): ex.append(vq.op(("w", st, i), self.g2_dma(i, G2_ROW[st])))
        exn = self.optv("exn", 4)
        ex0 = self.optv("ex0", 3)
        if ex0 <= nb:
            G[4 * (ex0 - 1) + 3].insert(0, "s_barrier")
        for i, x in enumerate(ex): G[4 * (ex0 + (i * exn) // 5) + (2 if i % 5 else 1)].append(x)
        nA, nP, nC, nB = self.nA0, self.nPoll, self.nChk, self.nA1
        G[4 * nA + 2] += [lambda: vq.wait(("h", 1, 2)), vq.op("a0", "buffer_atomic_add v6, v5, s[%d:%d], 0 offen" % (RS, RS + 3))]
        G[4 * nP + 2].append(vq.op("p0", "buffer_load_dword v31, v30, s[%d:%d], 0 offen sc1" % (RS, RS + 3)))
        slow = a.new_label("c4s"); back = a.new_label("c4b")
        G[4 * nC + 1].append(lambda: vq.wait("p0"))
        G[4 * nC + 2] += ["v_cmp_gt_u32 vcc, 16, v31", "s_cbranch_vccnz %s" % slow, back + ":"]
        self.slow.append((slow, back, "0"))
        G[4 * nB + 2] += [lambda: vq.wait(("h", 3, 2)), vq.op("a1", "buffer_atomic_add v6, v5, s[%d:%d], s79 offen" % (RS, RS + 3))]
        def place(ops, g0):
            g = g0; k = 0
            while k < len(ops) and g < 4 * N:
                if len([x for x in G[g] if not (isinstance(x, str) and x.endswith(":"))]) < 2: G[g].append(ops[k]); k += 1
                else: g += 1
            return ops[k:], g + 1
        rest, gp = place(pre, 0); assert not rest and gp <= 4 * 20, gp
        tok = []
        for st in range(4):
            tok.append("s_lshr_b32 s78, s%d, 6" % G2_ROW[st])
            for j in range(4): tok.append(vq.op(("t", st, j), self.g2_tokload(st, j)))
        tkn = self.optv("tkn", 4)
        gt = 0
        for i, x in enumerate(tok):
            gt = 4 * (nC + 1 + i // tkn) + ([2], [0, 2], [0, 1, 2], [0, 1, 2, 3])[tkn - 1][i % tkn]
            G[gt].append(x)
        nhold = self.optv("hold", 0)
        def zero(r0): return ["v_pk_mov_b32 v[%d:%d], 0, 0" % (r, r + 1) for r in range(r0, r0 + 16, 2)]
        g = 0
        left = []
        for c in range(6):
            rest, g = place(epi(c, hold=c >= 6 - nhold), max(g - 1, 4 * done[c] + 1))
            assert not rest or c == 5
            left += rest
            if c < 4: rest, g = place(zero(acc(c, 0)), g - 1); assert not rest
        rest, g = place(held, max(gt + 1, g - 1) if not left else 4 * N)
        left += rest
        k = 0
        for n in range(N):
            st, kk, ct = seq[n]
            for tt in range(4):
                a(mfma(acc(ct, tt), wreg(n), TOK + 32 * (st % 4) + 16 * kk + 4 * tt))
                for x in G[k]: emit(x)
                k += 1
            if "xm" in self.opt and n in (nA, nC, 23, 47): self.mark({nA: 26, nC: 27, 23: 24, 47: 25}[n])
        for x in left + epi(6): emit(x)
        self.mark(15)
        self.vq = vq

    def g2_pre(self):
        a = self.a
        self.unstash("g2t0", 20); self.unstash("g2t1", 21); self.unstash("g2o", 22); self.unstash("g2o4", 23)
        self.unstash("g2tab", 25); self.unstash("c4a", 5); self.unstash("c4p", 30)
        ks = 1024 if "x2nat" in self.opt else 7168
        a("v_add_u32 v18, %d, v20" % ks); a("v_add_u32 v19, %d, v21" % ks); a("v_mov_b32 v6, 1")
        self.in_srd(RD, P_OUT, 4194304)
        self.ws_srd(RA, WS_XCH, 1024 * self.xstr)
        self.ws_srd(RC, WS_H, 4194304)
        for c in range(4):
            a("v_add_u32 v%d, %d, v%d" % (12 + c, G2_SLOT[5], 26 + c)); a("v_add_u32 v%d, %d, v%d" % (26 + c, G2_BASE, 26 + c))
        a("v_readlane_b32 s75, v25, 4"); a("s_mov_b32 s76, 5"); a("s_mov_b32 s79, %d" % (128 * 128)); a("s_mov_b32 s77, %d" % (256 * 128))
    def g2_tokload(self, slot, j):
        kk, tt = j >> 1, j & 1
        r = G2_TOK[slot] + 8 * kk + 4 * tt
        fl = "nt" if "g2tnt" in self.opt else "" if "g2tpl" in self.opt else "sc1"
        return "buffer_load_dwordx4 a[%d:%d], v%d, s[%d:%d], s78 offen %s" % (r, r + 3, (18 if kk else 20) + tt, RB, RB + 3, fl)
    def gemm2(self):
        a = self.a
        ACC, HR, TOK, WF, PD, NST = 32, 96, 0, G2_WF, 7, 28
        def acc(ct, tt): return ACC + (ct * 2 + tt) * 4
        tokload = self.g2_tokload
        def fk(F): return (F >> 2) & 1, (F & 3) + (0 if F >= 8 else 4)
        def fread(slot, F, jh, ring=None):
            kk, ct = fk(F)
            r = WF + 4 * ((F if ring is None else ring) % 8) + 2 * jh
            base, so = (12, G2_SLOT[slot] - G2_SLOT[5]) if slot in (3, 5) else (26, G2_SLOT[slot] - G2_BASE)
            assert 0 <= so <= 49152
            return "ds_read_b64_tr_b16 a[%d:%d], v%d offset:%d" % (r, r + 1, base + (ct & 3), so + (2 * kk + (ct >> 2)) * 4096 + jh * 2048)
        a("s_barrier")
        for F in range(PD):
            for jh in range(2): a(fread(0, F, jh))
        a("s_add_u32 m0, s88, %d" % G2_SLOT[4])
        a(self.vq.wait(("t", 1, 3)) + " lgkmcnt(10)")
        self.mark(18)
        vq = self.vq
        def stage(u, loads, bwait, last=False, extra=None, tailops=None, first=None):
            G = [[] for _ in range(32)]
            nods = "x2nods" in self.opt
            for F in range(16):
                Fn = F + PD
                if not nods and not (last and Fn >= 16):
                    sl = u if Fn < 16 else (u + 1) % 6
                    G[2 * F].append(fread(sl, Fn % 16, 0)); G[2 * F + 1].append(fread(sl, Fn % 16, 1))
                if F & 1:
                    if not last: G[2 * F + 1].append("s_waitcnt lgkmcnt(10)")
                    elif F < 15:
                        issued = min(F + PD, 15); need = F + 2
                        G[2 * F + 1].append("s_waitcnt lgkmcnt(%d)" % max(0, 2 * (issued - need)))
            vm = []
            def check(g, wait, soff):
                slow = a.new_label("c4t"); back = a.new_label("c4u")
                G[g].append(wait); G[g + 1].append("v_cmp_gt_u32 vcc, 16, v31"); G[g + 2] += ["s_cbranch_vccnz %s" % slow, back + ":"]
                self.slow.append((slow, back, soff))
            def poll(soff): return "buffer_load_dword v31, v30, s[%d:%d], %s offen sc1" % (RS, RS + 3, soff)
            if loads:
                vm = [self.g2_dma(i, 75) for i in range(4)] + [tokload((u + 4) % 6, j) for j in range(4)]
                if "x2nodma" in self.opt: vm[:4] = ["s_nop 0"] * 4
                if "x2notok" in self.opt: vm[4:] = ["s_nop 0"] * 4
                G[1].append("s_lshr_b32 s78, s75, 6")
                G[9].append("v_readlane_b32 s75, v25, s76"); G[13].append("s_add_u32 s76, s76, 1")
                G[29].append("s_add_u32 m0, s88, %d" % G2_SLOT[(u + 5) % 6])
                if first is not None:
                    vm = [vq.op(("L", first + 4, i), x) for i, x in enumerate(vm)]
                    bwait = lambda: vq.wait(("L", first + 1, 7) if first >= 3 else ("t", first + 1, 3))
                    if first == 1: G[15].append(vq.op("p1", poll("s79")))
                    if first == 4: check(5, lambda: vq.wait("p1"), "s79")
                    if first == self.optv("nD", 2):
                        G[18] += [lambda: vq.wait(("h", 6, 2))]; G[20].append(vq.op("a2", "buffer_atomic_add v6, v5, s[%d:%d], s77 offen" % (RS, RS + 3)))
                else:
                    if u == 3: G[15].append(poll("s77"))
                    if u == 0: check(5, "s_waitcnt vmcnt(19)", "s77")
            if extra: vm = extra
            for i, x in enumerate(vm): G[2 * i].append(x)
            if not last:
                G[16].append(bwait if callable(bwait) else "s_waitcnt vmcnt(%d)" % bwait); G[17].append("s_barrier")
            if tailops:
                for g, x in tailops: G[g].append(x)
            k = 0
            for F in range(16):
                kk, ct = fk(F)
                w = WF + 4 * (F % 8)
                for tt in range(2):
                    t = G2_TOK[u] + 8 * kk + 4 * tt; c = acc(ct, tt)
                    if "x2nomfma" not in self.opt:
                        a("v_mfma_f32_16x16x32_bf16 v[%d:%d], a[%d:%d], a[%d:%d], v[%d:%d]" % (c, c + 3, w, w + 3, t, t + 3, c, c + 3))
                    for x in G[k]: a(x() if callable(x) else x)
                    k += 1
        for u in range(6):
            stage(u, True, None, first=u)
            if "xm3" in self.opt: self.mark([16, 17, 24, 25, 26, 27][u])
        a("s_mov_b32 s81, 3")
        loop = a.new_label("g2"); a.label(loop)
        for u in range(6):
            stage(u, True, [25, 24, 24, 25, 25, 25][u], tailops=[(22, "s_sub_u32 s81, s81, 1"), (30, "s_cmp_lg_u32 s81, 0")] if u == 5 else None)
        a("s_cbranch_scc1 %s" % loop)
        a("s_mov_b32 s60, 32768")
        hl = ["buffer_load_dwordx2 v[%d:%d], v22, s[%d:%d], %s offen offset:%d sc1" % (HR + 2 * e, HR + 2 * e + 1, RC, RC + 3, "s60" if e & 1 else "0", 32 * (e >> 1)) for e in range(8)]
        seq = [(u, F) for u in range(4) for F in range(8)] + [(u, F) for u in range(4) for F in range(8, 16)]
        N = len(seq)
        G = [[] for _ in range(2 * N)]
        q = DSQ()
        for n in range(PD):
            for jh in range(2): q.issue((n, jh))
        q.done = 4
        def rd(m, jh): return lambda: (q.issue((m, jh)), fread(seq[m][0], seq[m][1], jh, ring=m))[1]
        for n in range(N):
            m = n + PD
            if m < N: G[2 * n].append(rd(m, 0)); G[2 * n + 1].append(rd(m, 1))
            if n & 1 and n < N - 1: G[2 * n + 1].append(lambda n=n: q.wait((min(n + 2, N - 1), 1)))
        for u, cnt in ((1, 16), (2, 16), (3, 8)):
            n = 8 * u - PD - 1
            G[2 * n].append("s_waitcnt vmcnt(%d)" % cnt); G[2 * n + 1].insert(0, "s_barrier")
        for i, x in enumerate(hl): G[2 * (1 + i) if i < 7 else 2 * 8 - 1].append(x)
        xa = ["s_lshl_b32 s58, s2, 2", "s_add_u32 s58, s58, s%d" % S_WAVE, "s_mul_i32 s61, s58, %d" % self.xstr, "s_xor_b32 s58, s58, 4",
              "s_mul_i32 s62, s58, %d" % self.xstr, "s_add_u32 s63, s62, 4096", "s_add_u32 s58, s61, 4096"]
        for i, x in enumerate(xa): G[2 * (18 + i)].append(x)
        if self.x32:
            for e in range(8):
                c = ACC + 32 + 4 * e
                G[2 * 32 + self.optv("xsp", 1) * e + 1].append("buffer_store_dwordx4 v[%d:%d], v24, s[%d:%d], s%d offen offset:%d sc1" % (c, c + 3, RA, RA + 3, 58 if e >> 2 else 61, 1024 * (e & 3)))
        else:
            g = 2 * 31
            for p_ in range(4):
                c = ACC + 32 + 8 * p_
                ops = ["v_cvt_pk_bf16_f32 v%d, v%d, v%d" % (c + i, c + 2 * i, c + 2 * i + 1) for i in range(4)]
                ops.append("buffer_store_dwordx4 v[%d:%d], v24, s[%d:%d], s61 offen offset:%d sc1" % (c, c + 3, RA, RA + 3, 1024 * p_))
                g = max(g, 2 * (28 + p_) + 6)
                for x in ops:
                    while len(G[g]) >= 2: g += 1
                    G[g].append(x)
                g += self.optv("xsp", 1)
        k = 0
        for n in range(N):
            u, F = seq[n]; kk, ct = fk(F)
            w = WF + 4 * (n % 8)
            for tt in range(2):
                t = G2_TOK[u] + 8 * kk + 4 * tt; c = acc(ct, tt)
                a("v_mfma_f32_16x16x32_bf16 v[%d:%d], a[%d:%d], a[%d:%d], v[%d:%d]" % (c, c + 3, w, w + 3, t, t + 3, c, c + 3))
                for x in G[k]:
                    x = x() if callable(x) else x
                    if x: a(x)
                k += 1
        self.mark(19)
        R = 112
        NX = 8 if self.x32 else 4
        def xloads():
            for e in range(NX):
                a("buffer_load_dwordx4 v[%d:%d], v24, s[%d:%d], s%d offen offset:%d sc1" % (R + 4 * e, R + 4 * e + 3, RA, RA + 3, 62 + (e >> 2), 1024 * (e & 3)))
        def residual():
            for e in list(range(8)):
                c = ACC + 4 * e; r = HR + 2 * e
                a("v_lshlrev_b32 v4, 16, v%d" % r); a("v_and_b32 v5, s%d, v%d" % (S_MASK, r))
                a("v_lshlrev_b32 v6, 16, v%d" % (r + 1)); a("v_and_b32 v7, s%d, v%d" % (S_MASK, r + 1))
                for i in (0, 2): a("v_pk_add_f32 v[%d:%d], v[%d:%d], v[%d:%d]" % (c + i, c + i + 1, c + i, c + i + 1, 4 + i, 5 + i))
        if "reslast" not in self.opt:
            a("s_waitcnt vmcnt(%d)" % NX); residual(); xloads()
        else:
            xloads()
            a("s_waitcnt vmcnt(%d)" % (2 * NX))
            residual()
        self.mark(20)
        ok = a.new_label("xgo"); lp = a.new_label("xpl")
        a("s_mov_b32 s59, 0")
        a.label(lp)
        a("s_waitcnt vmcnt(0)")
        a("v_max3_u32 v4, v%d, v%d, v%d" % (R, R + 1, R + 2))
        for i in range(3, 4 * NX - 1, 2): a("v_max3_u32 v4, v4, v%d, v%d" % (R + i, R + i + 1))
        a("v_max_u32 v4, v4, v%d" % (R + 4 * NX - 1))
        a("v_cmp_eq_u32 vcc, -1, v4")
        a("s_add_u32 s59, s59, 1"); a("s_cmp_gt_u32 s59, %d" % SPIN_MAX); a("s_cbranch_scc1 %s" % ok)
        a("s_cbranch_vccz %s" % ok)
        xloads()
        a("s_branch %s" % lp)
        a.label(ok)
        self.mark(21)
        units = [(tt, m) for tt in range(2) for m in range(2)]
        def fin(i):
            tt, m = units[i]; up = HR + 4 * i
            a("v_permlane16_swap_b32 v%d, v%d" % (up, up + 2)); a("v_permlane16_swap_b32 v%d, v%d" % (up + 1, up + 3))
            fl = " sc1" if "outsc1" in self.opt else " nt" if "outnt" in self.opt else " sc0 sc1" if "outsc01" in self.opt else " sc1 nt" if "outsc1nt" in self.opt else " sc0 sc1 nt" if "outall" in self.opt else ""
            a("buffer_store_dwordx4 v[%d:%d], v23, s[%d:%d], %s offen offset:%d%s" % (up, up + 3, RD, RD + 3, "s60" if tt else "0", 64 * m, fl))
        for i, (tt, m) in enumerate(units):
            u = HR + 4 * i
            for h in range(2):
                e = 2 * (2 * m + h) + tt
                c = ACC + 4 * e; r = R + 4 * e
                if self.x32:
                    for j in range(4): a("v_add_f32 v%d, v%d, v%d" % (c + j, c + j, r + j))
                else:
                    r = R + 4 * (e >> 1) + 2 * (e & 1)
                    a("v_lshlrev_b32 v4, 16, v%d" % r); a("v_and_b32 v5, s%d, v%d" % (S_MASK, r))
                    a("v_lshlrev_b32 v6, 16, v%d" % (r + 1)); a("v_and_b32 v7, s%d, v%d" % (S_MASK, r + 1))
                    for j in (0, 2): a("v_pk_add_f32 v[%d:%d], v[%d:%d], v[%d:%d]" % (c + j, c + j + 1, c + j, c + j + 1, 4 + j, 5 + j))
                a("v_cvt_pk_bf16_f32 v%d, v%d, v%d" % (u + 2 * h, c, c + 1)); a("v_cvt_pk_bf16_f32 v%d, v%d, v%d" % (u + 2 * h + 1, c + 2, c + 3))
            if i > 0: fin(i - 1)
        a("s_nop 1")
        fin(3)
        self.mark(22)

    def finish(self, name):
        a = self.a
        if self.diag:
            a("s_waitcnt vmcnt(0) lgkmcnt(0)")
            self.mark(23)
            a("s_memrealtime s[92:93]"); a("s_waitcnt lgkmcnt(0)")
            a("v_accvgpr_read_b32 v1, a255"); a("s_nop 1")
            if "xs" in self.opt: a("v_writelane_b32 v1, s100, 54"); a("v_writelane_b32 v1, s101, 55")
            for i, s in enumerate((94, 95, 96, 97, 92, 93)):
                a("v_writelane_b32 v1, s%d, %d" % (s, 56 + i))
            self.ws_srd(RA, STAMP, 256 * 1024)
            a("s_lshl_b32 s58, s2, 10"); a("s_lshl_b32 s59, s%d, 8" % S_WAVE); a("s_add_u32 s58, s58, s59")
            a("v_lshlrev_b32 v3, 2, v2")
            a("buffer_store_dword v1, v3, s[%d:%d], s58 offen" % (RA, RA + 3))
            if "dbgspan" in self.opt:
                self.in_srd(RE, P_DBG, 256)
                nd = a.new_label("nodbg")
                a("s_cmp_lg_u32 s%d, 0" % S_WAVE); a("s_cbranch_scc1 %s" % nd)
                a("s_not_b32 s58, s94"); a("v_mov_b32 v4, s58"); a("v_mov_b32 v5, 16"); a("v_mov_b32 v6, s92"); a("v_mov_b32 v7, 20")
                a("s_mov_b64 exec, 1")
                a("buffer_atomic_umax v4, v5, s[%d:%d], 0 offen" % (RE, RE + 3))
                a("buffer_atomic_umax v6, v7, s[%d:%d], 0 offen" % (RE, RE + 3))
                a("s_mov_b64 exec, -1")
                a("s_cmp_lg_u32 s2, 0"); a("s_cbranch_scc1 %s" % nd)
                a("v_mov_b32 v4, 0")
                for i, m in enumerate((2, 3, 6, 8, 11, 12, 14, 17, 19, 23)):
                    a("v_readlane_b32 s58, v1, %d" % (2 * m)); a("s_nop 3"); a("s_sub_u32 s58, s58, s96"); a("v_writelane_b32 v4, s58, %d" % (6 + i)); a("s_nop 1")
                a("v_lshlrev_b32 v5, 2, v2")
                a("s_mov_b64 exec, 0xffc0")
                a("buffer_store_dword v4, v5, s[%d:%d], 0 offen" % (RE, RE + 3))
                a("s_mov_b64 exec, -1")
                a.label(nd)
        a.label(name + "_done")
        a("s_endpgm")
        for slow, back, soff in self.slow:
            a.label(slow)
            a("s_mov_b32 s80, 0")
            a.label(slow + "l")
            a("buffer_load_dword v31, v30, s[%d:%d], %s offen sc1" % (RS, RS + 3, soff))
            a("s_waitcnt vmcnt(0)")
            a("v_cmp_gt_u32 vcc, 16, v31")
            if "xs" in self.opt: a("s_add_u32 s%d, s%d, 1" % ((100, 100) if soff == "0" else (101, 101)))
            a("s_add_u32 s80, s80, 1"); a("s_cmp_gt_u32 s80, %d" % SPIN_MAX); a("s_cbranch_scc1 %s" % back)
            a("s_cbranch_vccnz %sl" % slow)
            a("s_branch %s" % back)
        if self.slow: a("s_endpgm")
    def build(self, upto=5):
        name = KNAME + "_kernel"
        self.entry(name)
        self.prep()
        if upto >= 2: self.conv()
        if upto >= 3:
            self.g1_setup(); self.ln()
        if upto >= 4: self.gemm1()
        if upto >= 5: self.gemm2()
        self.finish(name)
        hdr = "; persistent single-launch kernel generated by gen/fused.py (hand-written generator)\n"
        hdr += "; @launch grid=(256,1,1) block=(256,1,1) lds=%d\n" % LDS_TOTAL
        hdr += '.amdgcn_target "amdgcn-amd-amdhsa--gfx950"\n'
        return hdr + self.a.text() + kernel_desc(name, 512, 102, 256)

if __name__ == "__main__":
    import sys
    out = sys.argv[1]
    opt = sys.argv[2] if len(sys.argv) > 2 else ""
    diag = "diag" in opt.split(",")
    upto = 5
    for t in opt.split(","):
        if t.startswith("upto"): upto = int(t[4:])
    open(out, "w").write(Gen(opt, diag).build(upto))
```

```python
from asmlib import *
from layout import *

P_Q, P_K, P_V, P_SK, P_SSMK, P_SSMD, P_WG, P_WU, P_WD, P_OUT, P_DBG, P_WS = 4, 6, 8, 10, 12, 14, 18, 20, 22, 24, 26, 28
S_WAVE, S_X, S_J = 30, 31, 3
RA, RB, RC, RD, RE, RS = 32, 36, 40, 44, 48, 52
S_MASK, S_EPS = 56, 57
SPIN_MAX = 1 << 17

KCOPY = 4160; XB0 = 4 * KCOPY; XSTR = 4576; WREG = 25856
CSTG = 4 * WREG
PSTG = CSTG + 17408
G1_STAGE = 28672; G1_NSLOT = 5
SENT = 236
G2_WF = 204
G2_STAGE = 16384; G2_NSLOT = 6; G2_BASE = G1_STAGE
G2_SLOT = [G2_BASE, G2_BASE + G2_STAGE, G2_BASE + 2 * G2_STAGE, G1_STAGE * G1_NSLOT, G2_BASE + 3 * G2_STAGE, G2_BASE + 4 * G2_STAGE]
G2_ROW = [89, 90, 91, 93]
G2_TOK = [0, 16, 160, 176, 32, 48]
LDS_TOTAL = G1_STAGE * G1_NSLOT + G2_STAGE

class DSQ:
    def __init__(self): self.n = 0; self.pos = {}; self.done = 0
    def issue(self, tag): self.n += 1; self.pos[tag] = self.n
    def wait(self, tag):
        need = self.pos[tag]
        if need <= self.done: return None
        cnt = min(15, self.n - need); self.done = self.n - cnt
        return "s_waitcnt lgkmcnt(%d)" % cnt

class VMQ:
    def __init__(self): self.n = 0; self.pos = {}
    def op(self, tag, text): return lambda: (self.issue(tag), text)[1]
    def issue(self, tag): self.n += 1; self.pos[tag] = self.n
    def wait(self, tag): return "s_waitcnt vmcnt(%d)" % min(63, self.n - self.pos[tag])

class Gen:
    def __init__(self, opt="", diag=False):
        self.a = Asm(); self.opt = set(opt.split(",")); self.diag = diag; self.stashed = {}; self.pffast = "pfall" not in self.opt; self.slow = []
        optv = self.optv
        self.sh_prep, self.sh_c1, self.sh_c3 = {4: (["g1", "g2", "pf", "ln", "cv"], [], []), 5: (["g2", "pf", "ln", "cv"], ["g1"], []),
                                                7: (["pf", "ln", "cv"], ["g1"], ["g2"]), 8: (["pf", "cv"], ["g1", "ln"], ["g2"]),
                                                9: (["g1"], ["pf", "ln", "cv"], ["g2"])}[optv("sh", 5)]
        self.x32 = "xf32" in self.opt
        self.xbytes = 8192 if self.x32 else 4096
        self.xstr = optv("xstr", self.xbytes + 1152)
        self.nA0, self.nPoll, self.nChk, self.nA1 = optv("nA", 46), optv("nP", 62), optv("nC", 70), optv("nB", 76)
    def optv(self, name, dflt):
        for t in self.opt:
            if t.startswith(name + "="): return int(t[len(name) + 1:])
        return dflt
    def mark(self, i):
        if not self.diag: return
        a = self.a
        a("s_memtime s[98:99]"); a("s_waitcnt lgkmcnt(0)")
        a("v_accvgpr_read_b32 v1, a255"); a("s_nop 1")
        a("v_writelane_b32 v1, s98, %d" % (2 * i)); a("v_writelane_b32 v1, s99, %d" % (2 * i + 1))
        a("s_nop 1"); a("v_accvgpr_write_b32 a255, v1")
    def stash(self, name, v):
        n = len(self.stashed)
        idx = self.stashed.setdefault(name, 176 + n if n < 28 else 240 + n - 28); assert idx < 255
        self.a("v_accvgpr_write_b32 a%d, v%d" % (idx, v))
    def unstash(self, name, v):
        self.a("v_accvgpr_read_b32 v%d, a%d" % (v, self.stashed[name]))
    def ws_srd(self, dst, off, size):
        a = self.a
        a("s_add_u32 s%d, s%d, 0x%x" % (dst, P_WS, off)); a("s_addc_u32 s%d, s%d, 0" % (dst + 1, P_WS + 1))
        a("s_and_b32 s%d, s%d, 0xffff" % (dst + 1, dst + 1)); a("s_mov_b32 s%d, 0x%x" % (dst + 2, size)); a("s_mov_b32 s%d, 0x00020000" % (dst + 3))
    def in_srd(self, dst, ptr, size, soff=None):
        a = self.a
        if soff is None:
            srd(a, dst, ptr, size)
        else:
            a("s_add_u32 s%d, s%d, s%d" % (dst, ptr, soff)); a("s_addc_u32 s%d, s%d, 0" % (dst + 1, ptr + 1))
            a("s_and_b32 s%d, s%d, 0xffff" % (dst + 1, dst + 1)); a("s_mov_b32 s%d, 0x%x" % (dst + 2, size)); a("s_mov_b32 s%d, 0x00020000" % (dst + 3))
    def arrive(self, addr, nlanes=1, vm=0, check_init=None, init_target=1):
        a = self.a
        for s in addr: a(s)
        a("s_waitcnt vmcnt(%d)" % vm)
        a("s_barrier")
        sk = a.new_label("arr")
        a("s_cmp_lg_u32 s%d, 0" % S_WAVE); a("s_cbranch_scc1 %s" % sk)
        if check_init is not None:
            ok = a.new_label("ini"); lp = a.new_label("inip")
            a("s_mov_b32 s59, 0")
            a.label(lp)
            a("v_readfirstlane_b32 s58, v%d" % check_init)
            a("s_cmp_ge_u32 s58, %d" % init_target); a("s_cbranch_scc1 %s" % ok)
            a("s_add_u32 s59, s59, 1"); a("s_cmp_gt_u32 s59, %d" % SPIN_MAX); a("s_cbranch_scc1 %s" % ok)
            a("v_mov_b32 v6, 0")
            a("buffer_load_dword v%d, v6, s[%d:%d], 0 offen sc1" % (check_init, RE, RE + 3))
            a("s_waitcnt vmcnt(0)")
            a("s_branch %s" % lp)
            a.label(ok)
        a("v_mov_b32 v6, 1")
        a("s_mov_b64 exec, 0x%x" % ((1 << nlanes) - 1))
        a("buffer_atomic_add v6, v7, s[%d:%d], 0 offen" % (RS, RS + 3))
        a("s_mov_b64 exec, -1")
        a.label(sk)
    def wait(self, line_sgpr, nlines, target, shadow=None):
        a = self.a
        sk = a.new_label("wt"); lp = a.new_label("wtp"); s0 = a.new_label("wt0")
        mask = "0x%x" % ((1 << nlines) - 1)
        a("s_cmp_lg_u32 s%d, 0" % S_WAVE); a("s_cbranch_scc1 %s" % s0)
        a("v_min_u32 v6, %d, v2" % (nlines - 1)); a("v_lshlrev_b32 v6, 7, v6"); a("v_add_u32 v6, s%d, v6" % line_sgpr)
        a("s_mov_b64 exec, %s" % mask)
        a("buffer_load_dword v7, v6, s[%d:%d], 0 offen sc1" % (RS, RS + 3))
        a("s_mov_b64 exec, -1")
        a.label(s0)
        if shadow: shadow()
        a("s_cmp_lg_u32 s%d, 0" % S_WAVE); a("s_cbranch_scc1 %s" % sk)
        a("s_mov_b32 s59, 0")
        a("s_mov_b64 exec, %s" % mask)
        a.label(lp)
        a("s_waitcnt vmcnt(0)")
        a("v_cmp_gt_u32 vcc, %d, v7" % target)
        a("s_add_u32 s59, s59, 1")
        a("s_cmp_gt_u32 s59, %d" % SPIN_MAX); a("s_cbranch_scc1 %s" % (sk + "x"))
        a("s_cbranch_vccz %s" % (sk + "x"))
        a("buffer_load_dword v7, v6, s[%d:%d], 0 offen sc1" % (RS, RS + 3))
        a("s_branch %s" % lp)
        a.label(sk + "x")
        a("s_mov_b64 exec, -1")
        a.label(sk)
        a("s_barrier")

    def entry(self, name):
        a = self.a
        kernel_begin(a, name)
        a("s_cmp_ge_u32 s2, 256"); a("s_cbranch_scc1 %s_done" % name)
        if self.diag:
            a("s_memrealtime s[94:95]"); a("s_memtime s[96:97]"); a("v_accvgpr_write_b32 a255, 0")
        a("s_load_dwordx16 s[4:19], s[0:1], 0")
        a("s_load_dwordx8 s[20:27], s[0:1], 64")
        a("s_load_dwordx2 s[28:29], s[0:1], 96")
        a("v_lshrrev_b32 v1, 6, v0")
        a("v_and_b32 v2, 63, v0")
        a("v_readfirstlane_b32 s%d, v1" % S_WAVE)
        a("s_and_b32 s%d, s2, 7" % S_X); a("s_lshr_b32 s%d, s2, 3" % S_J)
        a("s_mov_b32 s%d, 0xffff0000" % S_MASK); a("s_mov_b32 s%d, 0x3727c5ac" % S_EPS)

    def prep(self):
        a = self.a
        a("v_and_b32 v8, 7, v0")
        a("v_lshrrev_b32 v9, 3, v0")
        a("s_lshr_b32 s60, s2, 4")
        a("s_and_b32 s61, s2, 15")
        a("s_lshl_b32 s62, s60, 18"); a("s_lshl_b32 s63, s61, 7"); a("s_add_u32 s62, s62, s63")
        a("v_lshlrev_b32 v3, 13, v9"); a("v_lshl_add_u32 v3, v8, 4, v3"); a("v_add_u32 v3, s62, v3")
        a("v_subrev_u32 v4, 6144, v3")
        a("s_lshl_b32 s63, s61, 9"); a("v_lshlrev_b32 v5, 6, v8"); a("v_add_u32 v5, s63, v5")
        a("s_mov_b32 s64, 4096")
        a("s_lshl_b32 s65, s%d, 5" % S_X); a("s_add_u32 s65, s65, s%d" % S_J)
        a("s_lshl_b32 s66, s65, 2"); a("s_add_u32 s66, s66, s%d" % S_WAVE)
        a("s_mul_i32 s67, s%d, %d" % (S_WAVE, WREG))
        a("s_lshl_b32 s68, s66, 12")
        a("v_lshlrev_b32 v10, 4, v2")
        a("v_lshlrev_b32 v11, 2, v2")
        a("v_add_u32 v12, 196, v10")
        a("s_lshl_b32 s69, s2, 3"); a("s_lshl_b32 s70, s%d, 1" % S_WAVE); a("s_add_u32 s69, s69, s70"); a("s_lshl_b32 s70, s69, 11")
        a("v_lshlrev_b32 v13, 3, v2")
        for i in range(4): a("v_accvgpr_write_b32 a%d, -1" % (SENT + i))
        a("s_waitcnt lgkmcnt(0)")
        self.ws_srd(RS, WS_SYNC, NLINES * 128)
        NCLR = NLINES // 64
        ni = a.new_label("noinit")
        a("s_lshl_b32 s58, s%d, 8" % S_WAVE); a("s_or_b32 s58, s58, s2"); a("s_cmp_ge_u32 s58, %d" % NCLR); a("s_cbranch_scc1 %s" % ni)
        a("v_lshlrev_b32 v6, 7, v2"); a("v_mov_b32 v7, 0"); a("s_lshl_b32 s58, s2, 13")
        a("buffer_store_dword v7, v6, s[%d:%d], s58 offen sc1" % (RS, RS + 3))
        a.label(ni)
        self.in_srd(RA, P_K, 4194304); self.in_srd(RB, P_V, 4194304); self.in_srd(RC, P_SK, 8192)
        KR, VR, SK = 16, 44, 60
        nt = "" if "p1nont" in self.opt else "nt"
        def ld(dst, voff, s, soff, off, fl=""):
            a("buffer_load_dwordx4 v[%d:%d], v%d, s[%d:%d], %s offen%s %s" % (dst, dst + 3, voff, s, s + 3, soff, " offset:%d" % off if off else "", fl))
        if "xp" in self.opt: self.mark(24)
        for i in range(4): ld(SK + 4 * i, 5, RC, "0", 16 * i)
        ld(KR + 0, 4, RA, "0", 0, nt); ld(KR + 4, 4, RA, "0", 2048, nt); ld(KR + 8, 4, RA, "s64", 0, nt)
        ld(KR + 12, 3, RA, "0", 0, nt); ld(KR + 16, 3, RA, "0", 2048, nt); ld(KR + 20, 3, RA, "s64", 0, nt); ld(KR + 24, 3, RA, "s64", 2048, nt)
        ld(VR + 0, 3, RB, "0", 0, nt); ld(VR + 4, 3, RB, "0", 2048, nt); ld(VR + 8, 3, RB, "s64", 0, nt); ld(VR + 12, 3, RB, "s64", 2048, nt)
        self.in_srd(RE, P_SSMD, 2048)
        a("s_lshl_b32 s58, s66, 1"); a("v_mov_b32 v6, s58")
        a("buffer_load_ushort v200, v6, s[%d:%d], 0 offen" % (RE, RE + 3))
        if "xp" in self.opt: self.mark(25)
        self.in_srd(RE, P_DBG, 256)
        ni = a.new_label("noflag")
        a("s_lshl_b32 s58, s%d, 8" % S_WAVE); a("s_or_b32 s58, s58, s2"); a("s_cmp_ge_u32 s58, %d" % NCLR); a("s_cbranch_scc1 %s" % ni)
        a("s_waitcnt vmcnt(16)")
        a("v_mov_b32 v6, 0"); a("v_mov_b32 v7, 1")
        a("s_mov_b64 exec, 1")
        a("buffer_atomic_add v7, v6, s[%d:%d], 0 offen" % (RE, RE + 3))
        a("s_mov_b64 exec, -1")
        a.label(ni)
        self.in_srd(RD, P_SSMK, 4096, 68)
        sknt = "" if "sknont" in self.opt else "nt"
        late = "sklate" in self.opt
        def sk_loads():
            for i in range(16):
                a("buffer_load_dword v%d, v11, s[%d:%d], 0 offen offset:%d %s" % (128 + i, RD, RD + 3, 256 * i, sknt))
        if not late: sk_loads()
        nclr = 0
        if "clrprep" in self.opt:
            nclr = self.xbytes // 1024
            self.xch_srd(RA)
            for i in range(nclr):
                a("buffer_store_dwordx4 a[%d:%d], v10, s[%d:%d], %s offen offset:%d sc1" % (SENT, SENT + 3, RA, RA + 3, "0" if i < 4 else "s64", 1024 * (i & 3)))
        self.ws_srd(RC, WS_XRT, 4194304)
        a("v_sub_u32 v6, 31, v9"); a("v_lshlrev_b32 v7, 1, v8"); a("v_xor_b32 v6, v6, v7"); a("v_lshlrev_b32 v6, 3, v6")
        a("v_lshl_add_u32 v6, v8, 11, v6"); a("v_add_u32 v14, %d, v6" % PSTG)
        W, K, V, O = 80, 84, 92, 96
        def unpack(dst, src, hi):
            if hi: a("v_and_b32 v%d, s%d, v%d" % (dst, S_MASK, src))
            else: a("v_lshlrev_b32 v%d, 16, v%d" % (dst, src))
        if "xp" in self.opt: self.mark(26)
        self.shadow(["roles"] + self.sh_prep)
        if "xp" in self.opt: self.mark(27)
        a("s_waitcnt vmcnt(%d)" % ((0 if late else 16) + nclr))
        self.mark(0)
        W, K, V, O = 80, 88, 102, 110
        for d in range(4):
            for tap in range(4):
                for hi in range(2): unpack(W + 2 * tap + hi, SK + 2 * (2 * d + hi) + (tap >> 1), tap & 1)
            for i in range(7):
                for hi in range(2): unpack(K + 2 * i + hi, KR + 4 * i + d, hi)
            for j in range(4):
                for hi in range(2): unpack(V + 2 * j + hi, VR + 4 * j + d, hi)
            def pk(op, dst, *src): a("%s v[%d:%d], %s" % (op, dst, dst + 1, ", ".join("v[%d:%d]" % (r, r + 1) for r in src)))
            for j in range(4): pk("v_pk_mul_f32", O + 2 * j, K + 2 * j, W + 6)
            for tap in (1, 2, 3):
                for j in range(4): pk("v_pk_fma_f32", O + 2 * j, K + 2 * (j + tap), W + 2 * (3 - tap), O + 2 * j)
            for j in range(4): pk("v_pk_mul_f32", O + 2 * j, O + 2 * j, V + 2 * j)
            for hi in range(2):
                P = 120 + 2 * hi
                a("v_cvt_pk_bf16_f32 v%d, v%d, v%d" % (P, O + 6 + hi, O + 4 + hi))
                a("v_cvt_pk_bf16_f32 v%d, v%d, v%d" % (P + 1, O + 2 + hi, O + hi))
                a("ds_write_b64 v14, v[%d:%d] offset:%d" % (P, P + 1, (2 * d + hi) * 256))
        a("v_lshrrev_b32 v16, 4, v0"); a("v_and_b32 v17, 15, v0"); a("v_lshrrev_b32 v18, 7, v0")
        a("s_lshl_b32 s62, s61, 18"); a("s_lshl_b32 s63, s60, 8"); a("s_sub_u32 s62, s62, s63"); a("s_add_u32 s62, s62, 3840")
        a("v_lshlrev_b32 v19, 12, v16"); a("v_lshl_add_u32 v19, v17, 4, v19"); a("v_add_u32 v19, s62, v19")
        a("s_waitcnt lgkmcnt(0)")
        a("s_barrier")
        for i in range(4):
            a("v_add_u32 v20, %d, v18" % (2 * i)); a("v_xor_b32 v20, v20, v17"); a("v_lshlrev_b32 v20, 4, v20")
            a("v_lshl_add_u32 v20, v16, 8, v20"); a("v_add_u32 v20, %d, v20" % PSTG)
            a("ds_read_b128 v[%d:%d], v20 offset:%d" % (24 + 4 * i, 27 + 4 * i, i * 4096))
        a("v_mov_b32 v6, 0")
        a("buffer_load_dword v15, v6, s[%d:%d], 0 offen sc1" % (RE, RE + 3))
        for i in range(4):
            a("s_mov_b32 s63, %d" % (i * 16 * 4096))
            a("s_waitcnt lgkmcnt(%d)" % (3 - i))
            a("buffer_store_dwordx4 v[%d:%d], v19, s[%d:%d], s63 offen sc1" % (24 + 4 * i, 27 + 4 * i, RC, RC + 3))
        nyoung = 0
        if late:
            sk_loads(); nyoung += 16
        if "qw1" in self.opt:
            self.q_loads(); nyoung += 8
        self.mark(1)
        self.arrive(["s_lshl_b32 s58, s61, 7", "s_add_u32 s60, s58, %d" % (C1 * 128), "v_mov_b32 v7, s60"], vm=nyoung, check_init=15, init_target=NCLR)
        self.mark(2)

    def xch_srd(self, R):
        a = self.a
        a("s_lshl_b32 s58, s2, 2"); a("s_add_u32 s58, s58, s%d" % S_WAVE); a("s_mul_i32 s58, s58, %d" % self.xstr); a("s_add_u32 s58, s58, 0x%x" % WS_XCH)
        a("s_add_u32 s%d, s%d, s58" % (R, P_WS)); a("s_addc_u32 s%d, s%d, 0" % (R + 1, P_WS + 1))
        a("s_and_b32 s%d, s%d, 0xffff" % (R + 1, R + 1)); a("s_mov_b32 s%d, %d" % (R + 2, self.xbytes)); a("s_mov_b32 s%d, 0x00020000" % (R + 3))
    def q_loads(self):
        a = self.a
        self.in_srd(RD, P_Q, 4194304)
        qf = "" if "qnont" in self.opt else "nt"
        a("v_lshlrev_b32 v13, 3, v2")
        for tok in range(2):
            for i in range(4):
                r = 160 + 8 * tok + 2 * i
                a("buffer_load_dwordx2 a[%d:%d], v13, s[%d:%d], s70 offen offset:%d %s" % (r, r + 1, RD, RD + 3, 512 * i + 2048 * tok, qf))

    def conv(self):
        a = self.a
        a("s_add_u32 s58, s68, 0x%x" % WS_XRT)
        a("s_add_u32 s%d, s%d, s58" % (RA, P_WS)); a("s_addc_u32 s%d, s%d, 0" % (RA + 1, P_WS + 1))
        a("s_and_b32 s%d, s%d, 0xffff" % (RA + 1, RA + 1)); a("s_mov_b32 s%d, 4096" % (RA + 2)); a("s_mov_b32 s%d, 0x00020000" % (RA + 3))
        self.ws_srd(RB, WS_YB, 4194304)
        a("v_and_b32 v8, 15, v2"); a("v_lshrrev_b32 v9, 4, v2")
        a("v_and_b32 v3, 3, v8"); a("v_lshrrev_b32 v4, 2, v8")
        a("v_mul_u32_u24 v12, %d, v3" % KCOPY)
        a("v_add_u32 v13, v4, v9"); a("v_lshl_add_u32 v12, v13, 4, v12"); a("v_add_u32 v12, s67, v12")
        a("v_and_b32 v13, 1, v8"); a("v_lshrrev_b32 v14, 1, v8")
        a("v_mul_u32_u24 v15, %d, v13" % XSTR); a("v_lshl_add_u32 v15, v9, 4, v15")
        a("v_lshlrev_b32 v14, 6, v14"); a("v_sub_u32 v15, v15, v14")
        a("s_add_u32 s58, s67, %d" % (XB0 + 64 * 63 - 3584)); a("v_add_u32 v14, s58, v15")
        AD = 60
        a("v_lshlrev_b32 v15, 3, v4"); a("v_lshl_add_u32 v15, v3, 1, v15"); a("v_lshl_add_u32 v15, v9, 3, v15")
        for dd in range(4):
            a("v_cmp_eq_u32 vcc, %d, v15" % (30 - 2 * dd)); a("s_nop 1"); a("v_cndmask_b32 v%d, 0, v200, vcc" % (AD + dd))
        a("v_lshrrev_b32 v4, 4, v2"); a("v_mul_u32_u24 v4, %d, v4" % KCOPY); a("v_and_b32 v5, 15, v2"); a("v_lshl_add_u32 v4, v5, 2, v4")
        a("v_add_u32 v4, s67, v4"); a("v_mov_b32 v5, 0")
        a("ds_write_b32 v4, v5")
        def sk_copies():
            a("s_add_u32 s58, s67, 60"); a("v_add_u32 v3, s58, v11")
            for phi in range(4):
                if phi: a("v_add_u32 v3, %d, v3" % (KCOPY - 4))
                for i in range(8):
                    a("ds_write2st64_b32 v3, v%d, v%d offset0:%d offset1:%d" % (128 + 2 * i, 129 + 2 * i, 2 * i, 2 * i + 1))
        sklate = "sklate" in self.opt
        if not sklate: sk_copies()
        a("s_add_u32 s58, s67, %d" % XB0); a("v_add_u32 v4, s58, v10")
        for r in range(56, 60): a("v_mov_b32 v%d, 0" % r)
        a("s_mov_b64 exec, 0xfffffff")
        a("ds_write_b128 v4, v[56:59] offset:4096"); a("ds_write_b128 v4, v[56:59] offset:%d" % (XSTR + 4096))
        a("s_mov_b64 exec, -1")
        a("v_add_u32 v5, 16, v10")
        a("s_lshr_b32 s58, s65, 4"); a("s_lshl_b32 s58, s58, 7"); a("s_add_u32 s60, s58, %d" % (C1 * 128))
        def c1_shadow():
            self.shadow(self.sh_c1)
            if sklate:
                a("s_waitcnt vmcnt(0)")
                sk_copies()
        self.wait(60, 1, 16, shadow=c1_shadow)
        self.mark(3)
        XD = 16
        for i in range(4):
            a("buffer_load_dwordx4 v[%d:%d], v10, s[%d:%d], 0 offen offset:%d" % (XD + 8 * i, XD + 8 * i + 3, RA, RA + 3, 1024 * i))
        for i in range(4):
            a("buffer_load_dword v%d, v5, s[%d:%d], 0 offen offset:%d" % (XD + 8 * i + 4, RA, RA + 3, 1024 * i))
        for i in range(4):
            d = XD + 8 * i
            a("s_waitcnt vmcnt(%d)" % (7 - i))
            a("ds_write_b128 v4, v[%d:%d] offset:%d" % (d, d + 3, XSTR + 1024 * i))
        for i in range(4):
            d = XD + 8 * i
            a("s_waitcnt vmcnt(%d)" % (3 - i))
            for j in range(4):
                a("v_alignbit_b32 v%d, v%d, v%d, 16" % (48 + j + 4 * (i & 1), d + j + 1, d + j))
            a("ds_write_b128 v4, v[%d:%d] offset:%d" % (48 + 4 * (i & 1), 51 + 4 * (i & 1), 1024 * i))
        a("s_cmp_lt_u32 s%d, 2" % S_WAVE)
        a("s_cselect_b32 s%d, s%d, s%d" % (RC, P_WG, P_WU)); a("s_cselect_b32 s%d, s%d, s%d" % (RC + 1, P_WG + 1, P_WU + 1))
        a("s_and_b32 s%d, s%d, 0xffff" % (RC + 1, RC + 1)); a("s_mov_b32 s%d, %d" % (RC + 2, 1024 * 7168)); a("s_mov_b32 s%d, 0x00020000" % (RC + 3))
        if True:
            a("s_lshl_b32 s58, s2, 2"); a("s_add_u32 s58, s58, s%d" % S_WAVE); a("s_mul_i32 s58, s58, %d" % self.xstr); a("s_add_u32 s58, s58, 0x%x" % WS_XCH)
            a("s_add_u32 s%d, s%d, s58" % (RE, P_WS)); a("s_addc_u32 s%d, s%d, 0" % (RE + 1, P_WS + 1))
            a("s_and_b32 s%d, s%d, 0xffff" % (RE + 1, RE + 1)); a("s_mov_b32 s%d, %d" % (RE + 2, self.xbytes)); a("s_mov_b32 s%d, 0x00020000" % (RE + 3))
            a("s_mov_b32 s59, 0")
        if "hhpf" in self.opt:
            self.ws_srd(RA, WS_HH, 128 * 112 * 1024)
            a("s_lshl_b32 s60, s2, 2"); a("s_add_u32 s60, s60, s%d" % S_WAVE); a("s_mul_i32 s60, s60, 14336"); a("s_add_u32 s61, s60, 6144")
            a("v_lshlrev_b32 v3, 7, v2")
            fl = "nt" if "hhnt" in self.opt else "sc1" if "hhsc1" in self.opt else ""
            a("buffer_load_dword v15, v3, s[%d:%d], s60 offen %s" % (RA, RA + 3, fl))
            a("buffer_load_dword v15, v3, s[%d:%d], s61 offen %s" % (RA, RA + 3, fl))
        a("s_waitcnt lgkmcnt(0)")
        self.mark(4)
        ACC = 192
        def A(s, i): return 64 + 64 * s + 4 * i
        def B(s, i): return 96 + 64 * s + 4 * i
        def reads(s, rho_off):
            out = []
            for i in range(8):
                out.append("ds_read_b128 v[%d:%d], v14 offset:%d" % (B(s, i), B(s, i) + 3, 3584 - 512 * i + rho_off))
                out.append("ds_read_b128 v[%d:%d], v12 offset:%d" % (A(s, i), A(s, i) + 3, 512 * i + rho_off))
            return out
        def mfmas(s):
            out = []
            for m in range(8):
                for (x, y) in [(i, m) for i in range(m + 1)] + [(m, i) for i in range(m)]:
                    if x + y <= 7:
                        t = ACC + 4 * (x + y)
                        out.append("v_mfma_f32_16x16x32_bf16 v[%d:%d], v[%d:%d], v[%d:%d], v[%d:%d]" % (
                            t, t + 3, A(s, x), A(s, x) + 3, B(s, y), B(s, y) + 3, t, t + 3))
            return out
        for r in reads(0, 0): a(r)
        a("s_waitcnt lgkmcnt(0)")
        for tau in range(8):
            t = ACC + 4 * tau
            a("v_mfma_f32_16x16x32_bf16 v[%d:%d], v[%d:%d], v[%d:%d], 0" % (t, t + 3, AD, AD + 3, B(0, tau), B(0, tau) + 3))
        a("s_mov_b32 s58, 4")
        loop = a.new_label("conv"); a.label(loop)
        if "qw1" not in self.opt:
            nq = a.new_label("noq")
            a("s_cmp_lg_u32 s58, 3"); a("s_cbranch_scc1 %s" % nq)
            self.q_loads()
            a.label(nq)
        for half in range(2):
            if "nopf1" not in self.opt:
                a("buffer_load_dword v15, v224, s[%d:%d], 0 offen" % (RC, RC + 3))
                a("v_add_u32 v224, %d, v224" % (64 * 7168))
            rd = reads(1 - half, 64 * (half + 1)); mf = mfmas(half)
            k = 0
            for i, m in enumerate(mf):
                a(m)
                if i % 2 == 0 and k < len(rd): a(rd[k]); k += 1
                if (self.x32 or half == 0) and "x3noclr" not in self.opt and "clrprep" not in self.opt:
                    if i == 33: a("buffer_store_dwordx4 a[%d:%d], v10, s[%d:%d], s59 offen sc1" % (SENT, SENT + 3, RE, RE + 3))
                    if i == 35: a("s_add_u32 s59, s59, 1024")
            a("s_waitcnt lgkmcnt(0)")
        a("v_add_u32 v12, 128, v12"); a("v_add_u32 v14, 128, v14")
        a("s_sub_u32 s58, s58, 1"); a("s_cmp_lg_u32 s58, 0"); a("s_cbranch_scc1 %s" % loop)
        self.mark(5)
        a("s_nop 7")
        for tau in range(8):
            t = ACC + 4 * tau; P = 16 + 8 * (tau & 1)
            a("v_cvt_pk_bf16_f32 v%d, v%d, v%d" % (P, t, t + 2)); a("v_cvt_pk_bf16_f32 v%d, v%d, v%d" % (P + 1, t + 1, t + 3))
            a("s_nop 1")
            a("v_mov_b32_dpp v%d, v%d quad_perm:[1,0,3,2] row_mask:0xf bank_mask:0xf" % (P + 2, P))
            a("v_mov_b32_dpp v%d, v%d quad_perm:[1,0,3,2] row_mask:0xf bank_mask:0xf" % (P + 3, P + 1))
            a("v_perm_b32 v%d, v%d, v%d, v226" % (P + 4, P + 2, P)); a("v_perm_b32 v%d, v%d, v%d, v226" % (P + 5, P + 3, P + 1))
            off = tau * (32 * 64 + 8 * 16)
            a("ds_write_b32 v227, v%d offset:%d" % (P + 4, off)); a("ds_write_b32 v227, v%d offset:%d" % (P + 5, off + 16))
        a("s_waitcnt lgkmcnt(0)")
        a("s_barrier")
        for i in range(4):
            a("ds_read_b128 v[%d:%d], v228 offset:%d" % (16 + 4 * i, 19 + 4 * i, i * (64 * 64 + 16 * 16)))
        for i in range(4):
            a("s_mov_b32 s58, %d" % (i * 64 * 16384))
            a("s_waitcnt lgkmcnt(%d)" % (3 - i))
            a("buffer_store_dwordx4 v[%d:%d], v229, s[%d:%d], s58 offen sc1" % (16 + 4 * i, 19 + 4 * i, RB, RB + 3))
        self.arrive(["s_and_b32 s58, s2, 15", "s_lshl_b32 s58, s58, 7", "s_add_u32 s60, s58, %d" % (C2 * 128),
                     "v_lshlrev_b32 v7, 11, v2", "v_add_u32 v7, s60, v7"], nlanes=16)
        self.mark(6)

    def shadow(self, parts):
        a = self.a
        T = 104
        if "roles" in parts:
            a("s_and_b32 s83, s%d, 7" % S_J); a("s_lshr_b32 s59, s%d, 3" % S_J)
            a("s_lshl_b32 s72, s%d, 2" % S_X); a("s_add_u32 s72, s72, s59")
            a("s_lshl_b32 s73, s83, 4"); a("s_lshl_b32 s59, s%d, 2" % S_WAVE); a("s_add_u32 s73, s73, s59")
            a("s_mul_i32 s74, s%d, 7168" % S_WAVE)
            a("s_mov_b32 s75, 0"); a("s_mov_b32 s76, 0"); a("s_mov_b32 s77, 0"); a("s_mov_b32 s78, 0")
            a("s_and_b32 s86, s%d, 1" % S_X)
            a("s_bfe_u32 s58, s%d, 0x10001" % S_X); a("s_lshl_b32 s58, s58, 3"); a("s_and_b32 s59, s%d, 7" % S_J); a("s_add_u32 s84, s58, s59")
            a("s_lshr_b32 s58, s%d, 2" % S_X); a("s_lshl_b32 s58, s58, 2"); a("s_lshr_b32 s59, s%d, 3" % S_J); a("s_add_u32 s85, s58, s59")
            a("s_lshl_b32 s87, s84, 3"); a("s_lshl_b32 s58, s%d, 1" % S_WAVE); a("s_add_u32 s87, s87, s58")
        if "g1" in parts:
            a("s_and_b32 s58, s%d, 1" % S_WAVE); a("s_lshl_b32 s58, s58, 5")
            a("s_mul_i32 s59, s72, 224")
            a("s_mov_b32 s62, 4682"); a("s_mov_b32 s63, 7168")
            a("s_and_b32 s101, s72, 1"); a("s_lshl_b32 s101, s101, 1")
            for i in range(7):
                a("v_add_u32 v%d, %d, v2" % (T, 64 * i))
                a("v_mul_u32_u24 v%d, s62, v%d" % (T + 1, T)); a("v_lshrrev_b32 v%d, 16, v%d" % (T + 1, T + 1))
                a("v_mul_u32_u24 v%d, 14, v%d" % (T + 2, T + 1)); a("v_sub_u32 v%d, v%d, v%d" % (T + 2, T, T + 2))
                a("v_add_u32 v%d, s101, v%d" % (T + 2, T + 2)); a("v_subrev_u32 v%d, 14, v%d" % (T + 4, T + 2)); a("v_min_u32 v%d, v%d, v%d" % (T + 2, T + 2, T + 4))
                a("v_bfe_u32 v%d, v%d, 2, 2" % (T + 3, T + 1)); a("v_lshlrev_b32 v%d, 3, v%d" % (T + 3, T + 3))
                a("v_lshrrev_b32 v%d, 4, v%d" % (T + 4, T + 1)); a("v_lshl_add_u32 v%d, v%d, 2, v%d" % (T + 3, T + 4, T + 3))
                a("v_and_b32 v%d, 3, v%d" % (T + 4, T + 1)); a("v_add3_u32 v%d, v%d, v%d, s58" % (T + 3, T + 3, T + 4))
                a("v_mul_u32_u24 v%d, s63, v%d" % (T + 3, T + 3))
                a("v_lshl_add_u32 v%d, v%d, 4, v%d" % (T + 3, T + 2, T + 3))
                a("v_add_u32 v%d, s59, v%d" % (T + 3, T + 3))
                if i & 3: a("v_subrev_u32 v%d, %d, v%d" % (T + 3, 1024 * (i & 3), T + 3))
                self.stash("g1w%d" % i, T + 3)
            a("v_lshlrev_b32 v%d, 4, v2" % T)
            a("s_lshl_b32 s58, s73, 15"); a("v_add_u32 v%d, s58, v%d" % (T + 1, T)); self.stash("g1t", T + 1)
            a("v_lshrrev_b32 v%d, 2, v2" % (T + 1)); a("v_mul_u32_u24 v%d, 224, v%d" % (T + 1, T + 1))
            a("v_and_b32 v%d, 3, v2" % (T + 2)); a("v_lshl_add_u32 v%d, v%d, 3, v%d" % (T + 1, T + 2, T + 1)); self.stash("g1f", T + 1)
            a("v_and_b32 v%d, 15, v2" % (T + 1)); a("v_lshlrev_b32 v%d, 4, v%d" % (T + 1, T + 1)); a("v_lshrrev_b32 v%d, 5, v2" % (T + 2))
            a("v_lshl_add_u32 v%d, v%d, 8, v%d" % (T + 1, T + 2, T + 1)); a("v_bfe_u32 v%d, v2, 4, 1" % (T + 2))
            a("v_lshl_add_u32 v%d, v%d, 9, v%d" % (T + 3, T + 2, T + 1)); self.stash("g1ep", T + 3)
            a("v_mul_u32_u24 v%d, %d, v%d" % (T + 2, 112 * 1024, T + 2)); a("v_add_u32 v%d, v%d, v%d" % (T + 3, T + 2, T + 1)); self.stash("g1es", T + 3)
        if "g2" in parts:
            a("s_mul_i32 s58, s86, 1792"); a("s_lshr_b32 s59, s%d, 1" % S_WAVE); a("s_mul_i32 s59, s59, %d" % (32 if "x2nat" in self.opt else 224)); a("s_add_u32 s58, s58, s59")
            a("s_lshl_b32 s58, s58, 11")
            a("s_lshl_b32 s59, s85, 8"); a("s_add_u32 s58, s58, s59")
            a("s_and_b32 s59, s%d, 1" % S_WAVE); a("s_xor_b32 s59, s59, s86"); a("s_lshl_b32 s59, s59, 7"); a("s_add_u32 s58, s58, s59")
            a("v_lshrrev_b32 v%d, 5, v2" % T); a("v_lshlrev_b32 v%d, 3, v%d" % (T, T)); a("v_bfe_u32 v%d, v2, 3, 2" % (T + 1))
            a("v_add_u32 v%d, v%d, v%d" % (T, T, T + 1)); a("v_lshlrev_b32 v%d, 11, v%d" % (T, T))
            a("v_bfe_u32 v%d, v2, 4, 2" % (T + 1)); a("v_lshlrev_b32 v%d, 1, v%d" % (T + 1, T + 1)); a("v_and_b32 v%d, 7, v2" % (T + 2))
            a("v_xor_b32 v%d, v%d, v%d" % (T + 1, T + 1, T + 2))
            a("v_lshl_add_u32 v%d, v%d, 4, v%d" % (T, T + 1, T)); a("v_add_u32 v%d, s58, v%d" % (T, T)); self.stash("g2w", T)
            a("v_lshrrev_b32 v%d, 2, v2" % T); a("v_lshlrev_b32 v%d, 7, v%d" % (T, T))
            a("v_and_b32 v%d, 3, v2" % (T + 1)); a("v_lshl_add_u32 v%d, v%d, 3, v%d" % (T, T + 1, T))
            a("v_bfe_u32 v%d, v2, 3, 2" % (T + 1))
            for c in range(4):
                a("v_xor_b32 v%d, %d, v%d" % (T + 2, c, T + 1)); a("v_lshl_add_u32 v%d, v%d, 5, v%d" % (T + 2, T + 2, T)); self.stash("g2f%d" % c, T + 2)
            a("s_lshl_b32 s88, s%d, 12" % S_WAVE)
            a("v_lshlrev_b32 v%d, 4, v2" % T)
            a("s_mul_i32 s58, s87, %d" % (112 * 1024)); a("s_mul_i32 s59, s86, %d" % (56 * 1024)); a("s_add_u32 s58, s58, s59")
            a("v_add_u32 v%d, s58, v%d" % (T + 1, T)); self.stash("g2t0", T + 1)
            a("v_add_u32 v%d, %d, v%d" % (T + 1, 112 * 1024, T + 1)); self.stash("g2t1", T + 1)
            a("v_and_b32 v%d, 15, v2" % T); a("v_lshlrev_b32 v%d, 11, v%d" % (T, T))
            a("v_lshrrev_b32 v%d, 4, v2" % (T + 1)); a("v_lshl_add_u32 v%d, v%d, 3, v%d" % (T, T + 1, T))
            a("s_lshl_b32 s58, s87, 15"); a("s_lshl_b32 s59, s85, 8"); a("s_add_u32 s58, s58, s59"); a("s_lshl_b32 s59, s86, 7"); a("s_add_u32 s58, s58, s59")
            a("v_add_u32 v%d, s58, v%d" % (T, T)); self.stash("g2o", T)
            a("v_and_b32 v%d, 15, v2" % T); a("v_lshlrev_b32 v%d, 11, v%d" % (T, T))
            a("v_bfe_u32 v%d, v2, 4, 1" % (T + 1)); a("v_lshl_add_u32 v%d, v%d, 5, v%d" % (T, T + 1, T))
            a("v_lshrrev_b32 v%d, 5, v2" % (T + 1)); a("v_lshl_add_u32 v%d, v%d, 4, v%d" % (T, T + 1, T))
            a("v_add_u32 v%d, s58, v%d" % (T, T)); self.stash("g2o4", T)
            a("v_lshrrev_b32 v%d, 2, v2" % T); a("v_lshrrev_b32 v%d, 1, v%d" % (T + 1, T)); a("v_and_b32 v%d, 1, v%d" % (T, T))
            a("v_lshl_add_u32 v%d, v%d, 2, v%d" % (T, T, T + 1))
            if "rot2" in self.opt:
                a("s_lshr_b32 s58, s%d, 3" % S_J); a("s_add_u32 s58, s58, s%d" % S_J); a("v_add_u32 v%d, s58, v2" % (T + 1)); a("v_and_b32 v%d, 3, v%d" % (T + 1, T + 1))
            elif "rot2b" in self.opt:
                a("v_add_u32 v%d, s%d, v2" % (T + 1, S_J)); a("v_and_b32 v%d, 3, v%d" % (T + 1, T + 1))
            elif "rot2c" in self.opt:
                a("s_lshr_b32 s58, s%d, 3" % S_J); a("v_add_u32 v%d, s58, v2" % (T + 1)); a("v_and_b32 v%d, 3, v%d" % (T + 1, T + 1))
            else:
                a("v_and_b32 v%d, 3, v2" % (T + 1))
            a("v_mad_u32_u24 v%d, v%d, 14, v%d" % (T, T + 1, T))
            if "x2nat" in self.opt: a("v_lshlrev_b32 v%d, 1, v2" % T)
            a("v_lshlrev_b32 v%d, 16, v%d" % (T, T)); self.stash("g2tab", T)
            for t in range(4): a("v_readlane_b32 s%d, v%d, %d" % (G2_ROW[t], T, t))
            a("s_lshl_b32 s58, s83, 1"); a("s_lshr_b32 s59, s72, 4"); a("s_add_u32 s58, s58, s59"); a("s_lshl_b32 s58, s58, 2"); a("s_add_u32 s58, s58, s%d" % S_WAVE)
            a("s_lshl_b32 s58, s58, 8"); a("s_add_u32 s58, s58, %d" % (C4 * 128))
            a("v_lshlrev_b32 v%d, 7, v2" % T); a("v_add_u32 v%d, s58, v%d" % (T, T)); a("v_mov_b32 v%d, 0x7fffff00" % (T + 1))
            a("v_cmp_gt_u32 vcc, 2, v2"); a("s_nop 1"); a("v_cndmask_b32 v%d, v%d, v%d, vcc" % (T, T + 1, T)); self.stash("c4a", T)
            a("s_lshr_b32 s58, s84, 1"); a("s_lshl_b32 s58, s58, 1"); a("s_add_u32 s58, s58, s86"); a("s_lshl_b32 s58, s58, 2")
            a("s_and_b32 s59, s84, 1"); a("s_lshl_b32 s59, s59, 1"); a("s_add_u32 s58, s58, s59"); a("s_lshr_b32 s59, s%d, 1" % S_WAVE); a("s_add_u32 s58, s58, s59")
            a("s_lshl_b32 s58, s58, 1"); a("s_lshr_b32 s59, s%d, 2" % S_X); a("s_add_u32 s58, s58, s59"); a("s_lshl_b32 s58, s58, 7"); a("s_add_u32 s58, s58, %d" % (C4 * 128))
            a("v_mov_b32 v%d, s58" % T); self.stash("c4p", T)
        if "pf" in parts:
            a("v_mov_b32 v%d, 0x7fffffff" % (T + 3))
            a("s_lshl_b32 s58, s%d, 1" % S_J); a("s_and_b32 s59, s%d, 1" % S_WAVE); a("s_add_u32 s58, s58, s59")
            a("s_mul_i32 s62, s58, 7168"); a("s_mul_i32 s59, s%d, 896" % S_X); a("s_add_u32 s62, s62, s59")
            a("v_lshlrev_b32 v%d, 7, v2" % T); a("v_add_u32 v%d, s62, v%d" % (T + 1, T))
            a("v_cmp_gt_u32 vcc, 7, v2"); a("s_nop 1"); a("v_cndmask_b32 v224, v%d, v%d, vcc" % (T + 3, T + 1))
            if self.pffast:
                a("s_and_b32 s58, s%d, 7" % S_J); a("s_lshr_b32 s62, s%d, 4" % S_J); a("s_lshl_b32 s62, s62, 3"); a("s_add_u32 s100, s58, s62")
                a("s_lshl_b32 s58, s100, 1"); a("s_and_b32 s62, s%d, 1" % S_WAVE); a("s_add_u32 s58, s58, s62")
            a("s_lshl_b32 s58, s58, 2"); a("s_add_u32 s58, s58, 512"); a("s_mul_i32 s58, s58, 7168"); a("s_add_u32 s58, s58, s59")
            a("s_mov_b32 s62, 9363")
            a("v_mul_u32_u24 v%d, s62, v2" % T); a("v_lshrrev_b32 v%d, 16, v%d" % (T, T))
            a("v_mul_u32_u24 v%d, 7, v%d" % (T + 1, T)); a("v_sub_u32 v%d, v2, v%d" % (T + 1, T + 1))
            a("v_mul_u32_u24 v%d, 7168, v%d" % (T, T)); a("v_lshl_add_u32 v%d, v%d, 7, v%d" % (T, T + 1, T)); a("v_add_u32 v%d, s58, v%d" % (T, T))
            a("v_cmp_gt_u32 vcc, 28, v2"); a("s_nop 1"); a("v_cndmask_b32 v%d, v%d, v%d, vcc" % (T, T + 3, T)); self.stash("pfw", T)
            a("s_lshl_b32 s58, s%d, 2" % (100 if self.pffast else S_J)); a("s_add_u32 s58, s58, s%d" % S_WAVE); a("s_mul_i32 s58, s58, 5"); a("s_add_u32 s58, s58, 1152")
            a("s_mul_i32 s59, s86, 1792"); a("s_add_u32 s58, s58, s59"); a("s_lshl_b32 s58, s58, 11")
            a("s_lshr_b32 s59, s85, 2"); a("s_lshl_b32 s59, s59, 10"); a("s_add_u32 s58, s58, s59")
            a("v_lshrrev_b32 v%d, 3, v2" % T); a("v_lshlrev_b32 v%d, 11, v%d" % (T, T)); a("v_and_b32 v%d, 7, v2" % (T + 1))
            a("v_lshl_add_u32 v%d, v%d, 7, v%d" % (T, T + 1, T)); a("v_add_u32 v%d, s58, v%d" % (T, T))
            a("v_cmp_gt_u32 vcc, 40, v2"); a("s_nop 1"); a("v_cndmask_b32 v%d, v%d, v%d, vcc" % (T, T + 3, T)); self.stash("pfd", T)
            if self.pffast:
                a("s_and_b32 s92, s%d, 1" % S_J)
                a("s_lshr_b32 s58, s%d, 3" % S_J); a("s_add_u32 s58, s58, 1"); a("s_and_b32 s58, s58, 2"); a("s_or_b32 s92, s92, s58")
            else:
                a("s_and_b32 s92, s%d, 3" % S_J)
        if "ln" in parts:
            a("v_and_b32 v%d, 1, v2" % T); a("v_lshrrev_b32 v%d, 1, v2" % (T + 1))
            a("v_lshlrev_b32 v%d, 11, v%d" % (T + 2, T)); a("v_lshl_add_u32 v%d, v%d, 4, v%d" % (T + 2, T + 1, T + 2)); self.stash("lnh", T + 2)
            a("s_lshl_b32 s58, s%d, 4" % S_WAVE); a("s_add_u32 s58, s58, %d" % PSTG)
            a("v_lshlrev_b32 v%d, 6, v2" % (T + 2)); a("v_add_u32 v%d, s58, v%d" % (T + 2, T + 2)); self.stash("lny", T + 2)
            a("s_lshl_b32 s58, s%d, 5" % S_WAVE); a("s_add_u32 s58, s58, %d" % CSTG)
            a("v_lshlrev_b32 v%d, 7, v%d" % (T + 2, T + 1)); a("v_lshl_add_u32 v%d, v%d, 4, v%d" % (T + 2, T, T + 2)); a("v_add_u32 v%d, s58, v%d" % (T + 2, T + 2))
            self.stash("lnw", T + 2)
            a("v_lshlrev_b32 v%d, 4, v0" % (T + 2)); a("v_add_u32 v%d, %d, v%d" % (T + 2, CSTG, T + 2)); self.stash("lnr", T + 2)
            a("v_lshrrev_b32 v%d, 5, v0" % (T + 2)); a("v_lshlrev_b32 v%d, 10, v%d" % (T + 2, T + 2))
            a("v_bfe_u32 v%d, v0, 3, 2" % (T + 3)); a("v_lshl_add_u32 v%d, v%d, 8, v%d" % (T + 2, T + 3, T + 2))
            a("v_and_b32 v%d, 7, v0" % (T + 3)); a("v_lshl_add_u32 v%d, v%d, 4, v%d" % (T + 2, T + 3, T + 2)); self.stash("lng", T + 2)
        if "cv" in parts:
            a("v_and_b32 v%d, 1, v2" % T)
            a("v_mov_b32 v226, 0x05040100"); a("v_mov_b32 v%d, 0x03020706" % (T + 1))
            a("v_cmp_eq_u32 vcc, 1, v%d" % T); a("s_nop 1"); a("v_cndmask_b32 v226, v226, v%d, vcc" % (T + 1))
            a("v_bfe_u32 v%d, v2, 1, 3" % (T + 1)); a("v_lshrrev_b32 v%d, 4, v2" % (T + 2))
            a("v_mul_u32_u24 v227, 272, v%d" % (T + 1)); a("v_lshl_add_u32 v227, v%d, 6, v227" % (T + 2)); a("v_lshl_add_u32 v227, v%d, 5, v227" % T)
            a("s_lshl_b32 s58, s%d, 2" % S_WAVE); a("s_add_u32 s58, s58, %d" % CSTG); a("v_add_u32 v227, s58, v227")
            a("v_lshrrev_b32 v%d, 2, v0" % T); a("v_and_b32 v%d, 3, v0" % (T + 1)); a("v_lshrrev_b32 v%d, 4, v0" % (T + 2))
            a("v_lshlrev_b32 v228, 6, v%d" % T); a("v_lshl_add_u32 v228, v%d, 4, v228" % (T + 2)); a("v_lshl_add_u32 v228, v%d, 4, v228" % (T + 1))
            a("v_add_u32 v228, %d, v228" % CSTG)
            a("v_lshlrev_b32 v229, 14, v%d" % T); a("v_lshl_add_u32 v229, v%d, 4, v229" % (T + 1)); a("s_lshl_b32 s58, s65, 6"); a("v_add_u32 v229, s58, v229")

    def g1_setup(self):
        a = self.a
        a("s_cmp_lt_u32 s%d, 2" % S_WAVE)
        a("s_cselect_b32 s%d, s%d, s%d" % (RA, P_WG, P_WU)); a("s_cselect_b32 s%d, s%d, s%d" % (RA + 1, P_WG + 1, P_WU + 1))
        a("s_and_b32 s%d, s%d, 0xffff" % (RA + 1, RA + 1)); a("s_mov_b32 s%d, %d" % (RA + 2, 1024 * 7168)); a("s_mov_b32 s%d, 0x00020000" % (RA + 3))
        for i in range(7): self.unstash("g1w%d" % i, 8 + i)
        self.in_srd(RE, P_WD, 3584 * 2048)
    def g1_wload_list(self):
        L = []
        for st in range(3):
            L.append("s_add_u32 m0, s75, s74")
            for i in range(7):
                if i == 4: L.append("s_add_u32 m0, m0, 4096")
                L.append(self.g1_dma(i))
            L.append("s_add_u32 s77, s77, %d" % (64 * 7168)); L.append("s_add_u32 s75, s75, %d" % G1_STAGE)
        return L
    def merged(self, body, fillers, start=0):
        keep = self.a; tmp = Asm(); tmp.uid = keep.uid + 1000; self.a = tmp
        body()
        self.a = keep; keep.uid = tmp.uid
        lines = tmp.lines
        n = max(1, (len(lines) - start) // (len(fillers) + 1))
        k = 0
        for i, l in enumerate(lines):
            keep.lines.append(l)
            if i >= start and (i - start) % n == n - 1 and k < len(fillers): keep(fillers[k]); k += 1
        for x in fillers[k:]: keep("s_nop 0"); keep(x)
    def g1_dma(self, i):
        fl = "nt" if "g1nt" in self.opt else "sc1" if "g1sc1" in self.opt else ""
        return "buffer_load_dwordx4 v%d, s[%d:%d], s77 offen offset:%d %s lds" % (8 + i, RA, RA + 3, 1024 * (i & 3), fl)
    def g1_wload_all(self):
        a = self.a
        a("s_add_u32 m0, s75, s74"); a("s_nop 0")
        for i in range(7):
            if i == 4: a("s_add_u32 m0, m0, 4096"); a("s_nop 0")
            a(self.g1_dma(i))
        a("s_add_u32 s77, s77, %d" % (64 * 7168)); a("s_add_u32 s75, s75, %d" % G1_STAGE)

    def reduce4(self, regs, sdst):
        a = self.a
        def step(mod):
            for r in regs: a("v_add_f32_dpp v%d, v%d, v%d %s" % (r, r, r, mod))
        a("s_nop 1")
        step("quad_perm:[1,0,3,2] row_mask:0xf bank_mask:0xf"); step("quad_perm:[2,3,0,1] row_mask:0xf bank_mask:0xf")
        step("row_half_mirror row_mask:0xf bank_mask:0xf"); step("row_mirror row_mask:0xf bank_mask:0xf")
        step("row_bcast:15 row_mask:0xa bank_mask:0xf"); step("row_bcast:31 row_mask:0xc bank_mask:0xf")
        a("s_nop 0")
        for r, s in zip(regs, sdst): a("v_readlane_b32 s%d, v%d, 63" % (s, r))
    def ln_scalars(self, sS, T):
        a = self.a
        t0, t1, t2, t3, t4, t5 = T + 8, T + 9, T + 10, T + 11, T + 12, T + 13
        M = S_MASK
        a("s_nop 1")
        a("v_mul_f32 v%d, s%d, v%d" % (t0, sS[0], T + 14)); a("v_mul_f32 v%d, s%d, v%d" % (t1, sS[2], T + 14))
        a("v_mul_f32 v%d, s%d, v%d" % (t2, sS[1], T + 14)); a("v_mul_f32 v%d, s%d, v%d" % (t3, sS[3], T + 14))
        a("v_fma_f32 v%d, -v%d, v%d, v%d" % (t2, t0, t0, t2)); a("v_fma_f32 v%d, -v%d, v%d, v%d" % (t3, t1, t1, t3))
        a("v_max_f32 v%d, 0, v%d" % (t2, t2)); a("v_max_f32 v%d, 0, v%d" % (t3, t3))
        a("v_cvt_pk_bf16_f32 v%d, v%d, v%d" % (t4, t0, t1)); a("v_cvt_pk_bf16_f32 v%d, v%d, v%d" % (t5, t2, t3))
        a("v_lshlrev_b32 v%d, 16, v%d" % (t0, t4)); a("v_and_b32 v%d, s%d, v%d" % (t1, M, t4))
        a("v_lshlrev_b32 v%d, 16, v%d" % (t2, t5)); a("v_and_b32 v%d, s%d, v%d" % (t3, M, t5))
        a("v_add_f32 v%d, s%d, v%d" % (t2, S_EPS, t2)); a("v_add_f32 v%d, s%d, v%d" % (t3, S_EPS, t3))
        a("v_cvt_pk_bf16_f32 v%d, v%d, v%d" % (t5, t2, t3))
        a("v_lshlrev_b32 v%d, 16, v%d" % (t2, t5)); a("v_and_b32 v%d, s%d, v%d" % (t3, M, t5))
        a("v_sqrt_f32 v%d, v%d" % (t2, t2)); a("v_sqrt_f32 v%d, v%d" % (t3, t3)); a("s_nop 0")
        a("v_cvt_pk_bf16_f32 v%d, v%d, v%d" % (t5, t2, t3))
        a("v_lshlrev_b32 v%d, 16, v%d" % (t2, t5)); a("v_and_b32 v%d, s%d, v%d" % (t3, M, t5))
        a("v_rcp_f32 v%d, v%d" % (T + 0, t2)); a("v_rcp_f32 v%d, v%d" % (T + 4, t3)); a("s_nop 0")
        a("v_mul_f32 v%d, v%d, v%d" % (T + 2, t0, T + 0)); a("v_mul_f32 v%d, v%d, v%d" % (T + 6, t1, T + 4))
        a("v_sub_f32 v%d, 0, v%d" % (T + 2, T + 2)); a("v_sub_f32 v%d, 0, v%d" % (T + 6, T + 6))
    def stats(self, X, acc):
        a = self.a
        for tok in range(2):
            b = X + 16 * tok; S = acc + 4 * tok; Q = S + 2
            a("v_pk_add_f32 v[%d:%d], v[%d:%d], v[%d:%d]" % (S, S + 1, b, b + 1, b + 2, b + 3))
            a("v_pk_mul_f32 v[%d:%d], v[%d:%d], v[%d:%d]" % (Q, Q + 1, b, b + 1, b, b + 1))
        for p in range(1, 8):
            for tok in range(2):
                b = X + 16 * tok + 2 * p; S = acc + 4 * tok; Q = S + 2
                if p >= 2: a("v_pk_add_f32 v[%d:%d], v[%d:%d], v[%d:%d]" % (S, S + 1, S, S + 1, b, b + 1))
                a("v_pk_fma_f32 v[%d:%d], v[%d:%d], v[%d:%d], v[%d:%d]" % (Q, Q + 1, b, b + 1, b, b + 1, Q, Q + 1))
        for r in (0, 2, 4, 6): a("v_add_f32 v%d, v%d, v%d" % (acc + r, acc + r, acc + r + 1))
    def ln(self):
        a = self.a
        M = S_MASK
        X, L1, Y, YR, HP, ACC, T = 32, 64, 96, 128, 144, 160, 168
        LP, U = 128, 96
        def ln1():
            a = self.a
            a("v_mov_b32 v%d, 0x3a800000" % (T + 14))
            for tok in range(2):
                for p in range(8):
                    dst = X + 16 * tok + 2 * p
                    a("v_accvgpr_read_b32 v3, a%d" % (160 + 8 * tok + p))
                    a("v_lshlrev_b32 v%d, 16, v3" % dst); a("v_and_b32 v%d, s%d, v3" % (dst + 1, M))
            self.stats(X, ACC)
            self.reduce4([ACC, ACC + 2, ACC + 4, ACC + 6], [60, 61, 62, 63])
            self.ln_scalars([60, 61, 62, 63], T)
            for tok in range(2):
                r, c = T + 4 * tok, T + 4 * tok + 2
                for p in range(8):
                    x = X + 16 * tok + 2 * p; l = L1 + 16 * tok + 2 * p
                    a("v_pk_fma_f32 v[%d:%d], v[%d:%d], v[%d:%d], v[%d:%d] op_sel_hi:[1,0,0]" % (l, l + 1, x, x + 1, r, r + 1, c, c + 1))
        self.merged(ln1, self.g1_wload_list())
        self.ws_srd(RB, WS_YB, 4194304); self.ws_srd(RC, WS_H, 4194304); self.ws_srd(RD, WS_LN2, 4194304)
        a("v_lshlrev_b32 v24, 4, v2")
        self.unstash("lnh", 4); self.unstash("lny", 5); self.unstash("lnw", 16); self.unstash("lnr", 17); self.unstash("lng", 18)
        a("s_lshl_b32 s61, s%d, 12" % S_WAVE); a("s_lshl_b32 s62, s2, 14"); a("s_add_u32 s62, s62, s61")
        a("s_add_u32 s61, s61, %d" % PSTG)
        a("s_and_b32 s60, s2, 15"); a("s_lshl_b32 s60, s60, 11"); a("s_add_u32 s60, s60, %d" % (C2 * 128))
        self.mark(7)
        self.wait(60, 16, 16)
        self.mark(8)
        a("s_mov_b32 m0, s61"); a("s_nop 0")
        for i in range(4):
            a("buffer_load_dwordx4 v24, s[%d:%d], s62 offen offset:%d lds" % (RB, RB + 3, 1024 * i))
        a("s_waitcnt vmcnt(0)")
        a("s_barrier")
        for i in range(4):
            a("ds_read_b128 v[%d:%d], v5 offset:%d" % (YR + 4 * i, YR + 4 * i + 3, 4096 * i))
        for i in range(4):
            a("s_waitcnt lgkmcnt(%d)" % (3 - i))
            for c in range(4):
                a("v_lshlrev_b32 v%d, 16, v%d" % (Y + 4 * i + c, YR + 4 * i + c)); a("v_and_b32 v%d, s%d, v%d" % (Y + 16 + 4 * i + c, M, YR + 4 * i + c))
        for tok in range(2):
            for p in range(8):
                x = X + 16 * tok + 2 * p; y = Y + 16 * tok + 2 * p; l = L1 + 16 * tok + 2 * p
                a("v_pk_fma_f32 v[%d:%d], v[%d:%d], v[%d:%d], v[%d:%d]" % (l, l + 1, l, l + 1, y, y + 1, x, x + 1))
                a("v_cvt_pk_bf16_f32 v%d, v%d, v%d" % (HP + 8 * tok + p, l, l + 1))
        HU = 184
        a("s_mov_b32 vcc_lo, 0x55555555"); a("s_mov_b32 vcc_hi, 0x55555555"); a("s_nop 1")
        for i in range(4):
            for d in range(2):
                a("v_cndmask_b32_dpp v%d, v%d, v%d, vcc quad_perm:[1,0,3,2] row_mask:0xf bank_mask:0xf" % (HU + 4 * i + d, HP + 8 + 2 * i + d, HP + 2 * i + d))
        a("s_mov_b32 vcc_lo, 0xaaaaaaaa"); a("s_mov_b32 vcc_hi, 0xaaaaaaaa"); a("s_nop 1")
        for i in range(4):
            for d in range(2):
                a("v_cndmask_b32_dpp v%d, v%d, v%d, vcc quad_perm:[1,0,3,2] row_mask:0xf bank_mask:0xf" % (HU + 4 * i + 2 + d, HP + 2 * i + d, HP + 8 + 2 * i + d))
        for i in range(4):
            if "x3noh" in self.opt: continue
            a("buffer_store_dwordx4 v[%d:%d], v4, s[%d:%d], s70 offen offset:%d sc1" % (HU + 4 * i, HU + 4 * i + 3, RC, RC + 3, 512 * i))
        for tok in range(2):
            for p in range(8):
                src = HP + 8 * tok + p; dst = X + 16 * tok + 2 * p
                a("v_lshlrev_b32 v%d, 16, v%d" % (dst, src)); a("v_and_b32 v%d, s%d, v%d" % (dst + 1, M, src))
        self.stats(X, ACC)
        self.reduce4([ACC, ACC + 2, ACC + 4, ACC + 6], [60, 61, 62, 63])
        self.ln_scalars([60, 61, 62, 63], T)
        for tok in range(2):
            r, c = T + 4 * tok, T + 4 * tok + 2
            for p in range(8):
                x = X + 16 * tok + 2 * p
                a("v_pk_fma_f32 v[%d:%d], v[%d:%d], v[%d:%d], v[%d:%d] op_sel_hi:[1,0,0]" % (ACC, ACC + 1, x, x + 1, r, r + 1, c, c + 1))
                a("v_cvt_pk_bf16_f32 v%d, v%d, v%d" % (LP + 8 * tok + p, ACC, ACC + 1))
        a("s_mov_b32 vcc_lo, 0x55555555"); a("s_mov_b32 vcc_hi, 0x55555555"); a("s_nop 1")
        for i in range(4):
            for d in range(2):
                a("v_cndmask_b32_dpp v%d, v%d, v%d, vcc quad_perm:[1,0,3,2] row_mask:0xf bank_mask:0xf" % (U + 4 * i + d, LP + 8 + 2 * i + d, LP + 2 * i + d))
        a("s_mov_b32 vcc_lo, 0xaaaaaaaa"); a("s_mov_b32 vcc_hi, 0xaaaaaaaa"); a("s_nop 1")
        for i in range(4):
            for d in range(2):
                a("v_cndmask_b32_dpp v%d, v%d, v%d, vcc quad_perm:[1,0,3,2] row_mask:0xf bank_mask:0xf" % (U + 4 * i + 2 + d, LP + 2 * i + d, LP + 8 + 2 * i + d))
        for i in range(4):
            a("ds_write_b128 v16, v[%d:%d] offset:%d" % (U + 4 * i, U + 4 * i + 3, 4096 * i))
        a("s_lshr_b32 s58, s2, 1"); a("s_lshl_b32 s58, s58, 15"); a("s_and_b32 s59, s2, 1"); a("s_lshl_b32 s59, s59, 7"); a("s_add_u32 s58, s58, s59")
        a("s_waitcnt lgkmcnt(0)")
        a("s_barrier")
        for i in range(4):
            a("ds_read_b128 v[%d:%d], v17 offset:%d" % (LP + 4 * i, LP + 4 * i + 3, 4096 * i))
        for i in range(4):
            a("s_add_u32 s59, s58, %d" % (8192 * i))
            a("s_waitcnt lgkmcnt(%d)" % (3 - i))
            a("buffer_store_dwordx4 v[%d:%d], v18, s[%d:%d], s59 offen sc1" % (LP + 4 * i, LP + 4 * i + 3, RD, RD + 3))
        self.mark(9)
        self.unstash("g1t", 20); self.unstash("g1f", 15)
        self.unstash("pfd", 30); self.unstash("pfw", 31)
        for tt in range(1, 4): a("v_add_u32 v%d, %d, v20" % (20 + tt, 32768 * tt))
        self.arrive(["s_lshr_b32 s58, s2, 5", "s_lshl_b32 s58, s58, 4", "s_and_b32 s59, s2, 1", "s_add_u32 s58, s58, s59", "s_lshl_b32 s58, s58, 7",
                     "s_add_u32 s60, s58, %d" % (C3 * 128), "v_lshlrev_b32 v7, 8, v2", "v_add_u32 v7, s60, v7"], nlanes=8)
        self.mark(10)

    def g2_dma(self, i, soff):
        fl = "nt" if "g2nt" in self.opt else "sc1" if "g2sc1" in self.opt else ""
        return "buffer_load_dwordx4 v%d, s[%d:%d], s%d offen offset:%d %s lds" % (8 + i, RE, RE + 3, soff, 1024 * i, fl)
    def g2_voffs(self):
        return ["v_add_u32 v%d, %d, v25" % (8 + i, 2048 * (16 * (i & 1) + 4 * (i >> 1)) - 1024 * i) for i in range(4)]

    def gemm1(self):
        a = self.a
        ACC, TOK, WF, PD = 32, 0, 128, 5
        def acc(ct, tt): return ACC + (ct * 4 + tt) * 4
        def wreg(F): return WF + 4 * (F % 7)
        def lreg(F):
            return 4 * F if F < 16 else 160 + 4 * (F - 16) if F < 20 else 204 + 4 * (F - 20)
        def foff(F, jh):
            kk, ct = F // 14, F % 14
            return (ct // 7) * 14336 + kk * 7168 + jh * 3584 + (ct % 7) * 32
        def tokload(slot, j):
            kk, tt = j >> 2, j & 3
            r = TOK + 32 * slot + 16 * kk + 4 * tt
            fl = "nt" if "g1tnt" in self.opt else "" if "g1tpl" in self.opt else "sc1"
            return "buffer_load_dwordx4 a[%d:%d], v%d, s[%d:%d], s78 offen offset:%d %s" % (r, r + 3, 20 + tt, RD, RD + 3, 1024 * kk, fl)
        def mfma(c, w, t): return "v_mfma_f32_16x16x32_bf16 v[%d:%d], a[%d:%d], a[%d:%d], v[%d:%d]" % (c, c + 3, w, w + 3, t, t + 3, c, c + 3)
        def dsr(q, tag, reg, addr, off):
            return lambda: (q.issue(tag), "ds_read_b64_tr_b16 a[%d:%d], v%d offset:%d" % (reg, reg + 1, addr, off))[1]
        def emit(x):
            if callable(x): x = x()
            if x: a(x)
        pf = "nopf2" not in self.opt
        npf = 2 if pf else 0
        def pfops():
            return ["buffer_load_dword v7, v30, s[%d:%d], 0 offen" % (RE, RE + 3), "buffer_load_dword v7, v31, s[%d:%d], 0 offen" % (RC, RC + 3)]
        def pfturn(u):
            return ["s_cmp_eq_u32 s92, %d" % (((u + 1) & 1) if self.pffast else u), "s_cselect_b32 s%d, %d, 0" % (RE + 2, 3584 * 2048), "s_cselect_b32 s%d, %d, 0" % (RC + 2, 1024 * 7168)]
        if pf:
            for i in range(4): a("s_mov_b32 s%d, s%d" % (RC + i, RA + i))
            a("s_mov_b32 s%d, 0" % (RC + 2)); a("s_mov_b32 s%d, 0" % (RE + 2))
        self.ws_srd(RB, WS_HH, 128 * 112 * 1024)
        a("s_lshl_b32 s58, s83, 4"); a("s_lshl_b32 s59, s%d, 1" % S_X); a("s_add_u32 s58, s58, s59"); a("s_lshl_b32 s58, s58, 7")
        a("s_add_u32 s60, s58, %d" % (C3 * 128))
        def zero_acc():
            self.shadow(self.sh_c3)
            self.unstash("g2w", 25)
            for c in range(4): self.unstash("g2f%d" % c, 26 + c)
            for r in range(32, 256, 2): a("v_pk_mov_b32 v[%d:%d], 0, 0" % (r, r + 1))
        self.wait(60, 2, 16, shadow=zero_acc)
        self.mark(11)
        for st in range(3):
            for j in range(8): a(tokload(st, j))
            a("s_add_u32 s78, s78, 2048")
        if pf:
            for op in pfops(): a(op)
        a("v_mov_b32 v16, v15")
        q0 = DSQ()
        for F in range(PD):
            for jh in range(2): emit(dsr(q0, ("c", F, jh), wreg(F) + 2 * jh, 16, foff(F, jh)))
        fine = "nofine" not in self.opt
        a("s_waitcnt vmcnt(%d) lgkmcnt(8)" % ((20 if fine else 16) + npf))
        self.mark(12)

        def stage(u, loads, bwait, q, side=False, first_wait=None, mode="n", adv_end=None, nextf=None):
            pfop = side and pf
            G = [[] for _ in range(112)]
            for F in range(28):
                Fn = F + PD
                if Fn < 28:
                    for jh in range(2): G[4 * F + jh].append(dsr(q, ("c", Fn, jh), wreg(Fn) + 2 * jh, 16, foff(Fn, jh)))
                elif mode == "n":
                    for jh in range(2): G[4 * F + jh].append(dsr(q, ("n", Fn - 28, jh), wreg(Fn) + 2 * jh, 16, (foff(nextf[Fn - 28][0], jh) + nextf[Fn - 28][1]) if nextf else foff(Fn - 28, jh)))
                if mode == "m":
                    for jh in range(2): G[4 * F + 2 + jh].append(dsr(q, ("l", F, jh), lreg(F) + 2 * jh, 17, foff(F, jh)))
                if F < 27: G[4 * F + 3].append(lambda F=F: q.wait(("c", F + 1, 1)))
                elif mode == "n": G[4 * F + 3].append(lambda: q.wait(("n", 0, 1)))
            if loads:
                G[1].append("s_add_u32 m0, s75, s74")
                G[16].append("s_add_u32 m0, m0, 4096")
                vm = [self.g1_dma(i) for i in range(7)] + [tokload((u + 3) % 4, j) for j in range(8)]
                if pfop: vm += pfops()
                for i, x in enumerate(vm): G[4 * i + 2].append(x)
                G[4 * 8].append("s_add_u32 s77, s77, %d" % (64 * 7168))
                G[4 * 9].append("s_add_u32 s75, s75, %d" % G1_STAGE); G[4 * 10].append("s_cmp_eq_u32 s75, %d" % (G1_STAGE * G1_NSLOT))
                G[4 * 11].append("s_cselect_b32 s75, 0, s75")
                G[4 * 16].append("s_add_u32 s78, s78, 2048")
                if pfop:
                    for i, x in enumerate(pfturn(u)): G[4 * (12 + i)].append(x)
                    if self.pffast:
                        if u == 1: G[4 * 17].append("v_add_u32 v30, %d, v30" % (320 * 2048)); G[4 * 18].append("v_add_u32 v31, %d, v31" % (128 * 7168))
                        if u == 3: G[4 * 17].append("v_add_u32 v30, %d, v30" % (-960 * 2048)); G[4 * 18].append("v_add_u32 v31, %d, v31" % (128 * 7168))
                    elif u == 3:
                        G[4 * 17].append("v_add_u32 v30, %d, v30" % (-640 * 2048)); G[4 * 18].append("v_add_u32 v31, %d, v31" % (256 * 7168))
            if mode == "n":
                G[4 * 19].append("s_add_u32 s76, s76, %d" % G1_STAGE); G[4 * 20].append("s_cmp_eq_u32 s76, %d" % (G1_STAGE * G1_NSLOT))
                G[4 * 21].append("s_cselect_b32 s76, 0, s76")
                if first_wait is not None and fine:
                    l = a.new_label("fk")
                    G[45].append("s_cmp_lg_u32 s80, 3")
                    G[47] += ["s_cbranch_scc1 %s" % l, "s_waitcnt vmcnt(%d)" % (16 + npf + 12), l + ":"]
                if first_wait is not None:
                    l = a.new_label("fw")
                    G[4 * 21 + 2].append("s_cmp_lg_u32 s80, 3")
                    G[4 * 22] += ["s_cbranch_scc1 %s" % l, "s_waitcnt vmcnt(%d)" % first_wait, l + ":"]
                G[4 * 22 + 2] += ["v_add_u32 v16, s76, v15", "s_waitcnt vmcnt(%d)" % bwait]
                G[4 * 22 + 3].insert(0, "s_barrier")
            if adv_end:
                for g, x in adv_end: G[g].append(x)
            k = 0
            for F in range(28):
                kk, ct = F // 14, F % 14
                for tt in range(4):
                    a(mfma(acc(ct, tt), wreg(F), TOK + 32 * u + 16 * kk + 4 * tt))
                    for x in G[k]: emit(x)
                    k += 1
            for key in list(q.pos):
                if key[0] == "c": del q.pos[key]
            for key in list(q.pos):
                if key[0] == "n": q.pos[("c",) + key[1:]] = q.pos.pop(key)
        nst = 15 + npf
        a("s_mov_b32 s80, 3")
        loop = a.new_label("g1"); a.label(loop)
        q = DSQ()
        for F in range(PD):
            for jh in range(2): q.issue(("c", F, jh))
        q.done = 2
        for u in range(4):
            stage(u, True, npf + 2 * nst, q, side=True, first_wait=(8 + npf + nst) if u == 0 else None,
                  adv_end=[(4 * 23 + 2, "s_sub_u32 s80, s80, 1"), (4 * 26 + 2, "s_cmp_lg_u32 s80, 0")] if u == 3 else None)
        a("s_cbranch_scc1 %s" % loop)
        self.mark(13)
        if "xs" in self.opt: a("s_mov_b32 s100, 0"); a("s_mov_b32 s101, 0")
        a("s_mov_b32 s%d, %d" % (RE + 2, 3584 * 2048))
        def run(c, sts): return [(st, kk, ct) for st in sts for kk in range(2) for ct in (c, 7 + c)]
        seq = run(0, (13, 14)) + run(1, (13, 14)) + run(0, (15,)) + run(1, (15,))
        done = {0: 20, 1: 24}
        for c in range(2, 7): seq += run(c, (13, 14, 15)); done[c] = len(seq)
        stage(0, True, npf + 15, q, nextf=[(14 * kk + ct, (st - 13) * G1_STAGE) for (st, kk, ct) in seq[:PD]])
        self.mark(14)
        def capture(fn):
            keep = self.a; tmp = Asm(); self.a = tmp; fn(); self.a = keep
            return [l.strip() for l in tmp.lines]
        st_ = self.stashed
        pre = self.g2_voffs() + ["v_mov_b32 v17, v15", "v_accvgpr_read_b32 v4, a%d" % st_["g1es"],
               "s_mul_i32 s58, s73, %d" % (112 * 1024), "s_mul_i32 s59, s72, 7", "s_add_u32 s60, s59, 1", "s_lshr_b32 s60, s60, 1",
               "s_lshl_b32 s60, s60, 10", "s_add_u32 s60, s60, s58", "s_and_b32 s61, s72, 1", "s_mov_b32 s62, 3072", "s_cmp_eq_u32 s61, 1", "s_cselect_b32 s62, -512, s62",
               "s_add_u32 s62, s62, s60"] + capture(self.g2_pre)
        def glue(L):
            out = []; i = 0
            while i < len(L):
                if i + 1 < len(L) and isinstance(L[i], str) and (L[i + 1].startswith("s_addc") or L[i + 1].startswith("s_cselect")):
                    out.append(L[i] + "\n" + L[i + 1]); i += 2
                else: out.append(L[i]); i += 1
            return out
        pre = glue(pre)
        vq = VMQ()
        def mul(c, tt):
            g, u = acc(c, tt), acc(7 + c, tt)
            return ["v_mul_f32 v%d, v%d, v%d" % (g + i, g + i, u + i) for i in range(4)]
        def cvt(c, tt):
            g = acc(c, tt); u = acc(7 + c, tt & ~1) + 2 * (tt & 1)
            return ["v_cvt_pk_bf16_f32 v%d, v%d, v%d" % (u, g, g + 1), "v_cvt_pk_bf16_f32 v%d, v%d, v%d" % (u + 1, g + 2, g + 3)]
        def out(c, tp):
            u = acc(7 + c, tp)
            base, off = (62, 0) if c == 6 else (60, 1024 * (c >> 1) + 512 * (c & 1))
            return ["s_add_u32 s63, s%d, %d" % (base, off + tp * 112 * 1024),
                    "v_permlane16_swap_b32 v%d, v%d" % (u, u + 2), "v_permlane16_swap_b32 v%d, v%d" % (u + 1, u + 3),
                    vq.op(("h", c, tp), "buffer_store_dwordx4 v[%d:%d], v4, s[%d:%d], s63 offen sc1" % (u, u + 3, RB, RB + 3))]
        held = []
        def epi(c, hold=False):
            o0, o2 = out(c, 0), out(c, 2)
            if hold:
                held.extend([o0[0], o0[3], o2[0], o2[3]]); o0 = o0[1:3]; o2 = ["s_nop 1"] + o2[1:3]
            return mul(c, 0) + mul(c, 1) + cvt(c, 0) + cvt(c, 1) + mul(c, 2) + mul(c, 3) + o0 + cvt(c, 2) + cvt(c, 3) + o2
        N = len(seq)
        G = [[] for _ in range(4 * N)]
        def faddr(n):
            st, kk, ct = seq[n]
            return (16, 0) if st == 13 else (16, G1_STAGE) if st == 14 else (17, 0)
        for n in range(N):
            m = n + PD
            if m < N:
                st, kk, ct = seq[m]; reg, off = faddr(m)
                for jh in range(2): G[4 * n + jh].append(dsr(q, ("c", m, jh), wreg(m) + 2 * jh, reg, off + foff(14 * kk + ct, jh)))
            if n < N - 1: G[4 * n + 3].append(lambda n=n: q.wait(("c", n + 1, 1)))
        nb = 16 - PD - 1
        assert all(x[0] != 15 for x in seq[:16])
        G[4 * nb + 2].append(lambda: "s_waitcnt vmcnt(%d)" % vq.n); G[4 * nb + 3].insert(0, "s_barrier")
        ex = []
        for st in range(4):
            ex.append("s_add_u32 m0, s88, %d" % G2_SLOT[st])
            for i in range(4): ex.append(vq.op(("w", st, i), self.g2_dma(i, G2_ROW[st])))
        exn = self.optv("exn", 4)
        ex0 = self.optv("ex0", 3)
        if ex0 <= nb:
            G[4 * (ex0 - 1) + 3].insert(0, "s_barrier")
        for i, x in enumerate(ex): G[4 * (ex0 + (i * exn) // 5) + (2 if i % 5 else 1)].append(x)
        nA, nP, nC, nB = self.nA0, self.nPoll, self.nChk, self.nA1
        G[4 * nA + 2] += [lambda: vq.wait(("h", 1, 2)), vq.op("a0", "buffer_atomic_add v6, v5, s[%d:%d], 0 offen" % (RS, RS + 3))]
        G[4 * nP + 2].append(vq.op("p0", "buffer_load_dword v31, v30, s[%d:%d], 0 offen sc1" % (RS, RS + 3)))
        slow = a.new_label("c4s"); back = a.new_label("c4b")
        G[4 * nC + 1].append(lambda: vq.wait("p0"))
        G[4 * nC + 2] += ["v_cmp_gt_u32 vcc, 16, v31", "s_cbranch_vccnz %s" % slow, back + ":"]
        self.slow.append((slow, back, "0"))
        G[4 * nB + 2] += [lambda: vq.wait(("h", 3, 2)), vq.op("a1", "buffer_atomic_add v6, v5, s[%d:%d], s79 offen" % (RS, RS + 3))]
        def place(ops, g0):
            g = g0; k = 0
            while k < len(ops) and g < 4 * N:
                if len([x for x in G[g] if not (isinstance(x, str) and x.endswith(":"))]) < 2: G[g].append(ops[k]); k += 1
                else: g += 1
            return ops[k:], g + 1
        rest, gp = place(pre, 0); assert not rest and gp <= 4 * 20, gp
        tok = []
        for st in range(4):
            tok.append("s_lshr_b32 s78, s%d, 6" % G2_ROW[st])
            for j in range(4): tok.append(vq.op(("t", st, j), self.g2_tokload(st, j)))
        tkn = self.optv("tkn", 4)
        gt = 0
        for i, x in enumerate(tok):
            gt = 4 * (nC + 1 + i // tkn) + ([2], [0, 2], [0, 1, 2], [0, 1, 2, 3])[tkn - 1][i % tkn]
            G[gt].append(x)
        nhold = self.optv("hold", 0)
        def zero(r0): return ["v_pk_mov_b32 v[%d:%d], 0, 0" % (r, r + 1) for r in range(r0, r0 + 16, 2)]
        g = 0
        left = []
        for c in range(6):
            rest, g = place(epi(c, hold=c >= 6 - nhold), max(g - 1, 4 * done[c] + 1))
            assert not rest or c == 5
            left += rest
            if c < 4: rest, g = place(zero(acc(c, 0)), g - 1); assert not rest
        rest, g = place(held, max(gt + 1, g - 1) if not left else 4 * N)
        left += rest
        k = 0
        for n in range(N):
            st, kk, ct = seq[n]
            for tt in range(4):
                a(mfma(acc(ct, tt), wreg(n), TOK + 32 * (st % 4) + 16 * kk + 4 * tt))
                for x in G[k]: emit(x)
                k += 1
            if "xm" in self.opt and n in (nA, nC, 23, 47): self.mark({nA: 26, nC: 27, 23: 24, 47: 25}[n])
        for x in left + epi(6): emit(x)
        self.mark(15)
        self.vq = vq

    def g2_pre(self):
        a = self.a
        self.unstash("g2t0", 20); self.unstash("g2t1", 21); self.unstash("g2o", 22); self.unstash("g2o4", 23)
        self.unstash("g2tab", 25); self.unstash("c4a", 5); self.unstash("c4p", 30)
        ks = 1024 if "x2nat" in self.opt else 7168
        a("v_add_u32 v18, %d, v20" % ks); a("v_add_u32 v19, %d, v21" % ks); a("v_mov_b32 v6, 1")
        self.in_srd(RD, P_OUT, 4194304)
        self.ws_srd(RA, WS_XCH, 1024 * self.xstr)
        self.ws_srd(RC, WS_H, 4194304)
        for c in range(4):
            a("v_add_u32 v%d, %d, v%d" % (12 + c, G2_SLOT[5], 26 + c)); a("v_add_u32 v%d, %d, v%d" % (26 + c, G2_BASE, 26 + c))
        a("v_readlane_b32 s75, v25, 4"); a("s_mov_b32 s76, 5"); a("s_mov_b32 s79, %d" % (128 * 128)); a("s_mov_b32 s77, %d" % (256 * 128))
    def g2_tokload(self, slot, j):
        kk, tt = j >> 1, j & 1
        r = G2_TOK[slot] + 8 * kk + 4 * tt
        fl = "nt" if "g2tnt" in self.opt else "" if "g2tpl" in self.opt else "sc1"
        return "buffer_load_dwordx4 a[%d:%d], v%d, s[%d:%d], s78 offen %s" % (r, r + 3, (18 if kk else 20) + tt, RB, RB + 3, fl)
    def gemm2(self):
        a = self.a
        ACC, HR, TOK, WF, PD, NST = 32, 96, 0, G2_WF, 7, 28
        def acc(ct, tt): return ACC + (ct * 2 + tt) * 4
        tokload = self.g2_tokload
        def fk(F): return (F >> 2) & 1, (F & 3) + (0 if F >= 8 else 4)
        def fread(slot, F, jh, ring=None):
            kk, ct = fk(F)
            r = WF + 4 * ((F if ring is None else ring) % 8) + 2 * jh
            base, so = (12, G2_SLOT[slot] - G2_SLOT[5]) if slot in (3, 5) else (26, G2_SLOT[slot] - G2_BASE)
            assert 0 <= so <= 49152
            return "ds_read_b64_tr_b16 a[%d:%d], v%d offset:%d" % (r, r + 1, base + (ct & 3), so + (2 * kk + (ct >> 2)) * 4096 + jh * 2048)
        a("s_barrier")
        for F in range(PD):
            for jh in range(2): a(fread(0, F, jh))
        a("s_add_u32 m0, s88, %d" % G2_SLOT[4])
        a(self.vq.wait(("t", 1, 3)) + " lgkmcnt(10)")
        self.mark(18)
        vq = self.vq
        def stage(u, loads, bwait, last=False, extra=None, tailops=None, first=None):
            G = [[] for _ in range(32)]
            nods = "x2nods" in self.opt
            for F in range(16):
                Fn = F + PD
                if not nods and not (last and Fn >= 16):
                    sl = u if Fn < 16 else (u + 1) % 6
                    G[2 * F].append(fread(sl, Fn % 16, 0)); G[2 * F + 1].append(fread(sl, Fn % 16, 1))
                if F & 1:
                    if not last: G[2 * F + 1].append("s_waitcnt lgkmcnt(10)")
                    elif F < 15:
                        issued = min(F + PD, 15); need = F + 2
                        G[2 * F + 1].append("s_waitcnt lgkmcnt(%d)" % max(0, 2 * (issued - need)))
            vm = []
            def check(g, wait, soff):
                slow = a.new_label("c4t"); back = a.new_label("c4u")
                G[g].append(wait); G[g + 1].append("v_cmp_gt_u32 vcc, 16, v31"); G[g + 2] += ["s_cbranch_vccnz %s" % slow, back + ":"]
                self.slow.append((slow, back, soff))
            def poll(soff): return "buffer_load_dword v31, v30, s[%d:%d], %s offen sc1" % (RS, RS + 3, soff)
            if loads:
                vm = [self.g2_dma(i, 75) for i in range(4)] + [tokload((u + 4) % 6, j) for j in range(4)]
                if "x2nodma" in self.opt: vm[:4] = ["s_nop 0"] * 4
                if "x2notok" in self.opt: vm[4:] = ["s_nop 0"] * 4
                G[1].append("s_lshr_b32 s78, s75, 6")
                G[9].append("v_readlane_b32 s75, v25, s76"); G[13].append("s_add_u32 s76, s76, 1")
                G[29].append("s_add_u32 m0, s88, %d" % G2_SLOT[(u + 5) % 6])
                if first is not None:
                    vm = [vq.op(("L", first + 4, i), x) for i, x in enumerate(vm)]
                    bwait = lambda: vq.wait(("L", first + 1, 7) if first >= 3 else ("t", first + 1, 3))
                    if first == 1: G[15].append(vq.op("p1", poll("s79")))
                    if first == 4: check(5, lambda: vq.wait("p1"), "s79")
                    if first == self.optv("nD", 2):
                        G[18] += [lambda: vq.wait(("h", 6, 2))]; G[20].append(vq.op("a2", "buffer_atomic_add v6, v5, s[%d:%d], s77 offen" % (RS, RS + 3)))
                else:
                    if u == 3: G[15].append(poll("s77"))
                    if u == 0: check(5, "s_waitcnt vmcnt(19)", "s77")
            if extra: vm = extra
            for i, x in enumerate(vm): G[2 * i].append(x)
            if not last:
                G[16].append(bwait if callable(bwait) else "s_waitcnt vmcnt(%d)" % bwait); G[17].append("s_barrier")
            if tailops:
                for g, x in tailops: G[g].append(x)
            k = 0
            for F in range(16):
                kk, ct = fk(F)
                w = WF + 4 * (F % 8)
                for tt in range(2):
                    t = G2_TOK[u] + 8 * kk + 4 * tt; c = acc(ct, tt)
                    if "x2nomfma" not in self.opt:
                        a("v_mfma_f32_16x16x32_bf16 v[%d:%d], a[%d:%d], a[%d:%d], v[%d:%d]" % (c, c + 3, w, w + 3, t, t + 3, c, c + 3))
                    for x in G[k]: a(x() if callable(x) else x)
                    k += 1
        for u in range(6):
            stage(u, True, None, first=u)
            if "xm3" in self.opt: self.mark([16, 17, 24, 25, 26, 27][u])
        a("s_mov_b32 s81, 3")
        loop = a.new_label("g2"); a.label(loop)
        for u in range(6):
            stage(u, True, [25, 24, 24, 25, 25, 25][u], tailops=[(22, "s_sub_u32 s81, s81, 1"), (30, "s_cmp_lg_u32 s81, 0")] if u == 5 else None)
        a("s_cbranch_scc1 %s" % loop)
        a("s_mov_b32 s60, 32768")
        hl = ["buffer_load_dwordx2 v[%d:%d], v22, s[%d:%d], %s offen offset:%d sc1" % (HR + 2 * e, HR + 2 * e + 1, RC, RC + 3, "s60" if e & 1 else "0", 32 * (e >> 1)) for e in range(8)]
        seq = [(u, F) for u in range(4) for F in range(8)] + [(u, F) for u in range(4) for F in range(8, 16)]
        N = len(seq)
        G = [[] for _ in range(2 * N)]
        q = DSQ()
        for n in range(PD):
            for jh in range(2): q.issue((n, jh))
        q.done = 4
        def rd(m, jh): return lambda: (q.issue((m, jh)), fread(seq[m][0], seq[m][1], jh, ring=m))[1]
        for n in range(N):
            m = n + PD
            if m < N: G[2 * n].append(rd(m, 0)); G[2 * n + 1].append(rd(m, 1))
            if n & 1 and n < N - 1: G[2 * n + 1].append(lambda n=n: q.wait((min(n + 2, N - 1), 1)))
        for u, cnt in ((1, 16), (2, 16), (3, 8)):
            n = 8 * u - PD - 1
            G[2 * n].append("s_waitcnt vmcnt(%d)" % cnt); G[2 * n + 1].insert(0, "s_barrier")
        for i, x in enumerate(hl): G[2 * (1 + i) if i < 7 else 2 * 8 - 1].append(x)
        xa = ["s_lshl_b32 s58, s2, 2", "s_add_u32 s58, s58, s%d" % S_WAVE, "s_mul_i32 s61, s58, %d" % self.xstr, "s_xor_b32 s58, s58, 4",
              "s_mul_i32 s62, s58, %d" % self.xstr, "s_add_u32 s63, s62, 4096", "s_add_u32 s58, s61, 4096"]
        for i, x in enumerate(xa): G[2 * (18 + i)].append(x)
        if self.x32:
            for e in range(8):
                c = ACC + 32 + 4 * e
                G[2 * 32 + self.optv("xsp", 1) * e + 1].append("buffer_store_dwordx4 v[%d:%d], v24, s[%d:%d], s%d offen offset:%d sc1" % (c, c + 3, RA, RA + 3, 58 if e >> 2 else 61, 1024 * (e & 3)))
        else:
            g = 2 * 31
            for p_ in range(4):
                c = ACC + 32 + 8 * p_
                ops = ["v_cvt_pk_bf16_f32 v%d, v%d, v%d" % (c + i, c + 2 * i, c + 2 * i + 1) for i in range(4)]
                ops.append("buffer_store_dwordx4 v[%d:%d], v24, s[%d:%d], s61 offen offset:%d sc1" % (c, c + 3, RA, RA + 3, 1024 * p_))
                g = max(g, 2 * (28 + p_) + 6)
                for x in ops:
                    while len(G[g]) >= 2: g += 1
                    G[g].append(x)
                g += self.optv("xsp", 1)
        k = 0
        for n in range(N):
            u, F = seq[n]; kk, ct = fk(F)
            w = WF + 4 * (n % 8)
            for tt in range(2):
                t = G2_TOK[u] + 8 * kk + 4 * tt; c = acc(ct, tt)
                a("v_mfma_f32_16x16x32_bf16 v[%d:%d], a[%d:%d], a[%d:%d], v[%d:%d]" % (c, c + 3, w, w + 3, t, t + 3, c, c + 3))
                for x in G[k]:
                    x = x() if callable(x) else x
                    if x: a(x)
                k += 1
        self.mark(19)
        R = 112
        NX = 8 if self.x32 else 4
        def xloads():
            for e in range(NX):
                a("buffer_load_dwordx4 v[%d:%d], v24, s[%d:%d], s%d offen offset:%d sc1" % (R + 4 * e, R + 4 * e + 3, RA, RA + 3, 62 + (e >> 2), 1024 * (e & 3)))
        def residual():
            for e in list(range(8)):
                c = ACC + 4 * e; r = HR + 2 * e
                a("v_lshlrev_b32 v4, 16, v%d" % r); a("v_and_b32 v5, s%d, v%d" % (S_MASK, r))
                a("v_lshlrev_b32 v6, 16, v%d" % (r + 1)); a("v_and_b32 v7, s%d, v%d" % (S_MASK, r + 1))
                for i in (0, 2): a("v_pk_add_f32 v[%d:%d], v[%d:%d], v[%d:%d]" % (c + i, c + i + 1, c + i, c + i + 1, 4 + i, 5 + i))
        if "reslast" not in self.opt:
            a("s_waitcnt vmcnt(%d)" % NX); residual(); xloads()
        else:
            xloads()
            a("s_waitcnt vmcnt(%d)" % (2 * NX))
            residual()
        self.mark(20)
        ok = a.new_label("xgo"); lp = a.new_label("xpl")
        a("s_mov_b32 s59, 0")
        a.label(lp)
        a("s_waitcnt vmcnt(0)")
        a("v_max3_u32 v4, v%d, v%d, v%d" % (R, R + 1, R + 2))
        for i in range(3, 4 * NX - 1, 2): a("v_max3_u32 v4, v4, v%d, v%d" % (R + i, R + i + 1))
        a("v_max_u32 v4, v4, v%d" % (R + 4 * NX - 1))
        a("v_cmp_eq_u32 vcc, -1, v4")
        a("s_add_u32 s59, s59, 1"); a("s_cmp_gt_u32 s59, %d" % SPIN_MAX); a("s_cbranch_scc1 %s" % ok)
        a("s_cbranch_vccz %s" % ok)
        xloads()
        a("s_branch %s" % lp)
        a.label(ok)
        self.mark(21)
        units = [(tt, m) for tt in range(2) for m in range(2)]
        def fin(i):
            tt, m = units[i]; up = HR + 4 * i
            a("v_permlane16_swap_b32 v%d, v%d" % (up, up + 2)); a("v_permlane16_swap_b32 v%d, v%d" % (up + 1, up + 3))
            fl = "" if "outplain" in self.opt else " nt" if "outnt" in self.opt else " sc0 sc1" if "outsc01" in self.opt else " sc1 nt" if "outsc1nt" in self.opt else " sc0 sc1 nt" if "outall" in self.opt else " sc1"
            a("buffer_store_dwordx4 v[%d:%d], v23, s[%d:%d], %s offen offset:%d%s" % (up, up + 3, RD, RD + 3, "s60" if tt else "0", 64 * m, fl))
        for i, (tt, m) in enumerate(units):
            u = HR + 4 * i
            for h in range(2):
                e = 2 * (2 * m + h) + tt
                c = ACC + 4 * e; r = R + 4 * e
                if self.x32:
                    for j in range(4): a("v_add_f32 v%d, v%d, v%d" % (c + j, c + j, r + j))
                else:
                    r = R + 4 * (e >> 1) + 2 * (e & 1)
                    a("v_lshlrev_b32 v4, 16, v%d" % r); a("v_and_b32 v5, s%d, v%d" % (S_MASK, r))
                    a("v_lshlrev_b32 v6, 16, v%d" % (r + 1)); a("v_and_b32 v7, s%d, v%d" % (S_MASK, r + 1))
                    for j in (0, 2): a("v_pk_add_f32 v[%d:%d], v[%d:%d], v[%d:%d]" % (c + j, c + j + 1, c + j, c + j + 1, 4 + j, 5 + j))
                a("v_cvt_pk_bf16_f32 v%d, v%d, v%d" % (u + 2 * h, c, c + 1)); a("v_cvt_pk_bf16_f32 v%d, v%d, v%d" % (u + 2 * h + 1, c + 2, c + 3))
            if i > 0: fin(i - 1)
        a("s_nop 1")
        fin(3)
        self.mark(22)

    def finish(self, name):
        a = self.a
        if self.diag:
            a("s_waitcnt vmcnt(0) lgkmcnt(0)")
            self.mark(23)
            a("s_memrealtime s[92:93]"); a("s_waitcnt lgkmcnt(0)")
            a("v_accvgpr_read_b32 v1, a255"); a("s_nop 1")
            if "xs" in self.opt: a("v_writelane_b32 v1, s100, 54"); a("v_writelane_b32 v1, s101, 55")
            for i, s in enumerate((94, 95, 96, 97, 92, 93)):
                a("v_writelane_b32 v1, s%d, %d" % (s, 56 + i))
            self.ws_srd(RA, STAMP, 256 * 1024)
            a("s_lshl_b32 s58, s2, 10"); a("s_lshl_b32 s59, s%d, 8" % S_WAVE); a("s_add_u32 s58, s58, s59")
            a("v_lshlrev_b32 v3, 2, v2")
            a("buffer_store_dword v1, v3, s[%d:%d], s58 offen" % (RA, RA + 3))
            if "dbgspan" in self.opt:
                self.in_srd(RE, P_DBG, 256)
                nd = a.new_label("nodbg")
                a("s_cmp_lg_u32 s%d, 0" % S_WAVE); a("s_cbranch_scc1 %s" % nd)
                a("s_not_b32 s58, s94"); a("v_mov_b32 v4, s58"); a("v_mov_b32 v5, 16"); a("v_mov_b32 v6, s92"); a("v_mov_b32 v7, 20")
                a("s_mov_b64 exec, 1")
                a("buffer_atomic_umax v4, v5, s[%d:%d], 0 offen" % (RE, RE + 3))
                a("buffer_atomic_umax v6, v7, s[%d:%d], 0 offen" % (RE, RE + 3))
                a("s_mov_b64 exec, -1")
                a("s_cmp_lg_u32 s2, 0"); a("s_cbranch_scc1 %s" % nd)
                a("v_mov_b32 v4, 0")
                for i, m in enumerate((2, 3, 6, 8, 11, 12, 14, 17, 19, 23)):
                    a("v_readlane_b32 s58, v1, %d" % (2 * m)); a("s_nop 3"); a("s_sub_u32 s58, s58, s96"); a("v_writelane_b32 v4, s58, %d" % (6 + i)); a("s_nop 1")
                a("v_lshlrev_b32 v5, 2, v2")
                a("s_mov_b64 exec, 0xffc0")
                a("buffer_store_dword v4, v5, s[%d:%d], 0 offen" % (RE, RE + 3))
                a("s_mov_b64 exec, -1")
                a.label(nd)
        a.label(name + "_done")
        a("s_endpgm")
        for slow, back, soff in self.slow:
            a.label(slow)
            a("s_mov_b32 s80, 0")
            a.label(slow + "l")
            a("buffer_load_dword v31, v30, s[%d:%d], %s offen sc1" % (RS, RS + 3, soff))
            a("s_waitcnt vmcnt(0)")
            a("v_cmp_gt_u32 vcc, 16, v31")
            if "xs" in self.opt: a("s_add_u32 s%d, s%d, 1" % ((100, 100) if soff == "0" else (101, 101)))
            a("s_add_u32 s80, s80, 1"); a("s_cmp_gt_u32 s80, %d" % SPIN_MAX); a("s_cbranch_scc1 %s" % back)
            a("s_cbranch_vccnz %sl" % slow)
            a("s_branch %s" % back)
        if self.slow: a("s_endpgm")
    def build(self, upto=5):
        name = KNAME + "_kernel"
        self.entry(name)
        self.prep()
        if upto >= 2: self.conv()
        if upto >= 3:
            self.g1_setup(); self.ln()
        if upto >= 4: self.gemm1()
        if upto >= 5: self.gemm2()
        self.finish(name)
        hdr = "; persistent single-launch kernel generated by gen/fused.py (hand-written generator)\n"
        hdr += "; @launch grid=(256,1,1) block=(256,1,1) lds=%d\n" % LDS_TOTAL
        hdr += '.amdgcn_target "amdgcn-amd-amdhsa--gfx950"\n'
        return hdr + self.a.text() + kernel_desc(name, 512, 102, 256)

if __name__ == "__main__":
    import sys
    out = sys.argv[1]
    opt = sys.argv[2] if len(sys.argv) > 2 else ""
    diag = "diag" in opt.split(",")
    upto = 5
    for t in opt.split(","):
        if t.startswith("upto"): upto = int(t[4:])
    open(out, "w").write(Gen(opt, diag).build(upto))
```

```python
from asmlib import *
from layout import *

P_Q, P_K, P_V, P_SK, P_SSMK, P_SSMD, P_WG, P_WU, P_WD, P_OUT, P_DBG, P_WS = 4, 6, 8, 10, 12, 14, 18, 20, 22, 24, 26, 28
S_WAVE, S_X, S_J = 30, 31, 3
RA, RB, RC, RD, RE, RS = 32, 36, 40, 44, 48, 52
S_MASK, S_EPS = 56, 57
SPIN_MAX = 1 << 17

KCOPY = 4160; XB0 = 4 * KCOPY; XSTR = 4576; WREG = 25856
CSTG = 4 * WREG
PSTG = CSTG + 17408
G1_STAGE = 28672; G1_NSLOT = 5
SENT = 236
G2_WF = 204
G2_STAGE = 16384; G2_NSLOT = 6; G2_BASE = G1_STAGE
G2_SLOT = [G2_BASE, G2_BASE + G2_STAGE, G2_BASE + 2 * G2_STAGE, G1_STAGE * G1_NSLOT, G2_BASE + 3 * G2_STAGE, G2_BASE + 4 * G2_STAGE]
G2_ROW = [89, 90, 91, 93]
G2_TOK = [0, 16, 160, 176, 32, 48]
LDS_TOTAL = G1_STAGE * G1_NSLOT + G2_STAGE

class DSQ:
    def __init__(self): self.n = 0; self.pos = {}; self.done = 0
    def issue(self, tag): self.n += 1; self.pos[tag] = self.n
    def wait(self, tag):
        need = self.pos[tag]
        if need <= self.done: return None
        cnt = min(15, self.n - need); self.done = self.n - cnt
        return "s_waitcnt lgkmcnt(%d)" % cnt

class VMQ:
    def __init__(self): self.n = 0; self.pos = {}
    def op(self, tag, text): return lambda: (self.issue(tag), text)[1]
    def issue(self, tag): self.n += 1; self.pos[tag] = self.n
    def wait(self, tag): return "s_waitcnt vmcnt(%d)" % min(63, self.n - self.pos[tag])

class Gen:
    def __init__(self, opt="", diag=False):
        self.a = Asm(); self.opt = set(opt.split(",")); self.diag = diag; self.stashed = {}; self.pffast = "pfall" not in self.opt; self.slow = []
        optv = self.optv
        self.sh_prep, self.sh_c1, self.sh_c3 = {4: (["g1", "g2", "pf", "ln", "cv"], [], []), 5: (["g2", "pf", "ln", "cv"], ["g1"], []),
                                                7: (["pf", "ln", "cv"], ["g1"], ["g2"]), 8: (["pf", "cv"], ["g1", "ln"], ["g2"]),
                                                9: (["g1"], ["pf", "ln", "cv"], ["g2"])}[optv("sh", 4)]
        self.x32 = "xf32" in self.opt
        self.xbytes = 8192 if self.x32 else 4096
        self.xstr = optv("xstr", self.xbytes + 1152)
        self.nA0, self.nPoll, self.nChk, self.nA1 = optv("nA", 46), optv("nP", 62), optv("nC", 70), optv("nB", 76)
    def optv(self, name, dflt):
        for t in self.opt:
            if t.startswith(name + "="): return int(t[len(name) + 1:])
        return dflt
    def mark(self, i):
        if not self.diag: return
        a = self.a
        a("s_memtime s[98:99]"); a("s_waitcnt lgkmcnt(0)")
        a("v_accvgpr_read_b32 v1, a255"); a("s_nop 1")
        a("v_writelane_b32 v1, s98, %d" % (2 * i)); a("v_writelane_b32 v1, s99, %d" % (2 * i + 1))
        a("s_nop 1"); a("v_accvgpr_write_b32 a255, v1")
    def stash(self, name, v):
        n = len(self.stashed)
        idx = self.stashed.setdefault(name, 176 + n if n < 28 else 240 + n - 28); assert idx < 255
        self.a("v_accvgpr_write_b32 a%d, v%d" % (idx, v))
    def unstash(self, name, v):
        self.a("v_accvgpr_read_b32 v%d, a%d" % (v, self.stashed[name]))
    def ws_srd(self, dst, off, size):
        a = self.a
        a("s_add_u32 s%d, s%d, 0x%x" % (dst, P_WS, off)); a("s_addc_u32 s%d, s%d, 0" % (dst + 1, P_WS + 1))
        a("s_and_b32 s%d, s%d, 0xffff" % (dst + 1, dst + 1)); a("s_mov_b32 s%d, 0x%x" % (dst + 2, size)); a("s_mov_b32 s%d, 0x00020000" % (dst + 3))
    def in_srd(self, dst, ptr, size, soff=None):
        a = self.a
        if soff is None:
            srd(a, dst, ptr, size)
        else:
            a("s_add_u32 s%d, s%d, s%d" % (dst, ptr, soff)); a("s_addc_u32 s%d, s%d, 0" % (dst + 1, ptr + 1))
            a("s_and_b32 s%d, s%d, 0xffff" % (dst + 1, dst + 1)); a("s_mov_b32 s%d, 0x%x" % (dst + 2, size)); a("s_mov_b32 s%d, 0x00020000" % (dst + 3))
    def arrive(self, addr, nlanes=1, vm=0, check_init=None, init_target=1):
        a = self.a
        for s in addr: a(s)
        a("s_waitcnt vmcnt(%d)" % vm)
        a("s_barrier")
        sk = a.new_label("arr")
        a("s_cmp_lg_u32 s%d, 0" % S_WAVE); a("s_cbranch_scc1 %s" % sk)
        if check_init is not None:
            ok = a.new_label("ini"); lp = a.new_label("inip")
            a("s_mov_b32 s59, 0")
            a.label(lp)
            a("v_readfirstlane_b32 s58, v%d" % check_init)
            a("s_cmp_ge_u32 s58, %d" % init_target); a("s_cbranch_scc1 %s" % ok)
            a("s_add_u32 s59, s59, 1"); a("s_cmp_gt_u32 s59, %d" % SPIN_MAX); a("s_cbranch_scc1 %s" % ok)
            a("v_mov_b32 v6, 0")
            a("buffer_load_dword v%d, v6, s[%d:%d], 0 offen sc1" % (check_init, RE, RE + 3))
            a("s_waitcnt vmcnt(0)")
            a("s_branch %s" % lp)
            a.label(ok)
        a("v_mov_b32 v6, 1")
        a("s_mov_b64 exec, 0x%x" % ((1 << nlanes) - 1))
        a("buffer_atomic_add v6, v7, s[%d:%d], 0 offen" % (RS, RS + 3))
        a("s_mov_b64 exec, -1")
        a.label(sk)
    def wait(self, line_sgpr, nlines, target, shadow=None):
        a = self.a
        sk = a.new_label("wt"); lp = a.new_label("wtp"); s0 = a.new_label("wt0")
        mask = "0x%x" % ((1 << nlines) - 1)
        a("s_cmp_lg_u32 s%d, 0" % S_WAVE); a("s_cbranch_scc1 %s" % s0)
        a("v_min_u32 v6, %d, v2" % (nlines - 1)); a("v_lshlrev_b32 v6, 7, v6"); a("v_add_u32 v6, s%d, v6" % line_sgpr)
        a("s_mov_b64 exec, %s" % mask)
        a("buffer_load_dword v7, v6, s[%d:%d], 0 offen sc1" % (RS, RS + 3))
        a("s_mov_b64 exec, -1")
        a.label(s0)
        if shadow: shadow()
        a("s_cmp_lg_u32 s%d, 0" % S_WAVE); a("s_cbranch_scc1 %s" % sk)
        a("s_mov_b32 s59, 0")
        a("s_mov_b64 exec, %s" % mask)
        a.label(lp)
        a("s_waitcnt vmcnt(0)")
        a("v_cmp_gt_u32 vcc, %d, v7" % target)
        a("s_add_u32 s59, s59, 1")
        a("s_cmp_gt_u32 s59, %d" % SPIN_MAX); a("s_cbranch_scc1 %s" % (sk + "x"))
        a("s_cbranch_vccz %s" % (sk + "x"))
        a("buffer_load_dword v7, v6, s[%d:%d], 0 offen sc1" % (RS, RS + 3))
        a("s_branch %s" % lp)
        a.label(sk + "x")
        a("s_mov_b64 exec, -1")
        a.label(sk)
        a("s_barrier")

    def entry(self, name):
        a = self.a
        kernel_begin(a, name)
        a("s_cmp_ge_u32 s2, 256"); a("s_cbranch_scc1 %s_done" % name)
        if self.diag:
            a("s_memrealtime s[94:95]"); a("s_memtime s[96:97]"); a("v_accvgpr_write_b32 a255, 0")
        a("s_load_dwordx16 s[4:19], s[0:1], 0")
        a("s_load_dwordx8 s[20:27], s[0:1], 64")
        a("s_load_dwordx2 s[28:29], s[0:1], 96")
        a("v_lshrrev_b32 v1, 6, v0")
        a("v_and_b32 v2, 63, v0")
        a("v_readfirstlane_b32 s%d, v1" % S_WAVE)
        a("s_and_b32 s%d, s2, 7" % S_X); a("s_lshr_b32 s%d, s2, 3" % S_J)
        a("s_mov_b32 s%d, 0xffff0000" % S_MASK); a("s_mov_b32 s%d, 0x3727c5ac" % S_EPS)

    def prep(self):
        a = self.a
        a("v_and_b32 v8, 7, v0")
        a("v_lshrrev_b32 v9, 3, v0")
        a("s_lshr_b32 s60, s2, 4")
        a("s_and_b32 s61, s2, 15")
        a("s_lshl_b32 s62, s60, 18"); a("s_lshl_b32 s63, s61, 7"); a("s_add_u32 s62, s62, s63")
        a("v_lshlrev_b32 v3, 13, v9"); a("v_lshl_add_u32 v3, v8, 4, v3"); a("v_add_u32 v3, s62, v3")
        a("v_subrev_u32 v4, 6144, v3")
        a("s_lshl_b32 s63, s61, 9"); a("v_lshlrev_b32 v5, 6, v8"); a("v_add_u32 v5, s63, v5")
        a("s_mov_b32 s64, 4096")
        a("s_lshl_b32 s65, s%d, 5" % S_X); a("s_add_u32 s65, s65, s%d" % S_J)
        a("s_lshl_b32 s66, s65, 2"); a("s_add_u32 s66, s66, s%d" % S_WAVE)
        a("s_mul_i32 s67, s%d, %d" % (S_WAVE, WREG))
        a("s_lshl_b32 s68, s66, 12")
        a("v_lshlrev_b32 v10, 4, v2")
        a("v_lshlrev_b32 v11, 2, v2")
        a("v_add_u32 v12, 196, v10")
        a("s_lshl_b32 s69, s2, 3"); a("s_lshl_b32 s70, s%d, 1" % S_WAVE); a("s_add_u32 s69, s69, s70"); a("s_lshl_b32 s70, s69, 11")
        a("v_lshlrev_b32 v13, 3, v2")
        for i in range(4): a("v_accvgpr_write_b32 a%d, -1" % (SENT + i))
        a("s_waitcnt lgkmcnt(0)")
        self.ws_srd(RS, WS_SYNC, NLINES * 128)
        NCLR = NLINES // 64
        ni = a.new_label("noinit")
        a("s_lshl_b32 s58, s%d, 8" % S_WAVE); a("s_or_b32 s58, s58, s2"); a("s_cmp_ge_u32 s58, %d" % NCLR); a("s_cbranch_scc1 %s" % ni)
        a("v_lshlrev_b32 v6, 7, v2"); a("v_mov_b32 v7, 0"); a("s_lshl_b32 s58, s2, 13")
        a("buffer_store_dword v7, v6, s[%d:%d], s58 offen sc1" % (RS, RS + 3))
        a.label(ni)
        self.in_srd(RA, P_K, 4194304); self.in_srd(RB, P_V, 4194304); self.in_srd(RC, P_SK, 8192)
        KR, VR, SK = 16, 44, 60
        nt = "" if "p1nont" in self.opt else "nt"
        def ld(dst, voff, s, soff, off, fl=""):
            a("buffer_load_dwordx4 v[%d:%d], v%d, s[%d:%d], %s offen%s %s" % (dst, dst + 3, voff, s, s + 3, soff, " offset:%d" % off if off else "", fl))
        if "xp" in self.opt: self.mark(24)
        for i in range(4): ld(SK + 4 * i, 5, RC, "0", 16 * i)
        ld(KR + 0, 4, RA, "0", 0, nt); ld(KR + 4, 4, RA, "0", 2048, nt); ld(KR + 8, 4, RA, "s64", 0, nt)
        ld(KR + 12, 3, RA, "0", 0, nt); ld(KR + 16, 3, RA, "0", 2048, nt); ld(KR + 20, 3, RA, "s64", 0, nt); ld(KR + 24, 3, RA, "s64", 2048, nt)
        ld(VR + 0, 3, RB, "0", 0, nt); ld(VR + 4, 3, RB, "0", 2048, nt); ld(VR + 8, 3, RB, "s64", 0, nt); ld(VR + 12, 3, RB, "s64", 2048, nt)
        self.in_srd(RE, P_SSMD, 2048)
        a("s_lshl_b32 s58, s66, 1"); a("v_mov_b32 v6, s58")
        a("buffer_load_ushort v200, v6, s[%d:%d], 0 offen" % (RE, RE + 3))
        if "xp" in self.opt: self.mark(25)
        self.in_srd(RE, P_DBG, 256)
        ni = a.new_label("noflag")
        a("s_lshl_b32 s58, s%d, 8" % S_WAVE); a("s_or_b32 s58, s58, s2"); a("s_cmp_ge_u32 s58, %d" % NCLR); a("s_cbranch_scc1 %s" % ni)
        a("s_waitcnt vmcnt(16)")
        a("v_mov_b32 v6, 0"); a("v_mov_b32 v7, 1")
        a("s_mov_b64 exec, 1")
        a("buffer_atomic_add v7, v6, s[%d:%d], 0 offen" % (RE, RE + 3))
        a("s_mov_b64 exec, -1")
        a.label(ni)
        self.in_srd(RD, P_SSMK, 4096, 68)
        sknt = "" if "sknont" in self.opt else "nt"
        late = "sklate" in self.opt
        def sk_loads():
            for i in range(16):
                a("buffer_load_dword v%d, v11, s[%d:%d], 0 offen offset:%d %s" % (128 + i, RD, RD + 3, 256 * i, sknt))
        if not late: sk_loads()
        nclr = 0
        if "clrprep" in self.opt:
            nclr = self.xbytes // 1024
            self.xch_srd(RA)
            for i in range(nclr):
                a("buffer_store_dwordx4 a[%d:%d], v10, s[%d:%d], %s offen offset:%d sc1" % (SENT, SENT + 3, RA, RA + 3, "0" if i < 4 else "s64", 1024 * (i & 3)))
        self.ws_srd(RC, WS_XRT, 4194304)
        a("v_sub_u32 v6, 31, v9"); a("v_lshlrev_b32 v7, 1, v8"); a("v_xor_b32 v6, v6, v7"); a("v_lshlrev_b32 v6, 3, v6")
        a("v_lshl_add_u32 v6, v8, 11, v6"); a("v_add_u32 v14, %d, v6" % PSTG)
        W, K, V, O = 80, 84, 92, 96
        def unpack(dst, src, hi):
            if hi: a("v_and_b32 v%d, s%d, v%d" % (dst, S_MASK, src))
            else: a("v_lshlrev_b32 v%d, 16, v%d" % (dst, src))
        if "xp" in self.opt: self.mark(26)
        self.shadow(["roles"] + self.sh_prep)
        if "xp" in self.opt: self.mark(27)
        a("s_waitcnt vmcnt(%d)" % ((0 if late else 16) + nclr))
        self.mark(0)
        W, K, V, O = 80, 88, 102, 110
        for d in range(4):
            for tap in range(4):
                for hi in range(2): unpack(W + 2 * tap + hi, SK + 2 * (2 * d + hi) + (tap >> 1), tap & 1)
            for i in range(7):
                for hi in range(2): unpack(K + 2 * i + hi, KR + 4 * i + d, hi)
            for j in range(4):
                for hi in range(2): unpack(V + 2 * j + hi, VR + 4 * j + d, hi)
            def pk(op, dst, *src): a("%s v[%d:%d], %s" % (op, dst, dst + 1, ", ".join("v[%d:%d]" % (r, r + 1) for r in src)))
            for j in range(4): pk("v_pk_mul_f32", O + 2 * j, K + 2 * j, W + 6)
            for tap in (1, 2, 3):
                for j in range(4): pk("v_pk_fma_f32", O + 2 * j, K + 2 * (j + tap), W + 2 * (3 - tap), O + 2 * j)
            for j in range(4): pk("v_pk_mul_f32", O + 2 * j, O + 2 * j, V + 2 * j)
            for hi in range(2):
                P = 120 + 2 * hi
                a("v_cvt_pk_bf16_f32 v%d, v%d, v%d" % (P, O + 6 + hi, O + 4 + hi))
                a("v_cvt_pk_bf16_f32 v%d, v%d, v%d" % (P + 1, O + 2 + hi, O + hi))
                a("ds_write_b64 v14, v[%d:%d] offset:%d" % (P, P + 1, (2 * d + hi) * 256))
        a("v_lshrrev_b32 v16, 4, v0"); a("v_and_b32 v17, 15, v0"); a("v_lshrrev_b32 v18, 7, v0")
        a("s_lshl_b32 s62, s61, 18"); a("s_lshl_b32 s63, s60, 8"); a("s_sub_u32 s62, s62, s63"); a("s_add_u32 s62, s62, 3840")
        a("v_lshlrev_b32 v19, 12, v16"); a("v_lshl_add_u32 v19, v17, 4, v19"); a("v_add_u32 v19, s62, v19")
        a("s_waitcnt lgkmcnt(0)")
        a("s_barrier")
        for i in range(4):
            a("v_add_u32 v20, %d, v18" % (2 * i)); a("v_xor_b32 v20, v20, v17"); a("v_lshlrev_b32 v20, 4, v20")
            a("v_lshl_add_u32 v20, v16, 8, v20"); a("v_add_u32 v20, %d, v20" % PSTG)
            a("ds_read_b128 v[%d:%d], v20 offset:%d" % (24 + 4 * i, 27 + 4 * i, i * 4096))
        a("v_mov_b32 v6, 0")
        a("buffer_load_dword v15, v6, s[%d:%d], 0 offen sc1" % (RE, RE + 3))
        for i in range(4):
            a("s_mov_b32 s63, %d" % (i * 16 * 4096))
            a("s_waitcnt lgkmcnt(%d)" % (3 - i))
            a("buffer_store_dwordx4 v[%d:%d], v19, s[%d:%d], s63 offen sc1" % (24 + 4 * i, 27 + 4 * i, RC, RC + 3))
        nyoung = 0
        if late:
            sk_loads(); nyoung += 16
        if "qw1" in self.opt:
            self.q_loads(); nyoung += 8
        self.mark(1)
        self.arrive(["s_lshl_b32 s58, s61, 7", "s_add_u32 s60, s58, %d" % (C1 * 128), "v_mov_b32 v7, s60"], vm=nyoung, check_init=15, init_target=NCLR)
        self.mark(2)

    def xch_srd(self, R):
        a = self.a
        a("s_lshl_b32 s58, s2, 2"); a("s_add_u32 s58, s58, s%d" % S_WAVE); a("s_mul_i32 s58, s58, %d" % self.xstr); a("s_add_u32 s58, s58, 0x%x" % WS_XCH)
        a("s_add_u32 s%d, s%d, s58" % (R, P_WS)); a("s_addc_u32 s%d, s%d, 0" % (R + 1, P_WS + 1))
        a("s_and_b32 s%d, s%d, 0xffff" % (R + 1, R + 1)); a("s_mov_b32 s%d, %d" % (R + 2, self.xbytes)); a("s_mov_b32 s%d, 0x00020000" % (R + 3))
    def q_loads(self):
        a = self.a
        self.in_srd(RD, P_Q, 4194304)
        qf = "" if "qnont" in self.opt else "nt"
        a("v_lshlrev_b32 v13, 3, v2")
        for tok in range(2):
            for i in range(4):
                r = 160 + 8 * tok + 2 * i
                a("buffer_load_dwordx2 a[%d:%d], v13, s[%d:%d], s70 offen offset:%d %s" % (r, r + 1, RD, RD + 3, 512 * i + 2048 * tok, qf))

    def conv(self):
        a = self.a
        a("s_add_u32 s58, s68, 0x%x" % WS_XRT)
        a("s_add_u32 s%d, s%d, s58" % (RA, P_WS)); a("s_addc_u32 s%d, s%d, 0" % (RA + 1, P_WS + 1))
        a("s_and_b32 s%d, s%d, 0xffff" % (RA + 1, RA + 1)); a("s_mov_b32 s%d, 4096" % (RA + 2)); a("s_mov_b32 s%d, 0x00020000" % (RA + 3))
        self.ws_srd(RB, WS_YB, 4194304)
        a("v_and_b32 v8, 15, v2"); a("v_lshrrev_b32 v9, 4, v2")
        a("v_and_b32 v3, 3, v8"); a("v_lshrrev_b32 v4, 2, v8")
        a("v_mul_u32_u24 v12, %d, v3" % KCOPY)
        a("v_add_u32 v13, v4, v9"); a("v_lshl_add_u32 v12, v13, 4, v12"); a("v_add_u32 v12, s67, v12")
        a("v_and_b32 v13, 1, v8"); a("v_lshrrev_b32 v14, 1, v8")
        a("v_mul_u32_u24 v15, %d, v13" % XSTR); a("v_lshl_add_u32 v15, v9, 4, v15")
        a("v_lshlrev_b32 v14, 6, v14"); a("v_sub_u32 v15, v15, v14")
        a("s_add_u32 s58, s67, %d" % (XB0 + 64 * 63 - 3584)); a("v_add_u32 v14, s58, v15")
        AD = 60
        a("v_lshlrev_b32 v15, 3, v4"); a("v_lshl_add_u32 v15, v3, 1, v15"); a("v_lshl_add_u32 v15, v9, 3, v15")
        for dd in range(4):
            a("v_cmp_eq_u32 vcc, %d, v15" % (30 - 2 * dd)); a("s_nop 1"); a("v_cndmask_b32 v%d, 0, v200, vcc" % (AD + dd))
        a("v_lshrrev_b32 v4, 4, v2"); a("v_mul_u32_u24 v4, %d, v4" % KCOPY); a("v_and_b32 v5, 15, v2"); a("v_lshl_add_u32 v4, v5, 2, v4")
        a("v_add_u32 v4, s67, v4"); a("v_mov_b32 v5, 0")
        a("ds_write_b32 v4, v5")
        def sk_copies():
            a("s_add_u32 s58, s67, 60"); a("v_add_u32 v3, s58, v11")
            for phi in range(4):
                if phi: a("v_add_u32 v3, %d, v3" % (KCOPY - 4))
                for i in range(8):
                    a("ds_write2st64_b32 v3, v%d, v%d offset0:%d offset1:%d" % (128 + 2 * i, 129 + 2 * i, 2 * i, 2 * i + 1))
        sklate = "sklate" in self.opt
        if not sklate: sk_copies()
        a("s_add_u32 s58, s67, %d" % XB0); a("v_add_u32 v4, s58, v10")
        for r in range(56, 60): a("v_mov_b32 v%d, 0" % r)
        a("s_mov_b64 exec, 0xfffffff")
        a("ds_write_b128 v4, v[56:59] offset:4096"); a("ds_write_b128 v4, v[56:59] offset:%d" % (XSTR + 4096))
        a("s_mov_b64 exec, -1")
        a("v_add_u32 v5, 16, v10")
        a("s_lshr_b32 s58, s65, 4"); a("s_lshl_b32 s58, s58, 7"); a("s_add_u32 s60, s58, %d" % (C1 * 128))
        def c1_shadow():
            self.shadow(self.sh_c1)
            if sklate:
                a("s_waitcnt vmcnt(0)")
                sk_copies()
        self.wait(60, 1, 16, shadow=c1_shadow)
        self.mark(3)
        XD = 16
        for i in range(4):
            a("buffer_load_dwordx4 v[%d:%d], v10, s[%d:%d], 0 offen offset:%d" % (XD + 8 * i, XD + 8 * i + 3, RA, RA + 3, 1024 * i))
        for i in range(4):
            a("buffer_load_dword v%d, v5, s[%d:%d], 0 offen offset:%d" % (XD + 8 * i + 4, RA, RA + 3, 1024 * i))
        for i in range(4):
            d = XD + 8 * i
            a("s_waitcnt vmcnt(%d)" % (7 - i))
            a("ds_write_b128 v4, v[%d:%d] offset:%d" % (d, d + 3, XSTR + 1024 * i))
        for i in range(4):
            d = XD + 8 * i
            a("s_waitcnt vmcnt(%d)" % (3 - i))
            for j in range(4):
                a("v_alignbit_b32 v%d, v%d, v%d, 16" % (48 + j + 4 * (i & 1), d + j + 1, d + j))
            a("ds_write_b128 v4, v[%d:%d] offset:%d" % (48 + 4 * (i & 1), 51 + 4 * (i & 1), 1024 * i))
        a("s_cmp_lt_u32 s%d, 2" % S_WAVE)
        a("s_cselect_b32 s%d, s%d, s%d" % (RC, P_WG, P_WU)); a("s_cselect_b32 s%d, s%d, s%d" % (RC + 1, P_WG + 1, P_WU + 1))
        a("s_and_b32 s%d, s%d, 0xffff" % (RC + 1, RC + 1)); a("s_mov_b32 s%d, %d" % (RC + 2, 1024 * 7168)); a("s_mov_b32 s%d, 0x00020000" % (RC + 3))
        if True:
            a("s_lshl_b32 s58, s2, 2"); a("s_add_u32 s58, s58, s%d" % S_WAVE); a("s_mul_i32 s58, s58, %d" % self.xstr); a("s_add_u32 s58, s58, 0x%x" % WS_XCH)
            a("s_add_u32 s%d, s%d, s58" % (RE, P_WS)); a("s_addc_u32 s%d, s%d, 0" % (RE + 1, P_WS + 1))
            a("s_and_b32 s%d, s%d, 0xffff" % (RE + 1, RE + 1)); a("s_mov_b32 s%d, %d" % (RE + 2, self.xbytes)); a("s_mov_b32 s%d, 0x00020000" % (RE + 3))
            a("s_mov_b32 s59, 0")
        if "hhpf" in self.opt:
            self.ws_srd(RA, WS_HH, 128 * 112 * 1024)
            a("s_lshl_b32 s60, s2, 2"); a("s_add_u32 s60, s60, s%d" % S_WAVE); a("s_mul_i32 s60, s60, 14336"); a("s_add_u32 s61, s60, 6144")
            a("v_lshlrev_b32 v3, 7, v2")
            fl = "nt" if "hhnt" in self.opt else "sc1" if "hhsc1" in self.opt else ""
            a("buffer_load_dword v15, v3, s[%d:%d], s60 offen %s" % (RA, RA + 3, fl))
            a("buffer_load_dword v15, v3, s[%d:%d], s61 offen %s" % (RA, RA + 3, fl))
        a("s_waitcnt lgkmcnt(0)")
        self.mark(4)
        ACC = 192
        def A(s, i): return 64 + 64 * s + 4 * i
        def B(s, i): return 96 + 64 * s + 4 * i
        def reads(s, rho_off):
            out = []
            for i in range(8):
                out.append("ds_read_b128 v[%d:%d], v14 offset:%d" % (B(s, i), B(s, i) + 3, 3584 - 512 * i + rho_off))
                out.append("ds_read_b128 v[%d:%d], v12 offset:%d" % (A(s, i), A(s, i) + 3, 512 * i + rho_off))
            return out
        def mfmas(s):
            out = []
            for m in range(8):
                for (x, y) in [(i, m) for i in range(m + 1)] + [(m, i) for i in range(m)]:
                    if x + y <= 7:
                        t = ACC + 4 * (x + y)
                        out.append("v_mfma_f32_16x16x32_bf16 v[%d:%d], v[%d:%d], v[%d:%d], v[%d:%d]" % (
                            t, t + 3, A(s, x), A(s, x) + 3, B(s, y), B(s, y) + 3, t, t + 3))
            return out
        for r in reads(0, 0): a(r)
        a("s_waitcnt lgkmcnt(0)")
        for tau in range(8):
            t = ACC + 4 * tau
            a("v_mfma_f32_16x16x32_bf16 v[%d:%d], v[%d:%d], v[%d:%d], 0" % (t, t + 3, AD, AD + 3, B(0, tau), B(0, tau) + 3))
        a("s_mov_b32 s58, 4")
        loop = a.new_label("conv"); a.label(loop)
        if "qw1" not in self.opt:
            nq = a.new_label("noq")
            a("s_cmp_lg_u32 s58, 3"); a("s_cbranch_scc1 %s" % nq)
            self.q_loads()
            a.label(nq)
        for half in range(2):
            if "nopf1" not in self.opt:
                a("buffer_load_dword v15, v224, s[%d:%d], 0 offen" % (RC, RC + 3))
                a("v_add_u32 v224, %d, v224" % (64 * 7168))
            rd = reads(1 - half, 64 * (half + 1)); mf = mfmas(half)
            k = 0
            for i, m in enumerate(mf):
                a(m)
                if i % 2 == 0 and k < len(rd): a(rd[k]); k += 1
                if (self.x32 or half == 0) and "x3noclr" not in self.opt and "clrprep" not in self.opt:
                    if i == 33: a("buffer_store_dwordx4 a[%d:%d], v10, s[%d:%d], s59 offen sc1" % (SENT, SENT + 3, RE, RE + 3))
                    if i == 35: a("s_add_u32 s59, s59, 1024")
            a("s_waitcnt lgkmcnt(0)")
        a("v_add_u32 v12, 128, v12"); a("v_add_u32 v14, 128, v14")
        a("s_sub_u32 s58, s58, 1"); a("s_cmp_lg_u32 s58, 0"); a("s_cbranch_scc1 %s" % loop)
        self.mark(5)
        a("s_nop 7")
        for tau in range(8):
            t = ACC + 4 * tau; P = 16 + 8 * (tau & 1)
            a("v_cvt_pk_bf16_f32 v%d, v%d, v%d" % (P, t, t + 2)); a("v_cvt_pk_bf16_f32 v%d, v%d, v%d" % (P + 1, t + 1, t + 3))
            a("s_nop 1")
            a("v_mov_b32_dpp v%d, v%d quad_perm:[1,0,3,2] row_mask:0xf bank_mask:0xf" % (P + 2, P))
            a("v_mov_b32_dpp v%d, v%d quad_perm:[1,0,3,2] row_mask:0xf bank_mask:0xf" % (P + 3, P + 1))
            a("v_perm_b32 v%d, v%d, v%d, v226" % (P + 4, P + 2, P)); a("v_perm_b32 v%d, v%d, v%d, v226" % (P + 5, P + 3, P + 1))
            off = tau * (32 * 64 + 8 * 16)
            a("ds_write_b32 v227, v%d offset:%d" % (P + 4, off)); a("ds_write_b32 v227, v%d offset:%d" % (P + 5, off + 16))
        a("s_waitcnt lgkmcnt(0)")
        a("s_barrier")
        for i in range(4):
            a("ds_read_b128 v[%d:%d], v228 offset:%d" % (16 + 4 * i, 19 + 4 * i, i * (64 * 64 + 16 * 16)))
        for i in range(4):
            a("s_mov_b32 s58, %d" % (i * 64 * 16384))
            a("s_waitcnt lgkmcnt(%d)" % (3 - i))
            a("buffer_store_dwordx4 v[%d:%d], v229, s[%d:%d], s58 offen sc1" % (16 + 4 * i, 19 + 4 * i, RB, RB + 3))
        self.arrive(["s_and_b32 s58, s2, 15", "s_lshl_b32 s58, s58, 7", "s_add_u32 s60, s58, %d" % (C2 * 128),
                     "v_lshlrev_b32 v7, 11, v2", "v_add_u32 v7, s60, v7"], nlanes=16)
        self.mark(6)

    def shadow(self, parts):
        a = self.a
        T = 104
        if "roles" in parts:
            a("s_and_b32 s83, s%d, 7" % S_J); a("s_lshr_b32 s59, s%d, 3" % S_J)
            a("s_lshl_b32 s72, s%d, 2" % S_X); a("s_add_u32 s72, s72, s59")
            a("s_lshl_b32 s73, s83, 4"); a("s_lshl_b32 s59, s%d, 2" % S_WAVE); a("s_add_u32 s73, s73, s59")
            a("s_mul_i32 s74, s%d, 7168" % S_WAVE)
            a("s_mov_b32 s75, 0"); a("s_mov_b32 s76, 0"); a("s_mov_b32 s77, 0"); a("s_mov_b32 s78, 0")
            a("s_and_b32 s86, s%d, 1" % S_X)
            a("s_bfe_u32 s58, s%d, 0x10001" % S_X); a("s_lshl_b32 s58, s58, 3"); a("s_and_b32 s59, s%d, 7" % S_J); a("s_add_u32 s84, s58, s59")
            a("s_lshr_b32 s58, s%d, 2" % S_X); a("s_lshl_b32 s58, s58, 2"); a("s_lshr_b32 s59, s%d, 3" % S_J); a("s_add_u32 s85, s58, s59")
            a("s_lshl_b32 s87, s84, 3"); a("s_lshl_b32 s58, s%d, 1" % S_WAVE); a("s_add_u32 s87, s87, s58")
        if "g1" in parts:
            a("s_and_b32 s58, s%d, 1" % S_WAVE); a("s_lshl_b32 s58, s58, 5")
            a("s_mul_i32 s59, s72, 224")
            a("s_mov_b32 s62, 4682"); a("s_mov_b32 s63, 7168")
            a("s_and_b32 s101, s72, 1"); a("s_lshl_b32 s101, s101, 1")
            for i in range(7):
                a("v_add_u32 v%d, %d, v2" % (T, 64 * i))
                a("v_mul_u32_u24 v%d, s62, v%d" % (T + 1, T)); a("v_lshrrev_b32 v%d, 16, v%d" % (T + 1, T + 1))
                a("v_mul_u32_u24 v%d, 14, v%d" % (T + 2, T + 1)); a("v_sub_u32 v%d, v%d, v%d" % (T + 2, T, T + 2))
                a("v_add_u32 v%d, s101, v%d" % (T + 2, T + 2)); a("v_subrev_u32 v%d, 14, v%d" % (T + 4, T + 2)); a("v_min_u32 v%d, v%d, v%d" % (T + 2, T + 2, T + 4))
                a("v_bfe_u32 v%d, v%d, 2, 2" % (T + 3, T + 1)); a("v_lshlrev_b32 v%d, 3, v%d" % (T + 3, T + 3))
                a("v_lshrrev_b32 v%d, 4, v%d" % (T + 4, T + 1)); a("v_lshl_add_u32 v%d, v%d, 2, v%d" % (T + 3, T + 4, T + 3))
                a("v_and_b32 v%d, 3, v%d" % (T + 4, T + 1)); a("v_add3_u32 v%d, v%d, v%d, s58" % (T + 3, T + 3, T + 4))
                a("v_mul_u32_u24 v%d, s63, v%d" % (T + 3, T + 3))
                a("v_lshl_add_u32 v%d, v%d, 4, v%d" % (T + 3, T + 2, T + 3))
                a("v_add_u32 v%d, s59, v%d" % (T + 3, T + 3))
                if i & 3: a("v_subrev_u32 v%d, %d, v%d" % (T + 3, 1024 * (i & 3), T + 3))
                self.stash("g1w%d" % i, T + 3)
            a("v_lshlrev_b32 v%d, 4, v2" % T)
            a("s_lshl_b32 s58, s73, 15"); a("v_add_u32 v%d, s58, v%d" % (T + 1, T)); self.stash("g1t", T + 1)
            a("v_lshrrev_b32 v%d, 2, v2" % (T + 1)); a("v_mul_u32_u24 v%d, 224, v%d" % (T + 1, T + 1))
            a("v_and_b32 v%d, 3, v2" % (T + 2)); a("v_lshl_add_u32 v%d, v%d, 3, v%d" % (T + 1, T + 2, T + 1)); self.stash("g1f", T + 1)
            a("v_and_b32 v%d, 15, v2" % (T + 1)); a("v_lshlrev_b32 v%d, 4, v%d" % (T + 1, T + 1)); a("v_lshrrev_b32 v%d, 5, v2" % (T + 2))
            a("v_lshl_add_u32 v%d, v%d, 8, v%d" % (T + 1, T + 2, T + 1)); a("v_bfe_u32 v%d, v2, 4, 1" % (T + 2))
            a("v_lshl_add_u32 v%d, v%d, 9, v%d" % (T + 3, T + 2, T + 1)); self.stash("g1ep", T + 3)
            a("v_mul_u32_u24 v%d, %d, v%d" % (T + 2, 112 * 1024, T + 2)); a("v_add_u32 v%d, v%d, v%d" % (T + 3, T + 2, T + 1)); self.stash("g1es", T + 3)
        if "g2" in parts:
            a("s_mul_i32 s58, s86, 1792"); a("s_lshr_b32 s59, s%d, 1" % S_WAVE); a("s_mul_i32 s59, s59, %d" % (32 if "x2nat" in self.opt else 224)); a("s_add_u32 s58, s58, s59")
            a("s_lshl_b32 s58, s58, 11")
            a("s_lshl_b32 s59, s85, 8"); a("s_add_u32 s58, s58, s59")
            a("s_and_b32 s59, s%d, 1" % S_WAVE); a("s_xor_b32 s59, s59, s86"); a("s_lshl_b32 s59, s59, 7"); a("s_add_u32 s58, s58, s59")
            a("v_lshrrev_b32 v%d, 5, v2" % T); a("v_lshlrev_b32 v%d, 3, v%d" % (T, T)); a("v_bfe_u32 v%d, v2, 3, 2" % (T + 1))
            a("v_add_u32 v%d, v%d, v%d" % (T, T, T + 1)); a("v_lshlrev_b32 v%d, 11, v%d" % (T, T))
            a("v_bfe_u32 v%d, v2, 4, 2" % (T + 1)); a("v_lshlrev_b32 v%d, 1, v%d" % (T + 1, T + 1)); a("v_and_b32 v%d, 7, v2" % (T + 2))
            a("v_xor_b32 v%d, v%d, v%d" % (T + 1, T + 1, T + 2))
            a("v_lshl_add_u32 v%d, v%d, 4, v%d" % (T, T + 1, T)); a("v_add_u32 v%d, s58, v%d" % (T, T)); self.stash("g2w", T)
            a("v_lshrrev_b32 v%d, 2, v2" % T); a("v_lshlrev_b32 v%d, 7, v%d" % (T, T))
            a("v_and_b32 v%d, 3, v2" % (T + 1)); a("v_lshl_add_u32 v%d, v%d, 3, v%d" % (T, T + 1, T))
            a("v_bfe_u32 v%d, v2, 3, 2" % (T + 1))
            for c in range(4):
                a("v_xor_b32 v%d, %d, v%d" % (T + 2, c, T + 1)); a("v_lshl_add_u32 v%d, v%d, 5, v%d" % (T + 2, T + 2, T)); self.stash("g2f%d" % c, T + 2)
            a("s_lshl_b32 s88, s%d, 12" % S_WAVE)
            a("v_lshlrev_b32 v%d, 4, v2" % T)
            a("s_mul_i32 s58, s87, %d" % (112 * 1024)); a("s_mul_i32 s59, s86, %d" % (56 * 1024)); a("s_add_u32 s58, s58, s59")
            a("v_add_u32 v%d, s58, v%d" % (T + 1, T)); self.stash("g2t0", T + 1)
            a("v_add_u32 v%d, %d, v%d" % (T + 1, 112 * 1024, T + 1)); self.stash("g2t1", T + 1)
            a("s_lshl_b32 s58, s87, 15"); a("s_lshl_b32 s59, s85, 8"); a("s_add_u32 s58, s58, s59"); a("s_lshl_b32 s59, s86, 7"); a("s_add_u32 s58, s58, s59")
            a("v_and_b32 v%d, 15, v2" % T); a("v_lshlrev_b32 v%d, 11, v%d" % (T, T))
            a("v_bfe_u32 v%d, v2, 4, 1" % (T + 1)); a("v_lshl_add_u32 v%d, v%d, 5, v%d" % (T, T + 1, T))
            a("v_lshrrev_b32 v%d, 5, v2" % (T + 1)); a("v_lshl_add_u32 v%d, v%d, 4, v%d" % (T, T + 1, T))
            a("v_add_u32 v%d, s58, v%d" % (T, T)); self.stash("g2o4", T)
            a("v_lshrrev_b32 v%d, 2, v2" % T); a("v_lshrrev_b32 v%d, 1, v%d" % (T + 1, T)); a("v_and_b32 v%d, 1, v%d" % (T, T))
            a("v_lshl_add_u32 v%d, v%d, 2, v%d" % (T, T, T + 1))
            if "rot2" in self.opt:
                a("s_lshr_b32 s58, s%d, 3" % S_J); a("s_add_u32 s58, s58, s%d" % S_J); a("v_add_u32 v%d, s58, v2" % (T + 1)); a("v_and_b32 v%d, 3, v%d" % (T + 1, T + 1))
            elif "rot2b" in self.opt:
                a("v_add_u32 v%d, s%d, v2" % (T + 1, S_J)); a("v_and_b32 v%d, 3, v%d" % (T + 1, T + 1))
            elif "rot2c" in self.opt:
                a("s_lshr_b32 s58, s%d, 3" % S_J); a("v_add_u32 v%d, s58, v2" % (T + 1)); a("v_and_b32 v%d, 3, v%d" % (T + 1, T + 1))
            else:
                a("v_and_b32 v%d, 3, v2" % (T + 1))
            a("v_mad_u32_u24 v%d, v%d, 14, v%d" % (T, T + 1, T))
            if "x2nat" in self.opt: a("v_lshlrev_b32 v%d, 1, v2" % T)
            a("v_lshlrev_b32 v%d, 16, v%d" % (T, T)); self.stash("g2tab", T)
            for t in range(4): a("v_readlane_b32 s%d, v%d, %d" % (G2_ROW[t], T, t))
            a("s_lshl_b32 s58, s83, 1"); a("s_lshr_b32 s59, s72, 4"); a("s_add_u32 s58, s58, s59"); a("s_lshl_b32 s58, s58, 2"); a("s_add_u32 s58, s58, s%d" % S_WAVE)
            a("s_lshl_b32 s58, s58, 8"); a("s_add_u32 s58, s58, %d" % (C4 * 128))
            a("v_lshlrev_b32 v%d, 7, v2" % T); a("v_add_u32 v%d, s58, v%d" % (T, T)); a("v_mov_b32 v%d, 0x7fffff00" % (T + 1))
            a("v_cmp_gt_u32 vcc, 2, v2"); a("s_nop 1"); a("v_cndmask_b32 v%d, v%d, v%d, vcc" % (T, T + 1, T)); self.stash("c4a", T)
            a("s_lshr_b32 s58, s84, 1"); a("s_lshl_b32 s58, s58, 1"); a("s_add_u32 s58, s58, s86"); a("s_lshl_b32 s58, s58, 2")
            a("s_and_b32 s59, s84, 1"); a("s_lshl_b32 s59, s59, 1"); a("s_add_u32 s58, s58, s59"); a("s_lshr_b32 s59, s%d, 1" % S_WAVE); a("s_add_u32 s58, s58, s59")
            a("s_lshl_b32 s58, s58, 1"); a("s_lshr_b32 s59, s%d, 2" % S_X); a("s_add_u32 s58, s58, s59"); a("s_lshl_b32 s58, s58, 7"); a("s_add_u32 s58, s58, %d" % (C4 * 128))
            a("v_mov_b32 v%d, s58" % T); self.stash("c4p", T)
        if "pf" in parts:
            a("v_mov_b32 v%d, 0x7fffffff" % (T + 3))
            a("s_lshl_b32 s58, s%d, 1" % S_J); a("s_and_b32 s59, s%d, 1" % S_WAVE); a("s_add_u32 s58, s58, s59")
            a("s_mul_i32 s62, s58, 7168"); a("s_mul_i32 s59, s%d, 896" % S_X); a("s_add_u32 s62, s62, s59")
            a("v_lshlrev_b32 v%d, 7, v2" % T); a("v_add_u32 v%d, s62, v%d" % (T + 1, T))
            a("v_cmp_gt_u32 vcc, 7, v2"); a("s_nop 1"); a("v_cndmask_b32 v224, v%d, v%d, vcc" % (T + 3, T + 1))
            if self.pffast:
                a("s_and_b32 s58, s%d, 7" % S_J); a("s_lshr_b32 s62, s%d, 4" % S_J); a("s_lshl_b32 s62, s62, 3"); a("s_add_u32 s100, s58, s62")
                a("s_lshl_b32 s58, s100, 1"); a("s_and_b32 s62, s%d, 1" % S_WAVE); a("s_add_u32 s58, s58, s62")
            a("s_lshl_b32 s58, s58, 2"); a("s_add_u32 s58, s58, 512"); a("s_mul_i32 s58, s58, 7168"); a("s_add_u32 s58, s58, s59")
            a("s_mov_b32 s62, 9363")
            a("v_mul_u32_u24 v%d, s62, v2" % T); a("v_lshrrev_b32 v%d, 16, v%d" % (T, T))
            a("v_mul_u32_u24 v%d, 7, v%d" % (T + 1, T)); a("v_sub_u32 v%d, v2, v%d" % (T + 1, T + 1))
            a("v_mul_u32_u24 v%d, 7168, v%d" % (T, T)); a("v_lshl_add_u32 v%d, v%d, 7, v%d" % (T, T + 1, T)); a("v_add_u32 v%d, s58, v%d" % (T, T))
            a("v_cmp_gt_u32 vcc, 28, v2"); a("s_nop 1"); a("v_cndmask_b32 v%d, v%d, v%d, vcc" % (T, T + 3, T)); self.stash("pfw", T)
            a("s_lshl_b32 s58, s%d, 2" % (100 if self.pffast else S_J)); a("s_add_u32 s58, s58, s%d" % S_WAVE); a("s_mul_i32 s58, s58, 5"); a("s_add_u32 s58, s58, 1152")
            a("s_mul_i32 s59, s86, 1792"); a("s_add_u32 s58, s58, s59"); a("s_lshl_b32 s58, s58, 11")
            a("s_lshr_b32 s59, s85, 2"); a("s_lshl_b32 s59, s59, 10"); a("s_add_u32 s58, s58, s59")
            a("v_lshrrev_b32 v%d, 3, v2" % T); a("v_lshlrev_b32 v%d, 11, v%d" % (T, T)); a("v_and_b32 v%d, 7, v2" % (T + 1))
            a("v_lshl_add_u32 v%d, v%d, 7, v%d" % (T, T + 1, T)); a("v_add_u32 v%d, s58, v%d" % (T, T))
            a("v_cmp_gt_u32 vcc, 40, v2"); a("s_nop 1"); a("v_cndmask_b32 v%d, v%d, v%d, vcc" % (T, T + 3, T)); self.stash("pfd", T)
            if self.pffast:
                a("s_and_b32 s92, s%d, 1" % S_J)
                a("s_lshr_b32 s58, s%d, 3" % S_J); a("s_add_u32 s58, s58, 1"); a("s_and_b32 s58, s58, 2"); a("s_or_b32 s92, s92, s58")
            else:
                a("s_and_b32 s92, s%d, 3" % S_J)
        if "ln" in parts:
            a("v_and_b32 v%d, 1, v2" % T); a("v_lshrrev_b32 v%d, 1, v2" % (T + 1))
            a("v_lshlrev_b32 v%d, 11, v%d" % (T + 2, T)); a("v_lshl_add_u32 v%d, v%d, 4, v%d" % (T + 2, T + 1, T + 2)); self.stash("lnh", T + 2)
            a("s_lshl_b32 s58, s%d, 4" % S_WAVE); a("s_add_u32 s58, s58, %d" % PSTG)
            a("v_lshlrev_b32 v%d, 6, v2" % (T + 2)); a("v_add_u32 v%d, s58, v%d" % (T + 2, T + 2)); self.stash("lny", T + 2)
            a("s_lshl_b32 s58, s%d, 5" % S_WAVE); a("s_add_u32 s58, s58, %d" % CSTG)
            a("v_lshlrev_b32 v%d, 7, v%d" % (T + 2, T + 1)); a("v_lshl_add_u32 v%d, v%d, 4, v%d" % (T + 2, T, T + 2)); a("v_add_u32 v%d, s58, v%d" % (T + 2, T + 2))
            self.stash("lnw", T + 2)
            a("v_lshlrev_b32 v%d, 4, v0" % (T + 2)); a("v_add_u32 v%d, %d, v%d" % (T + 2, CSTG, T + 2)); self.stash("lnr", T + 2)
            a("v_lshrrev_b32 v%d, 5, v0" % (T + 2)); a("v_lshlrev_b32 v%d, 10, v%d" % (T + 2, T + 2))
            a("v_bfe_u32 v%d, v0, 3, 2" % (T + 3)); a("v_lshl_add_u32 v%d, v%d, 8, v%d" % (T + 2, T + 3, T + 2))
            a("v_and_b32 v%d, 7, v0" % (T + 3)); a("v_lshl_add_u32 v%d, v%d, 4, v%d" % (T + 2, T + 3, T + 2)); self.stash("lng", T + 2)
        if "cv" in parts:
            a("v_and_b32 v%d, 1, v2" % T)
            a("v_mov_b32 v226, 0x05040100"); a("v_mov_b32 v%d, 0x03020706" % (T + 1))
            a("v_cmp_eq_u32 vcc, 1, v%d" % T); a("s_nop 1"); a("v_cndmask_b32 v226, v226, v%d, vcc" % (T + 1))
            a("v_bfe_u32 v%d, v2, 1, 3" % (T + 1)); a("v_lshrrev_b32 v%d, 4, v2" % (T + 2))
            a("v_mul_u32_u24 v227, 272, v%d" % (T + 1)); a("v_lshl_add_u32 v227, v%d, 6, v227" % (T + 2)); a("v_lshl_add_u32 v227, v%d, 5, v227" % T)
            a("s_lshl_b32 s58, s%d, 2" % S_WAVE); a("s_add_u32 s58, s58, %d" % CSTG); a("v_add_u32 v227, s58, v227")
            a("v_lshrrev_b32 v%d, 2, v0" % T); a("v_and_b32 v%d, 3, v0" % (T + 1)); a("v_lshrrev_b32 v%d, 4, v0" % (T + 2))
            a("v_lshlrev_b32 v228, 6, v%d" % T); a("v_lshl_add_u32 v228, v%d, 4, v228" % (T + 2)); a("v_lshl_add_u32 v228, v%d, 4, v228" % (T + 1))
            a("v_add_u32 v228, %d, v228" % CSTG)
            a("v_lshlrev_b32 v229, 14, v%d" % T); a("v_lshl_add_u32 v229, v%d, 4, v229" % (T + 1)); a("s_lshl_b32 s58, s65, 6"); a("v_add_u32 v229, s58, v229")

    def g1_setup(self):
        a = self.a
        a("s_cmp_lt_u32 s%d, 2" % S_WAVE)
        a("s_cselect_b32 s%d, s%d, s%d" % (RA, P_WG, P_WU)); a("s_cselect_b32 s%d, s%d, s%d" % (RA + 1, P_WG + 1, P_WU + 1))
        a("s_and_b32 s%d, s%d, 0xffff" % (RA + 1, RA + 1)); a("s_mov_b32 s%d, %d" % (RA + 2, 1024 * 7168)); a("s_mov_b32 s%d, 0x00020000" % (RA + 3))
        for i in range(7): self.unstash("g1w%d" % i, 8 + i)
        self.in_srd(RE, P_WD, 3584 * 2048)
    def g1_wload_list(self):
        L = []
        for st in range(3):
            L.append("s_add_u32 m0, s75, s74")
            for i in range(7):
                if i == 4: L.append("s_add_u32 m0, m0, 4096")
                L.append(self.g1_dma(i))
            L.append("s_add_u32 s77, s77, %d" % (64 * 7168)); L.append("s_add_u32 s75, s75, %d" % G1_STAGE)
        return L
    def merged(self, body, fillers, start=0):
        keep = self.a; tmp = Asm(); tmp.uid = keep.uid + 1000; self.a = tmp
        body()
        self.a = keep; keep.uid = tmp.uid
        lines = tmp.lines
        n = max(1, (len(lines) - start) // (len(fillers) + 1))
        k = 0
        for i, l in enumerate(lines):
            keep.lines.append(l)
            if i >= start and (i - start) % n == n - 1 and k < len(fillers): keep(fillers[k]); k += 1
        for x in fillers[k:]: keep("s_nop 0"); keep(x)
    def g1_dma(self, i):
        fl = "nt" if "g1nt" in self.opt else "sc1" if "g1sc1" in self.opt else ""
        return "buffer_load_dwordx4 v%d, s[%d:%d], s77 offen offset:%d %s lds" % (8 + i, RA, RA + 3, 1024 * (i & 3), fl)
    def g1_wload_all(self):
        a = self.a
        a("s_add_u32 m0, s75, s74"); a("s_nop 0")
        for i in range(7):
            if i == 4: a("s_add_u32 m0, m0, 4096"); a("s_nop 0")
            a(self.g1_dma(i))
        a("s_add_u32 s77, s77, %d" % (64 * 7168)); a("s_add_u32 s75, s75, %d" % G1_STAGE)

    def reduce4(self, regs, sdst):
        a = self.a
        def step(mod):
            for r in regs: a("v_add_f32_dpp v%d, v%d, v%d %s" % (r, r, r, mod))
        a("s_nop 1")
        step("quad_perm:[1,0,3,2] row_mask:0xf bank_mask:0xf"); step("quad_perm:[2,3,0,1] row_mask:0xf bank_mask:0xf")
        step("row_half_mirror row_mask:0xf bank_mask:0xf"); step("row_mirror row_mask:0xf bank_mask:0xf")
        step("row_bcast:15 row_mask:0xa bank_mask:0xf"); step("row_bcast:31 row_mask:0xc bank_mask:0xf")
        a("s_nop 0")
        for r, s in zip(regs, sdst): a("v_readlane_b32 s%d, v%d, 63" % (s, r))
    def ln_scalars(self, sS, T):
        a = self.a
        t0, t1, t2, t3, t4, t5 = T + 8, T + 9, T + 10, T + 11, T + 12, T + 13
        M = S_MASK
        a("s_nop 1")
        a("v_mul_f32 v%d, s%d, v%d" % (t0, sS[0], T + 14)); a("v_mul_f32 v%d, s%d, v%d" % (t1, sS[2], T + 14))
        a("v_mul_f32 v%d, s%d, v%d" % (t2, sS[1], T + 14)); a("v_mul_f32 v%d, s%d, v%d" % (t3, sS[3], T + 14))
        a("v_fma_f32 v%d, -v%d, v%d, v%d" % (t2, t0, t0, t2)); a("v_fma_f32 v%d, -v%d, v%d, v%d" % (t3, t1, t1, t3))
        a("v_max_f32 v%d, 0, v%d" % (t2, t2)); a("v_max_f32 v%d, 0, v%d" % (t3, t3))
        a("v_cvt_pk_bf16_f32 v%d, v%d, v%d" % (t4, t0, t1)); a("v_cvt_pk_bf16_f32 v%d, v%d, v%d" % (t5, t2, t3))
        a("v_lshlrev_b32 v%d, 16, v%d" % (t0, t4)); a("v_and_b32 v%d, s%d, v%d" % (t1, M, t4))
        a("v_lshlrev_b32 v%d, 16, v%d" % (t2, t5)); a("v_and_b32 v%d, s%d, v%d" % (t3, M, t5))
        a("v_add_f32 v%d, s%d, v%d" % (t2, S_EPS, t2)); a("v_add_f32 v%d, s%d, v%d" % (t3, S_EPS, t3))
        a("v_cvt_pk_bf16_f32 v%d, v%d, v%d" % (t5, t2, t3))
        a("v_lshlrev_b32 v%d, 16, v%d" % (t2, t5)); a("v_and_b32 v%d, s%d, v%d" % (t3, M, t5))
        a("v_sqrt_f32 v%d, v%d" % (t2, t2)); a("v_sqrt_f32 v%d, v%d" % (t3, t3)); a("s_nop 0")
        a("v_cvt_pk_bf16_f32 v%d, v%d, v%d" % (t5, t2, t3))
        a("v_lshlrev_b32 v%d, 16, v%d" % (t2, t5)); a("v_and_b32 v%d, s%d, v%d" % (t3, M, t5))
        a("v_rcp_f32 v%d, v%d" % (T + 0, t2)); a("v_rcp_f32 v%d, v%d" % (T + 4, t3)); a("s_nop 0")
        a("v_mul_f32 v%d, v%d, v%d" % (T + 2, t0, T + 0)); a("v_mul_f32 v%d, v%d, v%d" % (T + 6, t1, T + 4))
        a("v_sub_f32 v%d, 0, v%d" % (T + 2, T + 2)); a("v_sub_f32 v%d, 0, v%d" % (T + 6, T + 6))
    def stats(self, X, acc):
        a = self.a
        for tok in range(2):
            b = X + 16 * tok; S = acc + 4 * tok; Q = S + 2
            a("v_pk_add_f32 v[%d:%d], v[%d:%d], v[%d:%d]" % (S, S + 1, b, b + 1, b + 2, b + 3))
            a("v_pk_mul_f32 v[%d:%d], v[%d:%d], v[%d:%d]" % (Q, Q + 1, b, b + 1, b, b + 1))
        for p in range(1, 8):
            for tok in range(2):
                b = X + 16 * tok + 2 * p; S = acc + 4 * tok; Q = S + 2
                if p >= 2: a("v_pk_add_f32 v[%d:%d], v[%d:%d], v[%d:%d]" % (S, S + 1, S, S + 1, b, b + 1))
                a("v_pk_fma_f32 v[%d:%d], v[%d:%d], v[%d:%d], v[%d:%d]" % (Q, Q + 1, b, b + 1, b, b + 1, Q, Q + 1))
        for r in (0, 2, 4, 6): a("v_add_f32 v%d, v%d, v%d" % (acc + r, acc + r, acc + r + 1))
    def ln(self):
        a = self.a
        M = S_MASK
        X, L1, Y, YR, HP, ACC, T = 32, 64, 96, 128, 144, 160, 168
        LP, U = 128, 96
        def ln1():
            a = self.a
            a("v_mov_b32 v%d, 0x3a800000" % (T + 14))
            for tok in range(2):
                for p in range(8):
                    dst = X + 16 * tok + 2 * p
                    a("v_accvgpr_read_b32 v3, a%d" % (160 + 8 * tok + p))
                    a("v_lshlrev_b32 v%d, 16, v3" % dst); a("v_and_b32 v%d, s%d, v3" % (dst + 1, M))
            self.stats(X, ACC)
            self.reduce4([ACC, ACC + 2, ACC + 4, ACC + 6], [60, 61, 62, 63])
            self.ln_scalars([60, 61, 62, 63], T)
            for tok in range(2):
                r, c = T + 4 * tok, T + 4 * tok + 2
                for p in range(8):
                    x = X + 16 * tok + 2 * p; l = L1 + 16 * tok + 2 * p
                    a("v_pk_fma_f32 v[%d:%d], v[%d:%d], v[%d:%d], v[%d:%d] op_sel_hi:[1,0,0]" % (l, l + 1, x, x + 1, r, r + 1, c, c + 1))
        self.merged(ln1, self.g1_wload_list())
        self.ws_srd(RB, WS_YB, 4194304); self.ws_srd(RC, WS_H, 4194304); self.ws_srd(RD, WS_LN2, 4194304)
        a("v_lshlrev_b32 v24, 4, v2")
        self.unstash("lnh", 4); self.unstash("lny", 5); self.unstash("lnw", 16); self.unstash("lnr", 17); self.unstash("lng", 18)
        a("s_lshl_b32 s61, s%d, 12" % S_WAVE); a("s_lshl_b32 s62, s2, 14"); a("s_add_u32 s62, s62, s61")
        a("s_add_u32 s61, s61, %d" % PSTG)
        a("s_and_b32 s60, s2, 15"); a("s_lshl_b32 s60, s60, 11"); a("s_add_u32 s60, s60, %d" % (C2 * 128))
        self.mark(7)
        self.wait(60, 16, 16)
        self.mark(8)
        a("s_mov_b32 m0, s61"); a("s_nop 0")
        for i in range(4):
            a("buffer_load_dwordx4 v24, s[%d:%d], s62 offen offset:%d lds" % (RB, RB + 3, 1024 * i))
        a("s_waitcnt vmcnt(0)")
        a("s_barrier")
        for i in range(4):
            a("ds_read_b128 v[%d:%d], v5 offset:%d" % (YR + 4 * i, YR + 4 * i + 3, 4096 * i))
        for i in range(4):
            a("s_waitcnt lgkmcnt(%d)" % (3 - i))
            for c in range(4):
                a("v_lshlrev_b32 v%d, 16, v%d" % (Y + 4 * i + c, YR + 4 * i + c)); a("v_and_b32 v%d, s%d, v%d" % (Y + 16 + 4 * i + c, M, YR + 4 * i + c))
        for tok in range(2):
            for p in range(8):
                x = X + 16 * tok + 2 * p; y = Y + 16 * tok + 2 * p; l = L1 + 16 * tok + 2 * p
                a("v_pk_fma_f32 v[%d:%d], v[%d:%d], v[%d:%d], v[%d:%d]" % (l, l + 1, l, l + 1, y, y + 1, x, x + 1))
                a("v_cvt_pk_bf16_f32 v%d, v%d, v%d" % (HP + 8 * tok + p, l, l + 1))
        HU = 184
        a("s_mov_b32 vcc_lo, 0x55555555"); a("s_mov_b32 vcc_hi, 0x55555555"); a("s_nop 1")
        for i in range(4):
            for d in range(2):
                a("v_cndmask_b32_dpp v%d, v%d, v%d, vcc quad_perm:[1,0,3,2] row_mask:0xf bank_mask:0xf" % (HU + 4 * i + d, HP + 8 + 2 * i + d, HP + 2 * i + d))
        a("s_mov_b32 vcc_lo, 0xaaaaaaaa"); a("s_mov_b32 vcc_hi, 0xaaaaaaaa"); a("s_nop 1")
        for i in range(4):
            for d in range(2):
                a("v_cndmask_b32_dpp v%d, v%d, v%d, vcc quad_perm:[1,0,3,2] row_mask:0xf bank_mask:0xf" % (HU + 4 * i + 2 + d, HP + 2 * i + d, HP + 8 + 2 * i + d))
        for i in range(4):
            if "x3noh" in self.opt: continue
            a("buffer_store_dwordx4 v[%d:%d], v4, s[%d:%d], s70 offen offset:%d sc1" % (HU + 4 * i, HU + 4 * i + 3, RC, RC + 3, 512 * i))
        for tok in range(2):
            for p in range(8):
                src = HP + 8 * tok + p; dst = X + 16 * tok + 2 * p
                a("v_lshlrev_b32 v%d, 16, v%d" % (dst, src)); a("v_and_b32 v%d, s%d, v%d" % (dst + 1, M, src))
        self.stats(X, ACC)
        self.reduce4([ACC, ACC + 2, ACC + 4, ACC + 6], [60, 61, 62, 63])
        self.ln_scalars([60, 61, 62, 63], T)
        for tok in range(2):
            r, c = T + 4 * tok, T + 4 * tok + 2
            for p in range(8):
                x = X + 16 * tok + 2 * p
                a("v_pk_fma_f32 v[%d:%d], v[%d:%d], v[%d:%d], v[%d:%d] op_sel_hi:[1,0,0]" % (ACC, ACC + 1, x, x + 1, r, r + 1, c, c + 1))
                a("v_cvt_pk_bf16_f32 v%d, v%d, v%d" % (LP + 8 * tok + p, ACC, ACC + 1))
        a("s_mov_b32 vcc_lo, 0x55555555"); a("s_mov_b32 vcc_hi, 0x55555555"); a("s_nop 1")
        for i in range(4):
            for d in range(2):
                a("v_cndmask_b32_dpp v%d, v%d, v%d, vcc quad_perm:[1,0,3,2] row_mask:0xf bank_mask:0xf" % (U + 4 * i + d, LP + 8 + 2 * i + d, LP + 2 * i + d))
        a("s_mov_b32 vcc_lo, 0xaaaaaaaa"); a("s_mov_b32 vcc_hi, 0xaaaaaaaa"); a("s_nop 1")
        for i in range(4):
            for d in range(2):
                a("v_cndmask_b32_dpp v%d, v%d, v%d, vcc quad_perm:[1,0,3,2] row_mask:0xf bank_mask:0xf" % (U + 4 * i + 2 + d, LP + 2 * i + d, LP + 8 + 2 * i + d))
        for i in range(4):
            a("ds_write_b128 v16, v[%d:%d] offset:%d" % (U + 4 * i, U + 4 * i + 3, 4096 * i))
        a("s_lshr_b32 s58, s2, 1"); a("s_lshl_b32 s58, s58, 15"); a("s_and_b32 s59, s2, 1"); a("s_lshl_b32 s59, s59, 7"); a("s_add_u32 s58, s58, s59")
        a("s_waitcnt lgkmcnt(0)")
        a("s_barrier")
        for i in range(4):
            a("ds_read_b128 v[%d:%d], v17 offset:%d" % (LP + 4 * i, LP + 4 * i + 3, 4096 * i))
        for i in range(4):
            a("s_add_u32 s59, s58, %d" % (8192 * i))
            a("s_waitcnt lgkmcnt(%d)" % (3 - i))
            a("buffer_store_dwordx4 v[%d:%d], v18, s[%d:%d], s59 offen sc1" % (LP + 4 * i, LP + 4 * i + 3, RD, RD + 3))
        self.mark(9)
        self.unstash("g1t", 20); self.unstash("g1f", 15)
        self.unstash("pfd", 30); self.unstash("pfw", 31)
        for tt in range(1, 4): a("v_add_u32 v%d, %d, v20" % (20 + tt, 32768 * tt))
        self.arrive(["s_lshr_b32 s58, s2, 5", "s_lshl_b32 s58, s58, 4", "s_and_b32 s59, s2, 1", "s_add_u32 s58, s58, s59", "s_lshl_b32 s58, s58, 7",
                     "s_add_u32 s60, s58, %d" % (C3 * 128), "v_lshlrev_b32 v7, 8, v2", "v_add_u32 v7, s60, v7"], nlanes=8)
        self.mark(10)

    def g2_dma(self, i, soff):
        fl = "nt" if "g2nt" in self.opt else "sc1" if "g2sc1" in self.opt else ""
        return "buffer_load_dwordx4 v%d, s[%d:%d], s%d offen offset:%d %s lds" % (8 + i, RE, RE + 3, soff, 1024 * i, fl)
    def g2_voffs(self):
        return ["v_add_u32 v%d, %d, v25" % (8 + i, 2048 * (16 * (i & 1) + 4 * (i >> 1)) - 1024 * i) for i in range(4)]

    def gemm1(self):
        a = self.a
        ACC, TOK, WF, PD = 32, 0, 128, 5
        def acc(ct, tt): return ACC + (ct * 4 + tt) * 4
        def wreg(F): return WF + 4 * (F % 7)
        def lreg(F):
            return 4 * F if F < 16 else 160 + 4 * (F - 16) if F < 20 else 204 + 4 * (F - 20)
        def foff(F, jh):
            kk, ct = F // 14, F % 14
            return (ct // 7) * 14336 + kk * 7168 + jh * 3584 + (ct % 7) * 32
        def tokload(slot, j):
            kk, tt = j >> 2, j & 3
            r = TOK + 32 * slot + 16 * kk + 4 * tt
            fl = "nt" if "g1tnt" in self.opt else "" if "g1tpl" in self.opt else "sc1"
            return "buffer_load_dwordx4 a[%d:%d], v%d, s[%d:%d], s78 offen offset:%d %s" % (r, r + 3, 20 + tt, RD, RD + 3, 1024 * kk, fl)
        def mfma(c, w, t): return "v_mfma_f32_16x16x32_bf16 v[%d:%d], a[%d:%d], a[%d:%d], v[%d:%d]" % (c, c + 3, w, w + 3, t, t + 3, c, c + 3)
        def dsr(q, tag, reg, addr, off):
            return lambda: (q.issue(tag), "ds_read_b64_tr_b16 a[%d:%d], v%d offset:%d" % (reg, reg + 1, addr, off))[1]
        def emit(x):
            if callable(x): x = x()
            if x: a(x)
        pf = "nopf2" not in self.opt
        npf = 2 if pf else 0
        def pfops():
            return ["buffer_load_dword v7, v30, s[%d:%d], 0 offen" % (RE, RE + 3), "buffer_load_dword v7, v31, s[%d:%d], 0 offen" % (RC, RC + 3)]
        def pfturn(u):
            return ["s_cmp_eq_u32 s92, %d" % (((u + 1) & 1) if self.pffast else u), "s_cselect_b32 s%d, %d, 0" % (RE + 2, 3584 * 2048), "s_cselect_b32 s%d, %d, 0" % (RC + 2, 1024 * 7168)]
        if pf:
            for i in range(4): a("s_mov_b32 s%d, s%d" % (RC + i, RA + i))
            a("s_mov_b32 s%d, 0" % (RC + 2)); a("s_mov_b32 s%d, 0" % (RE + 2))
        self.ws_srd(RB, WS_HH, 128 * 112 * 1024)
        a("s_lshl_b32 s58, s83, 4"); a("s_lshl_b32 s59, s%d, 1" % S_X); a("s_add_u32 s58, s58, s59"); a("s_lshl_b32 s58, s58, 7")
        a("s_add_u32 s60, s58, %d" % (C3 * 128))
        def zero_acc():
            self.shadow(self.sh_c3)
            self.unstash("g2w", 25)
            for c in range(4): self.unstash("g2f%d" % c, 26 + c)
            for r in range(32, 256, 2): a("v_pk_mov_b32 v[%d:%d], 0, 0" % (r, r + 1))
        self.wait(60, 2, 16, shadow=zero_acc)
        self.mark(11)
        for st in range(3):
            for j in range(8): a(tokload(st, j))
            a("s_add_u32 s78, s78, 2048")
        if pf:
            for op in pfops(): a(op)
        a("v_mov_b32 v16, v15")
        q0 = DSQ()
        for F in range(PD):
            for jh in range(2): emit(dsr(q0, ("c", F, jh), wreg(F) + 2 * jh, 16, foff(F, jh)))
        fine = "nofine" not in self.opt
        a("s_waitcnt vmcnt(%d) lgkmcnt(8)" % ((20 if fine else 16) + npf))
        self.mark(12)

        def stage(u, loads, bwait, q, side=False, first_wait=None, mode="n", adv_end=None, nextf=None):
            pfop = side and pf
            G = [[] for _ in range(112)]
            for F in range(28):
                Fn = F + PD
                if Fn < 28:
                    for jh in range(2): G[4 * F + jh].append(dsr(q, ("c", Fn, jh), wreg(Fn) + 2 * jh, 16, foff(Fn, jh)))
                elif mode == "n":
                    for jh in range(2): G[4 * F + jh].append(dsr(q, ("n", Fn - 28, jh), wreg(Fn) + 2 * jh, 16, (foff(nextf[Fn - 28][0], jh) + nextf[Fn - 28][1]) if nextf else foff(Fn - 28, jh)))
                if mode == "m":
                    for jh in range(2): G[4 * F + 2 + jh].append(dsr(q, ("l", F, jh), lreg(F) + 2 * jh, 17, foff(F, jh)))
                if F < 27: G[4 * F + 3].append(lambda F=F: q.wait(("c", F + 1, 1)))
                elif mode == "n": G[4 * F + 3].append(lambda: q.wait(("n", 0, 1)))
            if loads:
                G[1].append("s_add_u32 m0, s75, s74")
                G[16].append("s_add_u32 m0, m0, 4096")
                vm = [self.g1_dma(i) for i in range(7)] + [tokload((u + 3) % 4, j) for j in range(8)]
                if pfop: vm += pfops()
                for i, x in enumerate(vm): G[4 * i + 2].append(x)
                G[4 * 8].append("s_add_u32 s77, s77, %d" % (64 * 7168))
                G[4 * 9].append("s_add_u32 s75, s75, %d" % G1_STAGE); G[4 * 10].append("s_cmp_eq_u32 s75, %d" % (G1_STAGE * G1_NSLOT))
                G[4 * 11].append("s_cselect_b32 s75, 0, s75")
                G[4 * 16].append("s_add_u32 s78, s78, 2048")
                if pfop:
                    for i, x in enumerate(pfturn(u)): G[4 * (12 + i)].append(x)
                    if self.pffast:
                        if u == 1: G[4 * 17].append("v_add_u32 v30, %d, v30" % (320 * 2048)); G[4 * 18].append("v_add_u32 v31, %d, v31" % (128 * 7168))
                        if u == 3: G[4 * 17].append("v_add_u32 v30, %d, v30" % (-960 * 2048)); G[4 * 18].append("v_add_u32 v31, %d, v31" % (128 * 7168))
                    elif u == 3:
                        G[4 * 17].append("v_add_u32 v30, %d, v30" % (-640 * 2048)); G[4 * 18].append("v_add_u32 v31, %d, v31" % (256 * 7168))
            if mode == "n":
                G[4 * 19].append("s_add_u32 s76, s76, %d" % G1_STAGE); G[4 * 20].append("s_cmp_eq_u32 s76, %d" % (G1_STAGE * G1_NSLOT))
                G[4 * 21].append("s_cselect_b32 s76, 0, s76")
                if first_wait is not None and fine:
                    l = a.new_label("fk")
                    G[45].append("s_cmp_lg_u32 s80, 3")
                    G[47] += ["s_cbranch_scc1 %s" % l, "s_waitcnt vmcnt(%d)" % (16 + npf + 12), l + ":"]
                if first_wait is not None:
                    l = a.new_label("fw")
                    G[4 * 21 + 2].append("s_cmp_lg_u32 s80, 3")
                    G[4 * 22] += ["s_cbranch_scc1 %s" % l, "s_waitcnt vmcnt(%d)" % first_wait, l + ":"]
                G[4 * 22 + 2] += ["v_add_u32 v16, s76, v15", "s_waitcnt vmcnt(%d)" % bwait]
                G[4 * 22 + 3].insert(0, "s_barrier")
            if adv_end:
                for g, x in adv_end: G[g].append(x)
            k = 0
            for F in range(28):
                kk, ct = F // 14, F % 14
                for tt in range(4):
                    a(mfma(acc(ct, tt), wreg(F), TOK + 32 * u + 16 * kk + 4 * tt))
                    for x in G[k]: emit(x)
                    k += 1
            for key in list(q.pos):
                if key[0] == "c": del q.pos[key]
            for key in list(q.pos):
                if key[0] == "n": q.pos[("c",) + key[1:]] = q.pos.pop(key)
        nst = 15 + npf
        a("s_mov_b32 s80, 3")
        loop = a.new_label("g1"); a.label(loop)
        q = DSQ()
        for F in range(PD):
            for jh in range(2): q.issue(("c", F, jh))
        q.done = 2
        for u in range(4):
            stage(u, True, npf + 2 * nst, q, side=True, first_wait=(8 + npf + nst) if u == 0 else None,
                  adv_end=[(4 * 23 + 2, "s_sub_u32 s80, s80, 1"), (4 * 26 + 2, "s_cmp_lg_u32 s80, 0")] if u == 3 else None)
        a("s_cbranch_scc1 %s" % loop)
        self.mark(13)
        if "xs" in self.opt: a("s_mov_b32 s100, 0"); a("s_mov_b32 s101, 0")
        a("s_mov_b32 s%d, %d" % (RE + 2, 3584 * 2048))
        def run(c, sts): return [(st, kk, ct) for st in sts for kk in range(2) for ct in (c, 7 + c)]
        seq = run(0, (13, 14)) + run(1, (13, 14)) + run(0, (15,)) + run(1, (15,))
        done = {0: 20, 1: 24}
        for c in range(2, 7): seq += run(c, (13, 14, 15)); done[c] = len(seq)
        stage(0, True, npf + 15, q, nextf=[(14 * kk + ct, (st - 13) * G1_STAGE) for (st, kk, ct) in seq[:PD]])
        self.mark(14)
        def capture(fn):
            keep = self.a; tmp = Asm(); self.a = tmp; fn(); self.a = keep
            return [l.strip() for l in tmp.lines]
        st_ = self.stashed
        pre = self.g2_voffs() + ["v_mov_b32 v17, v15", "v_accvgpr_read_b32 v4, a%d" % st_["g1es"],
               "s_mul_i32 s58, s73, %d" % (112 * 1024), "s_mul_i32 s59, s72, 7", "s_add_u32 s60, s59, 1", "s_lshr_b32 s60, s60, 1",
               "s_lshl_b32 s60, s60, 10", "s_add_u32 s60, s60, s58", "s_and_b32 s61, s72, 1", "s_mov_b32 s62, 3072", "s_cmp_eq_u32 s61, 1", "s_cselect_b32 s62, -512, s62",
               "s_add_u32 s62, s62, s60"] + capture(self.g2_pre)
        def glue(L):
            out = []; i = 0
            while i < len(L):
                if i + 1 < len(L) and isinstance(L[i], str) and (L[i + 1].startswith("s_addc") or L[i + 1].startswith("s_cselect")):
                    out.append(L[i] + "\n" + L[i + 1]); i += 2
                else: out.append(L[i]); i += 1
            return out
        pre = glue(pre)
        vq = VMQ()
        def mul(c, tt):
            g, u = acc(c, tt), acc(7 + c, tt)
            return ["v_mul_f32 v%d, v%d, v%d" % (g + i, g + i, u + i) for i in range(4)]
        def cvt(c, tt):
            g = acc(c, tt); u = acc(7 + c, tt & ~1) + 2 * (tt & 1)
            return ["v_cvt_pk_bf16_f32 v%d, v%d, v%d" % (u, g, g + 1), "v_cvt_pk_bf16_f32 v%d, v%d, v%d" % (u + 1, g + 2, g + 3)]
        def out(c, tp):
            u = acc(7 + c, tp)
            base, off = (62, 0) if c == 6 else (60, 1024 * (c >> 1) + 512 * (c & 1))
            return ["s_add_u32 s63, s%d, %d" % (base, off + tp * 112 * 1024),
                    "v_permlane16_swap_b32 v%d, v%d" % (u, u + 2), "v_permlane16_swap_b32 v%d, v%d" % (u + 1, u + 3),
                    vq.op(("h", c, tp), "buffer_store_dwordx4 v[%d:%d], v4, s[%d:%d], s63 offen sc1" % (u, u + 3, RB, RB + 3))]
        held = []
        def epi(c, hold=False):
            o0, o2 = out(c, 0), out(c, 2)
            if hold:
                held.extend([o0[0], o0[3], o2[0], o2[3]]); o0 = o0[1:3]; o2 = ["s_nop 1"] + o2[1:3]
            return mul(c, 0) + mul(c, 1) + cvt(c, 0) + cvt(c, 1) + mul(c, 2) + mul(c, 3) + o0 + cvt(c, 2) + cvt(c, 3) + o2
        N = len(seq)
        G = [[] for _ in range(4 * N)]
        def faddr(n):
            st, kk, ct = seq[n]
            return (16, 0) if st == 13 else (16, G1_STAGE) if st == 14 else (17, 0)
        for n in range(N):
            m = n + PD
            if m < N:
                st, kk, ct = seq[m]; reg, off = faddr(m)
                for jh in range(2): G[4 * n + jh].append(dsr(q, ("c", m, jh), wreg(m) + 2 * jh, reg, off + foff(14 * kk + ct, jh)))
            if n < N - 1: G[4 * n + 3].append(lambda n=n: q.wait(("c", n + 1, 1)))
        nb = 16 - PD - 1
        assert all(x[0] != 15 for x in seq[:16])
        G[4 * nb + 2].append(lambda: "s_waitcnt vmcnt(%d)" % vq.n); G[4 * nb + 3].insert(0, "s_barrier")
        ex = []
        for st in range(4):
            ex.append("s_add_u32 m0, s88, %d" % G2_SLOT[st])
            for i in range(4): ex.append(vq.op(("w", st, i), self.g2_dma(i, G2_ROW[st])))
        exn = self.optv("exn", 4)
        ex0 = self.optv("ex0", 3)
        if ex0 <= nb:
            G[4 * (ex0 - 1) + 3].insert(0, "s_barrier")
        for i, x in enumerate(ex): G[4 * (ex0 + (i * exn) // 5) + (2 if i % 5 else 1)].append(x)
        nA, nP, nC, nB = self.nA0, self.nPoll, self.nChk, self.nA1
        G[4 * nA + 2] += [lambda: vq.wait(("h", 1, 2)), vq.op("a0", "buffer_atomic_add v6, v5, s[%d:%d], 0 offen" % (RS, RS + 3))]
        G[4 * nP + 2].append(vq.op("p0", "buffer_load_dword v31, v30, s[%d:%d], 0 offen sc1" % (RS, RS + 3)))
        slow = a.new_label("c4s"); back = a.new_label("c4b")
        G[4 * nC + 1].append(lambda: vq.wait("p0"))
        G[4 * nC + 2] += ["v_cmp_gt_u32 vcc, 16, v31", "s_cbranch_vccnz %s" % slow, back + ":"]
        self.slow.append((slow, back, "0"))
        G[4 * nB + 2] += [lambda: vq.wait(("h", 3, 2)), vq.op("a1", "buffer_atomic_add v6, v5, s[%d:%d], s79 offen" % (RS, RS + 3))]
        def place(ops, g0):
            g = g0; k = 0
            while k < len(ops) and g < 4 * N:
                if len([x for x in G[g] if not (isinstance(x, str) and x.endswith(":"))]) < 2: G[g].append(ops[k]); k += 1
                else: g += 1
            return ops[k:], g + 1
        rest, gp = place(pre, 0); assert not rest and gp <= 4 * 20, gp
        tok = []
        for st in range(4):
            tok.append("s_lshr_b32 s78, s%d, 6" % G2_ROW[st])
            for j in range(4): tok.append(vq.op(("t", st, j), self.g2_tokload(st, j)))
        tkn = self.optv("tkn", 4)
        gt = 0
        for i, x in enumerate(tok):
            gt = 4 * (nC + 1 + i // tkn) + ([2], [0, 2], [0, 1, 2], [0, 1, 2, 3])[tkn - 1][i % tkn]
            G[gt].append(x)
        nhold = self.optv("hold", 0)
        def zero(r0): return ["v_pk_mov_b32 v[%d:%d], 0, 0" % (r, r + 1) for r in range(r0, r0 + 16, 2)]
        g = 0
        left = []
        for c in range(6):
            rest, g = place(epi(c, hold=c >= 6 - nhold), max(g - 1, 4 * done[c] + 1))
            assert not rest or c == 5
            left += rest
            if c < 4: rest, g = place(zero(acc(c, 0)), g - 1); assert not rest
        rest, g = place(held, max(gt + 1, g - 1) if not left else 4 * N)
        left += rest
        k = 0
        for n in range(N):
            st, kk, ct = seq[n]
            for tt in range(4):
                a(mfma(acc(ct, tt), wreg(n), TOK + 32 * (st % 4) + 16 * kk + 4 * tt))
                for x in G[k]: emit(x)
                k += 1
            if "xm" in self.opt and n in (nA, nC, 23, 47): self.mark({nA: 26, nC: 27, 23: 24, 47: 25}[n])
        for x in left + epi(6): emit(x)
        self.mark(15)
        self.vq = vq

    def g2_pre(self):
        a = self.a
        self.unstash("g2t0", 20); self.unstash("g2t1", 21); self.unstash("g2o4", 23)
        self.unstash("g2tab", 25); self.unstash("c4a", 5); self.unstash("c4p", 30)
        ks = 1024 if "x2nat" in self.opt else 7168
        a("v_bfe_u32 v22, v2, 3, 1"); a("v_mul_u32_u24 v22, 0x%x, v22" % 16320); a("v_sub_u32 v22, v23, v22")
        a("v_add_u32 v18, %d, v20" % ks); a("v_add_u32 v19, %d, v21" % ks); a("v_mov_b32 v6, 1")
        self.in_srd(RD, P_OUT, 4194304)
        self.ws_srd(RA, WS_XCH, 1024 * self.xstr)
        self.ws_srd(RC, WS_H, 4194304)
        for c in range(4):
            a("v_add_u32 v%d, %d, v%d" % (12 + c, G2_SLOT[5], 26 + c)); a("v_add_u32 v%d, %d, v%d" % (26 + c, G2_BASE, 26 + c))
        a("v_readlane_b32 s75, v25, 4"); a("s_mov_b32 s76, 5"); a("s_mov_b32 s79, %d" % (128 * 128)); a("s_mov_b32 s77, %d" % (256 * 128))
    def g2_tokload(self, slot, j):
        kk, tt = j >> 1, j & 1
        r = G2_TOK[slot] + 8 * kk + 4 * tt
        fl = "nt" if "g2tnt" in self.opt else "" if "g2tpl" in self.opt else "sc1"
        return "buffer_load_dwordx4 a[%d:%d], v%d, s[%d:%d], s78 offen %s" % (r, r + 3, (18 if kk else 20) + tt, RB, RB + 3, fl)
    def gemm2(self):
        a = self.a
        ACC, HR, TOK, WF, PD, NST = 32, 96, 0, G2_WF, 7, 28
        def acc(ct, tt): return ACC + (ct * 2 + tt) * 4
        tokload = self.g2_tokload
        def fk(F): return (F >> 2) & 1, (F & 3) + (0 if F >= 8 else 4)
        def fread(slot, F, jh, ring=None):
            kk, ct = fk(F)
            r = WF + 4 * ((F if ring is None else ring) % 8) + 2 * jh
            base, so = (12, G2_SLOT[slot] - G2_SLOT[5]) if slot in (3, 5) else (26, G2_SLOT[slot] - G2_BASE)
            assert 0 <= so <= 49152
            return "ds_read_b64_tr_b16 a[%d:%d], v%d offset:%d" % (r, r + 1, base + (ct & 3), so + (2 * kk + (ct >> 2)) * 4096 + jh * 2048)
        a("s_barrier")
        for F in range(PD):
            for jh in range(2): a(fread(0, F, jh))
        a("s_add_u32 m0, s88, %d" % G2_SLOT[4])
        a(self.vq.wait(("t", 1, 3)) + " lgkmcnt(10)")
        self.mark(18)
        vq = self.vq
        def stage(u, loads, bwait, last=False, extra=None, tailops=None, first=None):
            G = [[] for _ in range(32)]
            nods = "x2nods" in self.opt
            for F in range(16):
                Fn = F + PD
                if not nods and not (last and Fn >= 16):
                    sl = u if Fn < 16 else (u + 1) % 6
                    G[2 * F].append(fread(sl, Fn % 16, 0)); G[2 * F + 1].append(fread(sl, Fn % 16, 1))
                if F & 1:
                    if not last: G[2 * F + 1].append("s_waitcnt lgkmcnt(10)")
                    elif F < 15:
                        issued = min(F + PD, 15); need = F + 2
                        G[2 * F + 1].append("s_waitcnt lgkmcnt(%d)" % max(0, 2 * (issued - need)))
            vm = []
            def check(g, wait, soff):
                slow = a.new_label("c4t"); back = a.new_label("c4u")
                G[g].append(wait); G[g + 1].append("v_cmp_gt_u32 vcc, 16, v31"); G[g + 2] += ["s_cbranch_vccnz %s" % slow, back + ":"]
                self.slow.append((slow, back, soff))
            def poll(soff): return "buffer_load_dword v31, v30, s[%d:%d], %s offen sc1" % (RS, RS + 3, soff)
            if loads:
                vm = [self.g2_dma(i, 75) for i in range(4)] + [tokload((u + 4) % 6, j) for j in range(4)]
                if "x2nodma" in self.opt: vm[:4] = ["s_nop 0"] * 4
                if "x2notok" in self.opt: vm[4:] = ["s_nop 0"] * 4
                G[1].append("s_lshr_b32 s78, s75, 6")
                G[9].append("v_readlane_b32 s75, v25, s76"); G[13].append("s_add_u32 s76, s76, 1")
                G[29].append("s_add_u32 m0, s88, %d" % G2_SLOT[(u + 5) % 6])
                if first is not None:
                    vm = [vq.op(("L", first + 4, i), x) for i, x in enumerate(vm)]
                    bwait = lambda: vq.wait(("L", first + 1, 7) if first >= 3 else ("t", first + 1, 3))
                    if first == 1: G[15].append(vq.op("p1", poll("s79")))
                    if first == 4: check(5, lambda: vq.wait("p1"), "s79")
                    if first == self.optv("nD", 2):
                        G[18] += [lambda: vq.wait(("h", 6, 2))]; G[20].append(vq.op("a2", "buffer_atomic_add v6, v5, s[%d:%d], s77 offen" % (RS, RS + 3)))
                else:
                    if u == 3: G[15].append(poll("s77"))
                    if u == 0: check(5, "s_waitcnt vmcnt(19)", "s77")
            if extra: vm = extra
            for i, x in enumerate(vm): G[2 * i].append(x)
            if not last:
                G[16].append(bwait if callable(bwait) else "s_waitcnt vmcnt(%d)" % bwait); G[17].append("s_barrier")
            if tailops:
                for g, x in tailops: G[g].append(x)
            k = 0
            for F in range(16):
                kk, ct = fk(F)
                w = WF + 4 * (F % 8)
                for tt in range(2):
                    t = G2_TOK[u] + 8 * kk + 4 * tt; c = acc(ct, tt)
                    if "x2nomfma" not in self.opt:
                        a("v_mfma_f32_16x16x32_bf16 v[%d:%d], a[%d:%d], a[%d:%d], v[%d:%d]" % (c, c + 3, w, w + 3, t, t + 3, c, c + 3))
                    for x in G[k]: a(x() if callable(x) else x)
                    k += 1
        for u in range(6):
            stage(u, True, None, first=u)
            if "xm3" in self.opt: self.mark([16, 17, 24, 25, 26, 27][u])
        a("s_mov_b32 s81, 3")
        loop = a.new_label("g2"); a.label(loop)
        for u in range(6):
            stage(u, True, [25, 24, 24, 25, 25, 25][u], tailops=[(22, "s_sub_u32 s81, s81, 1"), (30, "s_cmp_lg_u32 s81, 0")] if u == 5 else None)
        a("s_cbranch_scc1 %s" % loop)
        a("s_mov_b32 s60, 32768")
        hl = ["buffer_load_dwordx4 v[%d:%d], v23, s[%d:%d], %s offen offset:%d sc1" % (HR + 4 * i, HR + 4 * i + 3, RC, RC + 3, "s60" if i >> 1 else "0", 64 * (i & 1)) for i in range(4)]
        order = {0: "a0 a1 a2 a3 b0 b1 b2 b3", 1: "a0 a1 b0 a2 a3 b1 b2 b3", 2: "a0 a1 b0 a2 b1 a3 b2 b3", 3: "a0 b0 a1 a2 b1 a3 b2 b3",
                 4: "a0 b0 a1 a2 a3 b1 b2 b3"}[self.optv("ord", 1)].split()
        seq = [(int(h[1]), F + (8 if h[0] == "b" else 0)) for h in order for F in range(8)]
        aend = 8 * (max(i for i, h in enumerate(order) if h[0] == "a") + 1)
        N = len(seq)
        G = [[] for _ in range(2 * N)]
        q = DSQ()
        for n in range(PD):
            for jh in range(2): q.issue((n, jh))
        q.done = 4
        def rd(m, jh): return lambda: (q.issue((m, jh)), fread(seq[m][0], seq[m][1], jh, ring=m))[1]
        for n in range(N):
            m = n + PD
            if m < N: G[2 * n].append(rd(m, 0)); G[2 * n + 1].append(rd(m, 1))
            if n & 1 and n < N - 1: G[2 * n + 1].append(lambda n=n: q.wait((min(n + 2, N - 1), 1)))
        hpos = [2 * (1 + i) for i in range(len(hl))]
        for u in (1, 2, 3):
            n = min(i for i, x in enumerate(seq) if x[0] == u) - PD - 1
            cnt = 8 * (3 - u) + len([g for g in hpos if g < 2 * n])
            G[2 * n].append("s_waitcnt vmcnt(%d)" % cnt); G[2 * n + 1].insert(0, "s_barrier")
        for g, x in zip(hpos, hl): G[g].append(x)
        xa = ["s_lshl_b32 s58, s2, 2", "s_add_u32 s58, s58, s%d" % S_WAVE, "s_mul_i32 s61, s58, %d" % self.xstr, "s_xor_b32 s58, s58, 4",
              "s_mul_i32 s62, s58, %d" % self.xstr, "s_add_u32 s63, s62, 4096", "s_add_u32 s58, s61, 4096"]
        for i, x in enumerate(xa): G[2 * (9 + i) + 1].append(x)
        if self.x32:
            for e in range(8):
                c = ACC + 32 + 4 * e
                G[2 * aend + self.optv("xsp", 1) * e + 1].append("buffer_store_dwordx4 v[%d:%d], v24, s[%d:%d], s%d offen offset:%d sc1" % (c, c + 3, RA, RA + 3, 58 if e >> 2 else 61, 1024 * (e & 3)))
        else:
            g = 2 * (aend - 1)
            for p_ in range(4):
                c = ACC + 32 + 8 * p_
                ops = ["v_cvt_pk_bf16_f32 v%d, v%d, v%d" % (c + i, c + 2 * i, c + 2 * i + 1) for i in range(4)]
                ops.append("buffer_store_dwordx4 v[%d:%d], v24, s[%d:%d], s61 offen offset:%d sc1" % (c, c + 3, RA, RA + 3, 1024 * p_))
                g = max(g, 2 * (aend - 4 + p_) + 6)
                for x in ops:
                    while len(G[g]) >= 2: g += 1
                    G[g].append(x)
                g += self.optv("xsp", 1)
        k = 0
        if "xm4" in self.opt: self.mark(24)
        for n in range(N):
            if "xm4" in self.opt and n in (16, 32, 48): self.mark({16: 25, 32: 26, 48: 27}[n])
            u, F = seq[n]; kk, ct = fk(F)
            w = WF + 4 * (n % 8)
            for tt in range(2):
                t = G2_TOK[u] + 8 * kk + 4 * tt; c = acc(ct, tt)
                a("v_mfma_f32_16x16x32_bf16 v[%d:%d], a[%d:%d], a[%d:%d], v[%d:%d]" % (c, c + 3, w, w + 3, t, t + 3, c, c + 3))
                for x in G[k]:
                    x = x() if callable(x) else x
                    if x: a(x)
                k += 1
        self.mark(19)
        R = 112
        NX = 8 if self.x32 else 4
        def xloads():
            for e in range(NX):
                a("buffer_load_dwordx4 v[%d:%d], v24, s[%d:%d], s%d offen offset:%d sc1" % (R + 4 * e, R + 4 * e + 3, RA, RA + 3, 62 + (e >> 2), 1024 * (e & 3)))
        def residual():
            for i in range(4):
                u = HR + 4 * i
                a("v_permlane16_swap_b32 v%d, v%d" % (u, u + 2)); a("v_permlane16_swap_b32 v%d, v%d" % (u + 1, u + 3))
            for e in list(range(8)):
                ct, tt = e >> 1, e & 1
                c = ACC + 4 * e; r = HR + 4 * (2 * tt + (ct >> 1)) + 2 * (ct & 1)
                a("v_lshlrev_b32 v4, 16, v%d" % r); a("v_and_b32 v5, s%d, v%d" % (S_MASK, r))
                a("v_lshlrev_b32 v6, 16, v%d" % (r + 1)); a("v_and_b32 v7, s%d, v%d" % (S_MASK, r + 1))
                for i in (0, 2): a("v_pk_add_f32 v[%d:%d], v[%d:%d], v[%d:%d]" % (c + i, c + i + 1, c + i, c + i + 1, 4 + i, 5 + i))
        if "reslast" not in self.opt:
            a("s_waitcnt vmcnt(%d)" % NX); residual(); xloads()
        else:
            xloads()
            a("s_waitcnt vmcnt(%d)" % (2 * NX))
            residual()
        self.mark(20)
        ok = a.new_label("xgo"); lp = a.new_label("xpl")
        a("s_mov_b32 s59, 0")
        a.label(lp)
        a("s_waitcnt vmcnt(0)")
        a("v_max3_u32 v4, v%d, v%d, v%d" % (R, R + 1, R + 2))
        for i in range(3, 4 * NX - 1, 2): a("v_max3_u32 v4, v4, v%d, v%d" % (R + i, R + i + 1))
        a("v_max_u32 v4, v4, v%d" % (R + 4 * NX - 1))
        a("v_cmp_eq_u32 vcc, -1, v4")
        a("s_add_u32 s59, s59, 1"); a("s_cmp_gt_u32 s59, %d" % SPIN_MAX); a("s_cbranch_scc1 %s" % ok)
        a("s_cbranch_vccz %s" % ok)
        xloads()
        a("s_branch %s" % lp)
        a.label(ok)
        self.mark(21)
        units = [(tt, m) for tt in range(2) for m in range(2)]
        def fin(i):
            tt, m = units[i]; up = HR + 4 * i
            a("v_permlane16_swap_b32 v%d, v%d" % (up, up + 2)); a("v_permlane16_swap_b32 v%d, v%d" % (up + 1, up + 3))
            fl = "" if "outplain" in self.opt else " nt" if "outnt" in self.opt else " sc0 sc1" if "outsc01" in self.opt else " sc1 nt" if "outsc1nt" in self.opt else " sc0 sc1 nt" if "outall" in self.opt else " sc1"
            a("buffer_store_dwordx4 v[%d:%d], v23, s[%d:%d], %s offen offset:%d%s" % (up, up + 3, RD, RD + 3, "s60" if tt else "0", 64 * m, fl))
        full = "outhalf" not in self.opt
        def fin_pair(tt):
            u0, u1 = HR + 8 * tt, HR + 8 * tt + 4
            for u in (u0, u1):
                a("v_permlane16_swap_b32 v%d, v%d" % (u, u + 2)); a("v_permlane16_swap_b32 v%d, v%d" % (u + 1, u + 3))
            a("s_nop 0")
            for d in range(4): a("v_mov_b32 v%d, v%d" % (4 + d, u0 + d))
            for d in range(4): a("v_mov_b32_dpp v%d, v%d row_ror:8 row_mask:0xf bank_mask:0xc" % (u0 + d, u1 + d))
            for d in range(4): a("v_mov_b32_dpp v%d, v%d row_ror:8 row_mask:0xf bank_mask:0x3" % (u1 + d, 4 + d))
            fl = "" if "outplain" in self.opt else " nt" if "outnt" in self.opt else " sc1"
            a("buffer_store_dwordx4 v[%d:%d], v22, s[%d:%d], %s offen%s" % (u0, u0 + 3, RD, RD + 3, "s60" if tt else "0", fl))
            a("buffer_store_dwordx4 v[%d:%d], v22, s[%d:%d], %s offen%s" % (u1, u1 + 3, RD, RD + 3, "s62" if tt else "s61", fl))
        if full: a("s_mov_b32 s61, 16384"); a("s_mov_b32 s62, 49152")
        for i, (tt, m) in enumerate(units):
            u = HR + 4 * i
            for h in range(2):
                e = 2 * (2 * m + h) + tt
                c = ACC + 4 * e; r = R + 4 * e
                if self.x32:
                    for j in range(4): a("v_add_f32 v%d, v%d, v%d" % (c + j, c + j, r + j))
                else:
                    r = R + 4 * (e >> 1) + 2 * (e & 1)
                    a("v_lshlrev_b32 v4, 16, v%d" % r); a("v_and_b32 v5, s%d, v%d" % (S_MASK, r))
                    a("v_lshlrev_b32 v6, 16, v%d" % (r + 1)); a("v_and_b32 v7, s%d, v%d" % (S_MASK, r + 1))
                    for j in (0, 2): a("v_pk_add_f32 v[%d:%d], v[%d:%d], v[%d:%d]" % (c + j, c + j + 1, c + j, c + j + 1, 4 + j, 5 + j))
                a("v_cvt_pk_bf16_f32 v%d, v%d, v%d" % (u + 2 * h, c, c + 1)); a("v_cvt_pk_bf16_f32 v%d, v%d, v%d" % (u + 2 * h + 1, c + 2, c + 3))
            if full:
                if i == 2: pending = 0
                if i == 2: fin_pair(0)
            elif i > 0: fin(i - 1)
        a("s_nop 1")
        if full: fin_pair(1)
        else: fin(3)
        self.mark(22)

    def finish(self, name):
        a = self.a
        if self.diag:
            a("s_waitcnt vmcnt(0) lgkmcnt(0)")
            self.mark(23)
            a("s_memrealtime s[92:93]"); a("s_waitcnt lgkmcnt(0)")
            a("v_accvgpr_read_b32 v1, a255"); a("s_nop 1")
            if "xs" in self.opt: a("v_writelane_b32 v1, s100, 54"); a("v_writelane_b32 v1, s101, 55")
            for i, s in enumerate((94, 95, 96, 97, 92, 93)):
                a("v_writelane_b32 v1, s%d, %d" % (s, 56 + i))
            self.ws_srd(RA, STAMP, 256 * 1024)
            a("s_lshl_b32 s58, s2, 10"); a("s_lshl_b32 s59, s%d, 8" % S_WAVE); a("s_add_u32 s58, s58, s59")
            a("v_lshlrev_b32 v3, 2, v2")
            a("buffer_store_dword v1, v3, s[%d:%d], s58 offen" % (RA, RA + 3))
            if "dbgspan" in self.opt:
                self.in_srd(RE, P_DBG, 256)
                nd = a.new_label("nodbg")
                a("s_cmp_lg_u32 s%d, 0" % S_WAVE); a("s_cbranch_scc1 %s" % nd)
                a("s_not_b32 s58, s94"); a("v_mov_b32 v4, s58"); a("v_mov_b32 v5, 16"); a("v_mov_b32 v6, s92"); a("v_mov_b32 v7, 20")
                a("s_mov_b64 exec, 1")
                a("buffer_atomic_umax v4, v5, s[%d:%d], 0 offen" % (RE, RE + 3))
                a("buffer_atomic_umax v6, v7, s[%d:%d], 0 offen" % (RE, RE + 3))
                a("s_mov_b64 exec, -1")
                a("s_cmp_lg_u32 s2, 0"); a("s_cbranch_scc1 %s" % nd)
                a("v_mov_b32 v4, 0")
                for i, m in enumerate((2, 3, 6, 8, 11, 12, 14, 17, 19, 23)):
                    a("v_readlane_b32 s58, v1, %d" % (2 * m)); a("s_nop 3"); a("s_sub_u32 s58, s58, s96"); a("v_writelane_b32 v4, s58, %d" % (6 + i)); a("s_nop 1")
                a("v_lshlrev_b32 v5, 2, v2")
                a("s_mov_b64 exec, 0xffc0")
                a("buffer_store_dword v4, v5, s[%d:%d], 0 offen" % (RE, RE + 3))
                a("s_mov_b64 exec, -1")
                a.label(nd)
        a.label(name + "_done")
        a("s_endpgm")
        for slow, back, soff in self.slow:
            a.label(slow)
            a("s_mov_b32 s80, 0")
            a.label(slow + "l")
            a("buffer_load_dword v31, v30, s[%d:%d], %s offen sc1" % (RS, RS + 3, soff))
            a("s_waitcnt vmcnt(0)")
            a("v_cmp_gt_u32 vcc, 16, v31")
            if "xs" in self.opt: a("s_add_u32 s%d, s%d, 1" % ((100, 100) if soff == "0" else (101, 101)))
            a("s_add_u32 s80, s80, 1"); a("s_cmp_gt_u32 s80, %d" % SPIN_MAX); a("s_cbranch_scc1 %s" % back)
            a("s_cbranch_vccnz %sl" % slow)
            a("s_branch %s" % back)
        if self.slow: a("s_endpgm")
    def build(self, upto=5):
        name = KNAME + "_kernel"
        self.entry(name)
        self.prep()
        if upto >= 2: self.conv()
        if upto >= 3:
            self.g1_setup(); self.ln()
        if upto >= 4: self.gemm1()
        if upto >= 5: self.gemm2()
        self.finish(name)
        hdr = "; persistent single-launch kernel generated by gen/fused.py (hand-written generator)\n"
        hdr += "; @launch grid=(256,1,1) block=(256,1,1) lds=%d\n" % LDS_TOTAL
        hdr += '.amdgcn_target "amdgcn-amd-amdhsa--gfx950"\n'
        return hdr + self.a.text() + kernel_desc(name, 512, 102, 256)

if __name__ == "__main__":
    import sys
    out = sys.argv[1]
    opt = sys.argv[2] if len(sys.argv) > 2 else ""
    diag = "diag" in opt.split(",")
    upto = 5
    for t in opt.split(","):
        if t.startswith("upto"): upto = int(t[4:])
    open(out, "w").write(Gen(opt, diag).build(upto))
```

```python
from asmlib import *
from layout import *

P_Q, P_K, P_V, P_SK, P_SSMK, P_SSMD, P_WG, P_WU, P_WD, P_OUT, P_DBG, P_WS = 4, 6, 8, 10, 12, 14, 18, 20, 22, 24, 26, 28
S_WAVE, S_X, S_J = 30, 31, 3
RA, RB, RC, RD, RE, RS = 32, 36, 40, 44, 48, 52
S_MASK, S_EPS = 56, 57
SPIN_MAX = 1 << 17

KCOPY = 4160; XB0 = 4 * KCOPY; XSTR = 4576; WREG = 25856
CSTG = 4 * WREG
PSTG = CSTG + 17408
G1_STAGE = 28672; G1_NSLOT = 5
SENT = 236
G2_WF = 204
G2_STAGE = 16384; G2_NSLOT = 6; G2_BASE = G1_STAGE
G2_SLOT = [G2_BASE, G2_BASE + G2_STAGE, G2_BASE + 2 * G2_STAGE, G1_STAGE * G1_NSLOT, G2_BASE + 3 * G2_STAGE, G2_BASE + 4 * G2_STAGE]
G2_ROW = [89, 90, 91, 93]
G2_TOK = [0, 16, 160, 176, 32, 48]
LDS_TOTAL = G1_STAGE * G1_NSLOT + G2_STAGE

class DSQ:
    def __init__(self): self.n = 0; self.pos = {}; self.done = 0
    def issue(self, tag): self.n += 1; self.pos[tag] = self.n
    def wait(self, tag):
        need = self.pos[tag]
        if need <= self.done: return None
        cnt = min(15, self.n - need); self.done = self.n - cnt
        return "s_waitcnt lgkmcnt(%d)" % cnt

class VMQ:
    def __init__(self): self.n = 0; self.pos = {}
    def op(self, tag, text): return lambda: (self.issue(tag), text)[1]
    def issue(self, tag): self.n += 1; self.pos[tag] = self.n
    def wait(self, tag): return "s_waitcnt vmcnt(%d)" % min(63, self.n - self.pos[tag])

class Gen:
    def __init__(self, opt="", diag=False):
        self.a = Asm(); self.opt = set(opt.split(",")); self.diag = diag; self.stashed = {}; self.pffast = "pfall" not in self.opt; self.slow = []
        optv = self.optv
        self.sh_prep, self.sh_c1, self.sh_c3 = {4: (["g1", "g2", "pf", "ln", "cv"], [], []), 5: (["g2", "pf", "ln", "cv"], ["g1"], []),
                                                7: (["pf", "ln", "cv"], ["g1"], ["g2"]), 8: (["pf", "cv"], ["g1", "ln"], ["g2"]),
                                                9: (["g1"], ["pf", "ln", "cv"], ["g2"])}[optv("sh", 4)]
        self.x32 = "xf32" in self.opt
        self.xbytes = 8192 if self.x32 else 4096
        self.xstr = optv("xstr", self.xbytes + 1152)
        self.nA0, self.nPoll, self.nChk, self.nA1 = optv("nA", 46), optv("nP", 62), optv("nC", 70), optv("nB", 76)
    def optv(self, name, dflt):
        for t in self.opt:
            if t.startswith(name + "="): return int(t[len(name) + 1:])
        return dflt
    def mark(self, i):
        if not self.diag: return
        a = self.a
        a("s_memtime s[98:99]"); a("s_waitcnt lgkmcnt(0)")
        a("v_accvgpr_read_b32 v1, a255"); a("s_nop 1")
        a("v_writelane_b32 v1, s98, %d" % (2 * i)); a("v_writelane_b32 v1, s99, %d" % (2 * i + 1))
        a("s_nop 1"); a("v_accvgpr_write_b32 a255, v1")
    def stash(self, name, v):
        n = len(self.stashed)
        idx = self.stashed.setdefault(name, 176 + n if n < 28 else 240 + n - 28); assert idx < 255
        self.a("v_accvgpr_write_b32 a%d, v%d" % (idx, v))
    def unstash(self, name, v):
        self.a("v_accvgpr_read_b32 v%d, a%d" % (v, self.stashed[name]))
    def ws_srd(self, dst, off, size):
        a = self.a
        a("s_add_u32 s%d, s%d, 0x%x" % (dst, P_WS, off)); a("s_addc_u32 s%d, s%d, 0" % (dst + 1, P_WS + 1))
        a("s_and_b32 s%d, s%d, 0xffff" % (dst + 1, dst + 1)); a("s_mov_b32 s%d, 0x%x" % (dst + 2, size)); a("s_mov_b32 s%d, 0x00020000" % (dst + 3))
    def in_srd(self, dst, ptr, size, soff=None):
        a = self.a
        if soff is None:
            srd(a, dst, ptr, size)
        else:
            a("s_add_u32 s%d, s%d, s%d" % (dst, ptr, soff)); a("s_addc_u32 s%d, s%d, 0" % (dst + 1, ptr + 1))
            a("s_and_b32 s%d, s%d, 0xffff" % (dst + 1, dst + 1)); a("s_mov_b32 s%d, 0x%x" % (dst + 2, size)); a("s_mov_b32 s%d, 0x00020000" % (dst + 3))
    def arrive(self, addr, nlanes=1, vm=0, check_init=None, init_target=1):
        a = self.a
        for s in addr: a(s)
        a("s_waitcnt vmcnt(%d)" % vm)
        a("s_barrier")
        sk = a.new_label("arr")
        a("s_cmp_lg_u32 s%d, 0" % S_WAVE); a("s_cbranch_scc1 %s" % sk)
        if check_init is not None:
            ok = a.new_label("ini"); lp = a.new_label("inip")
            a("s_mov_b32 s59, 0")
            a.label(lp)
            a("v_readfirstlane_b32 s58, v%d" % check_init)
            a("s_cmp_ge_u32 s58, %d" % init_target); a("s_cbranch_scc1 %s" % ok)
            a("s_add_u32 s59, s59, 1"); a("s_cmp_gt_u32 s59, %d" % SPIN_MAX); a("s_cbranch_scc1 %s" % ok)
            a("v_mov_b32 v6, 0")
            a("buffer_load_dword v%d, v6, s[%d:%d], 0 offen sc1" % (check_init, RE, RE + 3))
            a("s_waitcnt vmcnt(0)")
            a("s_branch %s" % lp)
            a.label(ok)
        a("v_mov_b32 v6, 1")
        a("s_mov_b64 exec, 0x%x" % ((1 << nlanes) - 1))
        a("buffer_atomic_add v6, v7, s[%d:%d], 0 offen" % (RS, RS + 3))
        a("s_mov_b64 exec, -1")
        a.label(sk)
    def wait(self, line_sgpr, nlines, target, shadow=None):
        a = self.a
        sk = a.new_label("wt"); lp = a.new_label("wtp"); s0 = a.new_label("wt0")
        mask = "0x%x" % ((1 << nlines) - 1)
        a("s_cmp_lg_u32 s%d, 0" % S_WAVE); a("s_cbranch_scc1 %s" % s0)
        a("v_min_u32 v6, %d, v2" % (nlines - 1)); a("v_lshlrev_b32 v6, 7, v6"); a("v_add_u32 v6, s%d, v6" % line_sgpr)
        a("s_mov_b64 exec, %s" % mask)
        a("buffer_load_dword v7, v6, s[%d:%d], 0 offen sc1" % (RS, RS + 3))
        a("s_mov_b64 exec, -1")
        a.label(s0)
        if shadow: shadow()
        a("s_cmp_lg_u32 s%d, 0" % S_WAVE); a("s_cbranch_scc1 %s" % sk)
        a("s_mov_b32 s59, 0")
        a("s_mov_b64 exec, %s" % mask)
        if "poll2" in self.opt:
            a("buffer_load_dword v3, v6, s[%d:%d], 0 offen sc1" % (RS, RS + 3))
            a.label(lp)
            for r in (7, 3):
                a("s_waitcnt vmcnt(1)")
                a("v_cmp_gt_u32 vcc, %d, v%d" % (target, r))
                a("s_add_u32 s59, s59, 1")
                a("s_cmp_gt_u32 s59, %d" % SPIN_MAX); a("s_cbranch_scc1 %s" % (sk + "x"))
                a("s_cbranch_vccz %s" % (sk + "x"))
                a("buffer_load_dword v%d, v6, s[%d:%d], 0 offen sc1" % (r, RS, RS + 3))
            a("s_branch %s" % lp)
        else:
            a.label(lp)
            a("s_waitcnt vmcnt(0)")
            a("v_cmp_gt_u32 vcc, %d, v7" % target)
            a("s_add_u32 s59, s59, 1")
            a("s_cmp_gt_u32 s59, %d" % SPIN_MAX); a("s_cbranch_scc1 %s" % (sk + "x"))
            a("s_cbranch_vccz %s" % (sk + "x"))
            a("buffer_load_dword v7, v6, s[%d:%d], 0 offen sc1" % (RS, RS + 3))
            a("s_branch %s" % lp)
        a.label(sk + "x")
        a("s_mov_b64 exec, -1")
        a.label(sk)
        a("s_barrier")

    def entry(self, name):
        a = self.a
        kernel_begin(a, name)
        a("s_cmp_ge_u32 s2, 256"); a("s_cbranch_scc1 %s_done" % name)
        if self.diag:
            a("s_memrealtime s[94:95]"); a("s_memtime s[96:97]"); a("v_accvgpr_write_b32 a255, 0")
        a("s_load_dwordx16 s[4:19], s[0:1], 0")
        a("s_load_dwordx8 s[20:27], s[0:1], 64")
        a("s_load_dwordx2 s[28:29], s[0:1], 96")
        a("v_lshrrev_b32 v1, 6, v0")
        a("v_and_b32 v2, 63, v0")
        a("v_readfirstlane_b32 s%d, v1" % S_WAVE)
        a("s_and_b32 s%d, s2, 7" % S_X); a("s_lshr_b32 s%d, s2, 3" % S_J)
        a("s_mov_b32 s%d, 0xffff0000" % S_MASK); a("s_mov_b32 s%d, 0x3727c5ac" % S_EPS)
        if "cpf" in self.opt:
            st = self.optv("cst", 1280)
            a("s_getpc_b64 s[72:73]")
            a.label("L_pc0")
            a("s_and_b32 s73, s73, 0xffff")
            a("s_mov_b32 s74, %s_done-L_pc0" % name)
            a("s_mov_b32 s75, 0x00020000")
            a("s_mul_i32 s76, s%d, %d" % (S_J, st))
            a("v_lshlrev_b32 v202, 3, v0"); a("v_add_u32 v202, s76, v202")
            a("buffer_load_dwordx2 v[202:203], v202, s[72:75], 0 offen")

    def prep(self):
        a = self.a
        a("v_and_b32 v8, 7, v0")
        a("v_lshrrev_b32 v9, 3, v0")
        a("s_lshr_b32 s60, s2, 4")
        a("s_and_b32 s61, s2, 15")
        a("s_lshl_b32 s62, s60, 18"); a("s_lshl_b32 s63, s61, 7"); a("s_add_u32 s62, s62, s63")
        a("v_lshlrev_b32 v3, 13, v9"); a("v_lshl_add_u32 v3, v8, 4, v3"); a("v_add_u32 v3, s62, v3")
        a("v_subrev_u32 v4, 6144, v3")
        a("s_lshl_b32 s63, s61, 9"); a("v_lshlrev_b32 v5, 6, v8"); a("v_add_u32 v5, s63, v5")
        a("s_mov_b32 s64, 4096")
        a("s_lshl_b32 s65, s%d, 5" % S_X); a("s_add_u32 s65, s65, s%d" % S_J)
        a("s_lshl_b32 s66, s65, 2"); a("s_add_u32 s66, s66, s%d" % S_WAVE)
        a("s_mul_i32 s67, s%d, %d" % (S_WAVE, WREG))
        a("s_lshl_b32 s68, s66, 12")
        a("v_lshlrev_b32 v10, 4, v2")
        a("v_lshlrev_b32 v11, 2, v2")
        a("v_add_u32 v12, 196, v10")
        a("s_lshl_b32 s69, s2, 3"); a("s_lshl_b32 s70, s%d, 1" % S_WAVE); a("s_add_u32 s69, s69, s70"); a("s_lshl_b32 s70, s69, 11")
        a("v_lshlrev_b32 v13, 3, v2")
        for i in range(4): a("v_accvgpr_write_b32 a%d, -1" % (SENT + i))
        a("s_waitcnt lgkmcnt(0)")
        self.ws_srd(RS, WS_SYNC, NLINES * 128)
        NCLR = NLINES // 64
        ni = a.new_label("noinit")
        a("s_lshl_b32 s58, s%d, 8" % S_WAVE); a("s_or_b32 s58, s58, s2"); a("s_cmp_ge_u32 s58, %d" % NCLR); a("s_cbranch_scc1 %s" % ni)
        a("v_lshlrev_b32 v6, 7, v2"); a("v_mov_b32 v7, 0"); a("s_lshl_b32 s58, s2, 13")
        a("buffer_store_dword v7, v6, s[%d:%d], s58 offen sc1" % (RS, RS + 3))
        a.label(ni)
        self.in_srd(RA, P_K, 4194304); self.in_srd(RB, P_V, 4194304); self.in_srd(RC, P_SK, 8192)
        KR, VR, SK = 16, 44, 60
        nt = "" if "p1nont" in self.opt else "nt"
        def ld(dst, voff, s, soff, off, fl=""):
            a("buffer_load_dwordx4 v[%d:%d], v%d, s[%d:%d], %s offen%s %s" % (dst, dst + 3, voff, s, s + 3, soff, " offset:%d" % off if off else "", fl))
        if "xp" in self.opt: self.mark(24)
        for i in range(4): ld(SK + 4 * i, 5, RC, "0", 16 * i)
        ld(KR + 0, 4, RA, "0", 0, nt); ld(KR + 4, 4, RA, "0", 2048, nt); ld(KR + 8, 4, RA, "s64", 0, nt)
        ld(KR + 12, 3, RA, "0", 0, nt); ld(KR + 16, 3, RA, "0", 2048, nt); ld(KR + 20, 3, RA, "s64", 0, nt); ld(KR + 24, 3, RA, "s64", 2048, nt)
        ld(VR + 0, 3, RB, "0", 0, nt); ld(VR + 4, 3, RB, "0", 2048, nt); ld(VR + 8, 3, RB, "s64", 0, nt); ld(VR + 12, 3, RB, "s64", 2048, nt)
        self.in_srd(RE, P_SSMD, 2048)
        a("s_lshl_b32 s58, s66, 1"); a("v_mov_b32 v6, s58")
        a("buffer_load_ushort v200, v6, s[%d:%d], 0 offen" % (RE, RE + 3))
        if "xp" in self.opt: self.mark(25)
        self.in_srd(RE, P_DBG, 256)
        ni = a.new_label("noflag")
        a("s_lshl_b32 s58, s%d, 8" % S_WAVE); a("s_or_b32 s58, s58, s2"); a("s_cmp_ge_u32 s58, %d" % NCLR); a("s_cbranch_scc1 %s" % ni)
        a("s_waitcnt vmcnt(16)")
        a("v_mov_b32 v6, 0"); a("v_mov_b32 v7, 1")
        a("s_mov_b64 exec, 1")
        a("buffer_atomic_add v7, v6, s[%d:%d], 0 offen" % (RE, RE + 3))
        a("s_mov_b64 exec, -1")
        a.label(ni)
        self.in_srd(RD, P_SSMK, 4096, 68)
        sknt = "" if "sknont" in self.opt else "nt"
        late = "sklate" in self.opt
        def sk_loads():
            for i in range(16):
                a("buffer_load_dword v%d, v11, s[%d:%d], 0 offen offset:%d %s" % (128 + i, RD, RD + 3, 256 * i, sknt))
        if not late: sk_loads()
        nclr = 0
        if "clrprep" in self.opt:
            nclr = self.xbytes // 1024
            self.xch_srd(RA)
            for i in range(nclr):
                a("buffer_store_dwordx4 a[%d:%d], v10, s[%d:%d], %s offen offset:%d sc1" % (SENT, SENT + 3, RA, RA + 3, "0" if i < 4 else "s64", 1024 * (i & 3)))
        self.ws_srd(RC, WS_XRT, 4194304)
        a("v_sub_u32 v6, 31, v9"); a("v_lshlrev_b32 v7, 1, v8"); a("v_xor_b32 v6, v6, v7"); a("v_lshlrev_b32 v6, 3, v6")
        a("v_lshl_add_u32 v6, v8, 11, v6"); a("v_add_u32 v14, %d, v6" % PSTG)
        W, K, V, O = 80, 84, 92, 96
        def unpack(dst, src, hi):
            if hi: a("v_and_b32 v%d, s%d, v%d" % (dst, S_MASK, src))
            else: a("v_lshlrev_b32 v%d, 16, v%d" % (dst, src))
        if "xp" in self.opt: self.mark(26)
        self.shadow(["roles"] + self.sh_prep)
        if "xp" in self.opt: self.mark(27)
        a("s_waitcnt vmcnt(%d)" % ((0 if late else 16) + nclr))
        self.mark(0)
        W, K, V, O = 80, 88, 102, 110
        for d in range(4):
            for tap in range(4):
                for hi in range(2): unpack(W + 2 * tap + hi, SK + 2 * (2 * d + hi) + (tap >> 1), tap & 1)
            for i in range(7):
                for hi in range(2): unpack(K + 2 * i + hi, KR + 4 * i + d, hi)
            for j in range(4):
                for hi in range(2): unpack(V + 2 * j + hi, VR + 4 * j + d, hi)
            def pk(op, dst, *src): a("%s v[%d:%d], %s" % (op, dst, dst + 1, ", ".join("v[%d:%d]" % (r, r + 1) for r in src)))
            for j in range(4): pk("v_pk_mul_f32", O + 2 * j, K + 2 * j, W + 6)
            for tap in (1, 2, 3):
                for j in range(4): pk("v_pk_fma_f32", O + 2 * j, K + 2 * (j + tap), W + 2 * (3 - tap), O + 2 * j)
            for j in range(4): pk("v_pk_mul_f32", O + 2 * j, O + 2 * j, V + 2 * j)
            for hi in range(2):
                P = 120 + 2 * hi
                a("v_cvt_pk_bf16_f32 v%d, v%d, v%d" % (P, O + 6 + hi, O + 4 + hi))
                a("v_cvt_pk_bf16_f32 v%d, v%d, v%d" % (P + 1, O + 2 + hi, O + hi))
                a("ds_write_b64 v14, v[%d:%d] offset:%d" % (P, P + 1, (2 * d + hi) * 256))
        a("v_lshrrev_b32 v16, 4, v0"); a("v_and_b32 v17, 15, v0"); a("v_lshrrev_b32 v18, 7, v0")
        a("s_lshl_b32 s62, s61, 18"); a("s_lshl_b32 s63, s60, 8"); a("s_sub_u32 s62, s62, s63"); a("s_add_u32 s62, s62, 3840")
        a("v_lshlrev_b32 v19, 12, v16"); a("v_lshl_add_u32 v19, v17, 4, v19"); a("v_add_u32 v19, s62, v19")
        a("s_waitcnt lgkmcnt(0)")
        a("s_barrier")
        for i in range(4):
            a("v_add_u32 v20, %d, v18" % (2 * i)); a("v_xor_b32 v20, v20, v17"); a("v_lshlrev_b32 v20, 4, v20")
            a("v_lshl_add_u32 v20, v16, 8, v20"); a("v_add_u32 v20, %d, v20" % PSTG)
            a("ds_read_b128 v[%d:%d], v20 offset:%d" % (24 + 4 * i, 27 + 4 * i, i * 4096))
        a("v_mov_b32 v6, 0")
        a("buffer_load_dword v15, v6, s[%d:%d], 0 offen sc1" % (RE, RE + 3))
        for i in range(4):
            a("s_mov_b32 s63, %d" % (i * 16 * 4096))
            a("s_waitcnt lgkmcnt(%d)" % (3 - i))
            a("buffer_store_dwordx4 v[%d:%d], v19, s[%d:%d], s63 offen sc1" % (24 + 4 * i, 27 + 4 * i, RC, RC + 3))
        nyoung = 0
        if late:
            sk_loads(); nyoung += 16
        if "qw1" in self.opt:
            self.q_loads(); nyoung += 8
        self.mark(1)
        self.arrive(["s_lshl_b32 s58, s61, 7", "s_add_u32 s60, s58, %d" % (C1 * 128), "v_mov_b32 v7, s60"], vm=nyoung, check_init=15, init_target=NCLR)
        self.mark(2)

    def xch_srd(self, R):
        a = self.a
        a("s_lshl_b32 s58, s2, 2"); a("s_add_u32 s58, s58, s%d" % S_WAVE); a("s_mul_i32 s58, s58, %d" % self.xstr); a("s_add_u32 s58, s58, 0x%x" % WS_XCH)
        a("s_add_u32 s%d, s%d, s58" % (R, P_WS)); a("s_addc_u32 s%d, s%d, 0" % (R + 1, P_WS + 1))
        a("s_and_b32 s%d, s%d, 0xffff" % (R + 1, R + 1)); a("s_mov_b32 s%d, %d" % (R + 2, self.xbytes)); a("s_mov_b32 s%d, 0x00020000" % (R + 3))
    def q_loads(self):
        a = self.a
        self.in_srd(RD, P_Q, 4194304)
        qf = "" if "qnont" in self.opt else "nt"
        a("v_lshlrev_b32 v13, 3, v2")
        for tok in range(2):
            for i in range(4):
                r = 160 + 8 * tok + 2 * i
                a("buffer_load_dwordx2 a[%d:%d], v13, s[%d:%d], s70 offen offset:%d %s" % (r, r + 1, RD, RD + 3, 512 * i + 2048 * tok, qf))

    def conv(self):
        a = self.a
        a("s_add_u32 s58, s68, 0x%x" % WS_XRT)
        a("s_add_u32 s%d, s%d, s58" % (RA, P_WS)); a("s_addc_u32 s%d, s%d, 0" % (RA + 1, P_WS + 1))
        a("s_and_b32 s%d, s%d, 0xffff" % (RA + 1, RA + 1)); a("s_mov_b32 s%d, 4096" % (RA + 2)); a("s_mov_b32 s%d, 0x00020000" % (RA + 3))
        self.ws_srd(RB, WS_YB, 4194304)
        a("v_and_b32 v8, 15, v2"); a("v_lshrrev_b32 v9, 4, v2")
        a("v_and_b32 v3, 3, v8"); a("v_lshrrev_b32 v4, 2, v8")
        a("v_mul_u32_u24 v12, %d, v3" % KCOPY)
        a("v_add_u32 v13, v4, v9"); a("v_lshl_add_u32 v12, v13, 4, v12"); a("v_add_u32 v12, s67, v12")
        a("v_and_b32 v13, 1, v8"); a("v_lshrrev_b32 v14, 1, v8")
        a("v_mul_u32_u24 v15, %d, v13" % XSTR); a("v_lshl_add_u32 v15, v9, 4, v15")
        a("v_lshlrev_b32 v14, 6, v14"); a("v_sub_u32 v15, v15, v14")
        a("s_add_u32 s58, s67, %d" % (XB0 + 64 * 63 - 3584)); a("v_add_u32 v14, s58, v15")
        AD = 60
        a("v_lshlrev_b32 v15, 3, v4"); a("v_lshl_add_u32 v15, v3, 1, v15"); a("v_lshl_add_u32 v15, v9, 3, v15")
        for dd in range(4):
            a("v_cmp_eq_u32 vcc, %d, v15" % (30 - 2 * dd)); a("s_nop 1"); a("v_cndmask_b32 v%d, 0, v200, vcc" % (AD + dd))
        a("v_lshrrev_b32 v4, 4, v2"); a("v_mul_u32_u24 v4, %d, v4" % KCOPY); a("v_and_b32 v5, 15, v2"); a("v_lshl_add_u32 v4, v5, 2, v4")
        a("v_add_u32 v4, s67, v4"); a("v_mov_b32 v5, 0")
        a("ds_write_b32 v4, v5")
        def sk_copies():
            a("s_add_u32 s58, s67, 60"); a("v_add_u32 v3, s58, v11")
            for phi in range(4):
                if phi: a("v_add_u32 v3, %d, v3" % (KCOPY - 4))
                for i in range(8):
                    a("ds_write2st64_b32 v3, v%d, v%d offset0:%d offset1:%d" % (128 + 2 * i, 129 + 2 * i, 2 * i, 2 * i + 1))
        sklate = "sklate" in self.opt
        if not sklate: sk_copies()
        a("s_add_u32 s58, s67, %d" % XB0); a("v_add_u32 v4, s58, v10")
        for r in range(56, 60): a("v_mov_b32 v%d, 0" % r)
        a("s_mov_b64 exec, 0xfffffff")
        a("ds_write_b128 v4, v[56:59] offset:4096"); a("ds_write_b128 v4, v[56:59] offset:%d" % (XSTR + 4096))
        a("s_mov_b64 exec, -1")
        a("v_add_u32 v5, 16, v10")
        a("s_lshr_b32 s58, s65, 4"); a("s_lshl_b32 s58, s58, 7"); a("s_add_u32 s60, s58, %d" % (C1 * 128))
        def c1_shadow():
            self.shadow(self.sh_c1)
            if sklate:
                a("s_waitcnt vmcnt(0)")
                sk_copies()
        self.wait(60, 1, 16, shadow=c1_shadow)
        self.mark(3)
        XD = 16
        for i in range(4):
            a("buffer_load_dwordx4 v[%d:%d], v10, s[%d:%d], 0 offen offset:%d" % (XD + 8 * i, XD + 8 * i + 3, RA, RA + 3, 1024 * i))
        for i in range(4):
            a("buffer_load_dword v%d, v5, s[%d:%d], 0 offen offset:%d" % (XD + 8 * i + 4, RA, RA + 3, 1024 * i))
        for i in range(4):
            d = XD + 8 * i
            a("s_waitcnt vmcnt(%d)" % (7 - i))
            a("ds_write_b128 v4, v[%d:%d] offset:%d" % (d, d + 3, XSTR + 1024 * i))
        for i in range(4):
            d = XD + 8 * i
            a("s_waitcnt vmcnt(%d)" % (3 - i))
            for j in range(4):
                a("v_alignbit_b32 v%d, v%d, v%d, 16" % (48 + j + 4 * (i & 1), d + j + 1, d + j))
            a("ds_write_b128 v4, v[%d:%d] offset:%d" % (48 + 4 * (i & 1), 51 + 4 * (i & 1), 1024 * i))
        a("s_cmp_lt_u32 s%d, 2" % S_WAVE)
        a("s_cselect_b32 s%d, s%d, s%d" % (RC, P_WG, P_WU)); a("s_cselect_b32 s%d, s%d, s%d" % (RC + 1, P_WG + 1, P_WU + 1))
        a("s_and_b32 s%d, s%d, 0xffff" % (RC + 1, RC + 1)); a("s_mov_b32 s%d, %d" % (RC + 2, 1024 * 7168)); a("s_mov_b32 s%d, 0x00020000" % (RC + 3))
        if True:
            a("s_lshl_b32 s58, s2, 2"); a("s_add_u32 s58, s58, s%d" % S_WAVE); a("s_mul_i32 s58, s58, %d" % self.xstr); a("s_add_u32 s58, s58, 0x%x" % WS_XCH)
            a("s_add_u32 s%d, s%d, s58" % (RE, P_WS)); a("s_addc_u32 s%d, s%d, 0" % (RE + 1, P_WS + 1))
            a("s_and_b32 s%d, s%d, 0xffff" % (RE + 1, RE + 1)); a("s_mov_b32 s%d, %d" % (RE + 2, self.xbytes)); a("s_mov_b32 s%d, 0x00020000" % (RE + 3))
            a("s_mov_b32 s59, 0")
        if "hhpf" in self.opt:
            self.ws_srd(RA, WS_HH, 128 * 112 * 1024)
            a("s_lshl_b32 s60, s2, 2"); a("s_add_u32 s60, s60, s%d" % S_WAVE); a("s_mul_i32 s60, s60, 14336"); a("s_add_u32 s61, s60, 6144")
            a("v_lshlrev_b32 v3, 7, v2")
            fl = "nt" if "hhnt" in self.opt else "sc1" if "hhsc1" in self.opt else ""
            a("buffer_load_dword v15, v3, s[%d:%d], s60 offen %s" % (RA, RA + 3, fl))
            a("buffer_load_dword v15, v3, s[%d:%d], s61 offen %s" % (RA, RA + 3, fl))
        a("s_waitcnt lgkmcnt(0)")
        self.mark(4)
        ACC = 192
        def A(s, i): return 64 + 64 * s + 4 * i
        def B(s, i): return 96 + 64 * s + 4 * i
        def reads(s, rho_off):
            out = []
            for i in range(8):
                out.append("ds_read_b128 v[%d:%d], v14 offset:%d" % (B(s, i), B(s, i) + 3, 3584 - 512 * i + rho_off))
                out.append("ds_read_b128 v[%d:%d], v12 offset:%d" % (A(s, i), A(s, i) + 3, 512 * i + rho_off))
            return out
        def mfmas(s):
            out = []
            for m in range(8):
                for (x, y) in [(i, m) for i in range(m + 1)] + [(m, i) for i in range(m)]:
                    if x + y <= 7:
                        t = ACC + 4 * (x + y)
                        out.append("v_mfma_f32_16x16x32_bf16 v[%d:%d], v[%d:%d], v[%d:%d], v[%d:%d]" % (
                            t, t + 3, A(s, x), A(s, x) + 3, B(s, y), B(s, y) + 3, t, t + 3))
            return out
        for r in reads(0, 0): a(r)
        a("s_waitcnt lgkmcnt(0)")
        for tau in range(8):
            t = ACC + 4 * tau
            a("v_mfma_f32_16x16x32_bf16 v[%d:%d], v[%d:%d], v[%d:%d], 0" % (t, t + 3, AD, AD + 3, B(0, tau), B(0, tau) + 3))
        a("s_mov_b32 s58, 4")
        loop = a.new_label("conv"); a.label(loop)
        if "qw1" not in self.opt:
            nq = a.new_label("noq")
            a("s_cmp_lg_u32 s58, 3"); a("s_cbranch_scc1 %s" % nq)
            self.q_loads()
            a.label(nq)
        for half in range(2):
            if "nopf1" not in self.opt:
                a("buffer_load_dword v15, v224, s[%d:%d], 0 offen" % (RC, RC + 3))
                a("v_add_u32 v224, %d, v224" % (64 * 7168))
            rd = reads(1 - half, 64 * (half + 1)); mf = mfmas(half)
            k = 0
            for i, m in enumerate(mf):
                a(m)
                if i % 2 == 0 and k < len(rd): a(rd[k]); k += 1
                if (self.x32 or half == 0) and "x3noclr" not in self.opt and "clrprep" not in self.opt:
                    if i == 33: a("buffer_store_dwordx4 a[%d:%d], v10, s[%d:%d], s59 offen sc1" % (SENT, SENT + 3, RE, RE + 3))
                    if i == 35: a("s_add_u32 s59, s59, 1024")
            a("s_waitcnt lgkmcnt(0)")
        a("v_add_u32 v12, 128, v12"); a("v_add_u32 v14, 128, v14")
        a("s_sub_u32 s58, s58, 1"); a("s_cmp_lg_u32 s58, 0"); a("s_cbranch_scc1 %s" % loop)
        self.mark(5)
        a("s_nop 7")
        for tau in range(8):
            t = ACC + 4 * tau; P = 16 + 8 * (tau & 1)
            a("v_cvt_pk_bf16_f32 v%d, v%d, v%d" % (P, t, t + 2)); a("v_cvt_pk_bf16_f32 v%d, v%d, v%d" % (P + 1, t + 1, t + 3))
            a("s_nop 1")
            a("v_mov_b32_dpp v%d, v%d quad_perm:[1,0,3,2] row_mask:0xf bank_mask:0xf" % (P + 2, P))
            a("v_mov_b32_dpp v%d, v%d quad_perm:[1,0,3,2] row_mask:0xf bank_mask:0xf" % (P + 3, P + 1))
            a("v_perm_b32 v%d, v%d, v%d, v226" % (P + 4, P + 2, P)); a("v_perm_b32 v%d, v%d, v%d, v226" % (P + 5, P + 3, P + 1))
            off = tau * (32 * 64 + 8 * 16)
            a("ds_write_b32 v227, v%d offset:%d" % (P + 4, off)); a("ds_write_b32 v227, v%d offset:%d" % (P + 5, off + 16))
        a("s_waitcnt lgkmcnt(0)")
        a("s_barrier")
        for i in range(4):
            a("ds_read_b128 v[%d:%d], v228 offset:%d" % (16 + 4 * i, 19 + 4 * i, i * (64 * 64 + 16 * 16)))
        for i in range(4):
            a("s_mov_b32 s58, %d" % (i * 64 * 16384))
            a("s_waitcnt lgkmcnt(%d)" % (3 - i))
            a("buffer_store_dwordx4 v[%d:%d], v229, s[%d:%d], s58 offen sc1" % (16 + 4 * i, 19 + 4 * i, RB, RB + 3))
        self.arrive(["s_and_b32 s58, s2, 15", "s_lshl_b32 s58, s58, 7", "s_add_u32 s60, s58, %d" % (C2 * 128),
                     "v_lshlrev_b32 v7, 11, v2", "v_add_u32 v7, s60, v7"], nlanes=16)
        self.mark(6)

    def shadow(self, parts):
        a = self.a
        T = 104
        if "roles" in parts:
            a("s_and_b32 s83, s%d, 7" % S_J); a("s_lshr_b32 s59, s%d, 3" % S_J)
            a("s_lshl_b32 s72, s%d, 2" % S_X); a("s_add_u32 s72, s72, s59")
            a("s_lshl_b32 s73, s83, 4"); a("s_lshl_b32 s59, s%d, 2" % S_WAVE); a("s_add_u32 s73, s73, s59")
            a("s_mul_i32 s74, s%d, 7168" % S_WAVE)
            a("s_mov_b32 s75, 0"); a("s_mov_b32 s76, 0"); a("s_mov_b32 s77, 0"); a("s_mov_b32 s78, 0")
            a("s_and_b32 s86, s%d, 1" % S_X)
            a("s_bfe_u32 s58, s%d, 0x10001" % S_X); a("s_lshl_b32 s58, s58, 3"); a("s_and_b32 s59, s%d, 7" % S_J); a("s_add_u32 s84, s58, s59")
            a("s_lshr_b32 s58, s%d, 2" % S_X); a("s_lshl_b32 s58, s58, 2"); a("s_lshr_b32 s59, s%d, 3" % S_J); a("s_add_u32 s85, s58, s59")
            a("s_lshl_b32 s87, s84, 3"); a("s_lshl_b32 s58, s%d, 1" % S_WAVE); a("s_add_u32 s87, s87, s58")
        if "g1" in parts:
            a("s_and_b32 s58, s%d, 1" % S_WAVE); a("s_lshl_b32 s58, s58, 5")
            a("s_mul_i32 s59, s72, 224")
            a("s_mov_b32 s62, 4682"); a("s_mov_b32 s63, 7168")
            a("s_and_b32 s101, s72, 1"); a("s_lshl_b32 s101, s101, 1")
            for i in range(7):
                a("v_add_u32 v%d, %d, v2" % (T, 64 * i))
                a("v_mul_u32_u24 v%d, s62, v%d" % (T + 1, T)); a("v_lshrrev_b32 v%d, 16, v%d" % (T + 1, T + 1))
                a("v_mul_u32_u24 v%d, 14, v%d" % (T + 2, T + 1)); a("v_sub_u32 v%d, v%d, v%d" % (T + 2, T, T + 2))
                a("v_add_u32 v%d, s101, v%d" % (T + 2, T + 2)); a("v_subrev_u32 v%d, 14, v%d" % (T + 4, T + 2)); a("v_min_u32 v%d, v%d, v%d" % (T + 2, T + 2, T + 4))
                a("v_bfe_u32 v%d, v%d, 2, 2" % (T + 3, T + 1)); a("v_lshlrev_b32 v%d, 3, v%d" % (T + 3, T + 3))
                a("v_lshrrev_b32 v%d, 4, v%d" % (T + 4, T + 1)); a("v_lshl_add_u32 v%d, v%d, 2, v%d" % (T + 3, T + 4, T + 3))
                a("v_and_b32 v%d, 3, v%d" % (T + 4, T + 1)); a("v_add3_u32 v%d, v%d, v%d, s58" % (T + 3, T + 3, T + 4))
                a("v_mul_u32_u24 v%d, s63, v%d" % (T + 3, T + 3))
                a("v_lshl_add_u32 v%d, v%d, 4, v%d" % (T + 3, T + 2, T + 3))
                a("v_add_u32 v%d, s59, v%d" % (T + 3, T + 3))
                if i & 3: a("v_subrev_u32 v%d, %d, v%d" % (T + 3, 1024 * (i & 3), T + 3))
                self.stash("g1w%d" % i, T + 3)
            a("v_lshlrev_b32 v%d, 4, v2" % T)
            a("s_lshl_b32 s58, s73, 15"); a("v_add_u32 v%d, s58, v%d" % (T + 1, T)); self.stash("g1t", T + 1)
            a("v_lshrrev_b32 v%d, 2, v2" % (T + 1)); a("v_mul_u32_u24 v%d, 224, v%d" % (T + 1, T + 1))
            a("v_and_b32 v%d, 3, v2" % (T + 2)); a("v_lshl_add_u32 v%d, v%d, 3, v%d" % (T + 1, T + 2, T + 1)); self.stash("g1f", T + 1)
            a("v_and_b32 v%d, 15, v2" % (T + 1)); a("v_lshlrev_b32 v%d, 4, v%d" % (T + 1, T + 1)); a("v_lshrrev_b32 v%d, 5, v2" % (T + 2))
            a("v_lshl_add_u32 v%d, v%d, 8, v%d" % (T + 1, T + 2, T + 1)); a("v_bfe_u32 v%d, v2, 4, 1" % (T + 2))
            a("v_lshl_add_u32 v%d, v%d, 9, v%d" % (T + 3, T + 2, T + 1)); self.stash("g1ep", T + 3)
            a("v_mul_u32_u24 v%d, %d, v%d" % (T + 2, 112 * 1024, T + 2)); a("v_add_u32 v%d, v%d, v%d" % (T + 3, T + 2, T + 1)); self.stash("g1es", T + 3)
        if "g2" in parts:
            a("s_mul_i32 s58, s86, 1792"); a("s_lshr_b32 s59, s%d, 1" % S_WAVE); a("s_mul_i32 s59, s59, %d" % (32 if "x2nat" in self.opt else 224)); a("s_add_u32 s58, s58, s59")
            a("s_lshl_b32 s58, s58, 11")
            a("s_lshl_b32 s59, s85, 8"); a("s_add_u32 s58, s58, s59")
            a("s_and_b32 s59, s%d, 1" % S_WAVE); a("s_xor_b32 s59, s59, s86"); a("s_lshl_b32 s59, s59, 7"); a("s_add_u32 s58, s58, s59")
            a("v_lshrrev_b32 v%d, 5, v2" % T); a("v_lshlrev_b32 v%d, 3, v%d" % (T, T)); a("v_bfe_u32 v%d, v2, 3, 2" % (T + 1))
            a("v_add_u32 v%d, v%d, v%d" % (T, T, T + 1)); a("v_lshlrev_b32 v%d, 11, v%d" % (T, T))
            a("v_bfe_u32 v%d, v2, 4, 2" % (T + 1)); a("v_lshlrev_b32 v%d, 1, v%d" % (T + 1, T + 1)); a("v_and_b32 v%d, 7, v2" % (T + 2))
            a("v_xor_b32 v%d, v%d, v%d" % (T + 1, T + 1, T + 2))
            a("v_lshl_add_u32 v%d, v%d, 4, v%d" % (T, T + 1, T)); a("v_add_u32 v%d, s58, v%d" % (T, T)); self.stash("g2w", T)
            a("v_lshrrev_b32 v%d, 2, v2" % T); a("v_lshlrev_b32 v%d, 7, v%d" % (T, T))
            a("v_and_b32 v%d, 3, v2" % (T + 1)); a("v_lshl_add_u32 v%d, v%d, 3, v%d" % (T, T + 1, T))
            a("v_bfe_u32 v%d, v2, 3, 2" % (T + 1))
            for c in range(4):
                a("v_xor_b32 v%d, %d, v%d" % (T + 2, c, T + 1)); a("v_lshl_add_u32 v%d, v%d, 5, v%d" % (T + 2, T + 2, T)); self.stash("g2f%d" % c, T + 2)
            a("s_lshl_b32 s88, s%d, 12" % S_WAVE)
            a("v_lshlrev_b32 v%d, 4, v2" % T)
            a("s_mul_i32 s58, s87, %d" % (112 * 1024)); a("s_mul_i32 s59, s86, %d" % (56 * 1024)); a("s_add_u32 s58, s58, s59")
            a("v_add_u32 v%d, s58, v%d" % (T + 1, T)); self.stash("g2t0", T + 1)
            a("v_add_u32 v%d, %d, v%d" % (T + 1, 112 * 1024, T + 1)); self.stash("g2t1", T + 1)
            a("s_lshl_b32 s58, s87, 15"); a("s_lshl_b32 s59, s85, 8"); a("s_add_u32 s58, s58, s59"); a("s_lshl_b32 s59, s86, 7"); a("s_add_u32 s58, s58, s59")
            a("v_and_b32 v%d, 15, v2" % T); a("v_lshlrev_b32 v%d, 11, v%d" % (T, T))
            a("v_bfe_u32 v%d, v2, 4, 1" % (T + 1)); a("v_lshl_add_u32 v%d, v%d, 5, v%d" % (T, T + 1, T))
            a("v_lshrrev_b32 v%d, 5, v2" % (T + 1)); a("v_lshl_add_u32 v%d, v%d, 4, v%d" % (T, T + 1, T))
            a("v_add_u32 v%d, s58, v%d" % (T, T)); self.stash("g2o4", T)
            a("v_lshrrev_b32 v%d, 2, v2" % T); a("v_lshrrev_b32 v%d, 1, v%d" % (T + 1, T)); a("v_and_b32 v%d, 1, v%d" % (T, T))
            a("v_lshl_add_u32 v%d, v%d, 2, v%d" % (T, T, T + 1))
            if "rot2" in self.opt:
                a("s_lshr_b32 s58, s%d, 3" % S_J); a("s_add_u32 s58, s58, s%d" % S_J); a("v_add_u32 v%d, s58, v2" % (T + 1)); a("v_and_b32 v%d, 3, v%d" % (T + 1, T + 1))
            elif "rot2b" in self.opt:
                a("v_add_u32 v%d, s%d, v2" % (T + 1, S_J)); a("v_and_b32 v%d, 3, v%d" % (T + 1, T + 1))
            elif "rot2c" in self.opt:
                a("s_lshr_b32 s58, s%d, 3" % S_J); a("v_add_u32 v%d, s58, v2" % (T + 1)); a("v_and_b32 v%d, 3, v%d" % (T + 1, T + 1))
            else:
                a("v_and_b32 v%d, 3, v2" % (T + 1))
            a("v_mad_u32_u24 v%d, v%d, 14, v%d" % (T, T + 1, T))
            if "x2nat" in self.opt: a("v_lshlrev_b32 v%d, 1, v2" % T)
            a("v_lshlrev_b32 v%d, 16, v%d" % (T, T)); self.stash("g2tab", T)
            for t in range(4): a("v_readlane_b32 s%d, v%d, %d" % (G2_ROW[t], T, t))
            a("s_lshl_b32 s58, s83, 1"); a("s_lshr_b32 s59, s72, 4"); a("s_add_u32 s58, s58, s59"); a("s_lshl_b32 s58, s58, 2"); a("s_add_u32 s58, s58, s%d" % S_WAVE)
            a("s_lshl_b32 s58, s58, 8"); a("s_add_u32 s58, s58, %d" % (C4 * 128))
            a("v_lshlrev_b32 v%d, 7, v2" % T); a("v_add_u32 v%d, s58, v%d" % (T, T)); a("v_mov_b32 v%d, 0x7fffff00" % (T + 1))
            a("v_cmp_gt_u32 vcc, 2, v2"); a("s_nop 1"); a("v_cndmask_b32 v%d, v%d, v%d, vcc" % (T, T + 1, T)); self.stash("c4a", T)
            a("s_lshr_b32 s58, s84, 1"); a("s_lshl_b32 s58, s58, 1"); a("s_add_u32 s58, s58, s86"); a("s_lshl_b32 s58, s58, 2")
            a("s_and_b32 s59, s84, 1"); a("s_lshl_b32 s59, s59, 1"); a("s_add_u32 s58, s58, s59"); a("s_lshr_b32 s59, s%d, 1" % S_WAVE); a("s_add_u32 s58, s58, s59")
            a("s_lshl_b32 s58, s58, 1"); a("s_lshr_b32 s59, s%d, 2" % S_X); a("s_add_u32 s58, s58, s59"); a("s_lshl_b32 s58, s58, 7"); a("s_add_u32 s58, s58, %d" % (C4 * 128))
            a("v_mov_b32 v%d, s58" % T); self.stash("c4p", T)
        if "pf" in parts:
            a("v_mov_b32 v%d, 0x7fffffff" % (T + 3))
            a("s_lshl_b32 s58, s%d, 1" % S_J); a("s_and_b32 s59, s%d, 1" % S_WAVE); a("s_add_u32 s58, s58, s59")
            a("s_mul_i32 s62, s58, 7168"); a("s_mul_i32 s59, s%d, 896" % S_X); a("s_add_u32 s62, s62, s59")
            a("v_lshlrev_b32 v%d, 7, v2" % T); a("v_add_u32 v%d, s62, v%d" % (T + 1, T))
            a("v_cmp_gt_u32 vcc, 7, v2"); a("s_nop 1"); a("v_cndmask_b32 v224, v%d, v%d, vcc" % (T + 3, T + 1))
            if self.pffast:
                a("s_and_b32 s58, s%d, 7" % S_J); a("s_lshr_b32 s62, s%d, 4" % S_J); a("s_lshl_b32 s62, s62, 3"); a("s_add_u32 s100, s58, s62")
                a("s_lshl_b32 s58, s100, 1"); a("s_and_b32 s62, s%d, 1" % S_WAVE); a("s_add_u32 s58, s58, s62")
            a("s_lshl_b32 s58, s58, 2"); a("s_add_u32 s58, s58, 512"); a("s_mul_i32 s58, s58, 7168"); a("s_add_u32 s58, s58, s59")
            a("s_mov_b32 s62, 9363")
            a("v_mul_u32_u24 v%d, s62, v2" % T); a("v_lshrrev_b32 v%d, 16, v%d" % (T, T))
            a("v_mul_u32_u24 v%d, 7, v%d" % (T + 1, T)); a("v_sub_u32 v%d, v2, v%d" % (T + 1, T + 1))
            a("v_mul_u32_u24 v%d, 7168, v%d" % (T, T)); a("v_lshl_add_u32 v%d, v%d, 7, v%d" % (T, T + 1, T)); a("v_add_u32 v%d, s58, v%d" % (T, T))
            a("v_cmp_gt_u32 vcc, 28, v2"); a("s_nop 1"); a("v_cndmask_b32 v%d, v%d, v%d, vcc" % (T, T + 3, T)); self.stash("pfw", T)
            a("s_lshl_b32 s58, s%d, 2" % (100 if self.pffast else S_J)); a("s_add_u32 s58, s58, s%d" % S_WAVE); a("s_mul_i32 s58, s58, 5"); a("s_add_u32 s58, s58, 1152")
            a("s_mul_i32 s59, s86, 1792"); a("s_add_u32 s58, s58, s59"); a("s_lshl_b32 s58, s58, 11")
            a("s_lshr_b32 s59, s85, 2"); a("s_lshl_b32 s59, s59, 10"); a("s_add_u32 s58, s58, s59")
            a("v_lshrrev_b32 v%d, 3, v2" % T); a("v_lshlrev_b32 v%d, 11, v%d" % (T, T)); a("v_and_b32 v%d, 7, v2" % (T + 1))
            a("v_lshl_add_u32 v%d, v%d, 7, v%d" % (T, T + 1, T)); a("v_add_u32 v%d, s58, v%d" % (T, T))
            a("v_cmp_gt_u32 vcc, %d, v2" % (0 if "nopfd" in self.opt else 40)); a("s_nop 1"); a("v_cndmask_b32 v%d, v%d, v%d, vcc" % (T, T + 3, T)); self.stash("pfd", T)
            if self.pffast:
                a("s_and_b32 s92, s%d, 1" % S_J)
                a("s_lshr_b32 s58, s%d, 3" % S_J); a("s_add_u32 s58, s58, 1"); a("s_and_b32 s58, s58, 2"); a("s_or_b32 s92, s92, s58")
            else:
                a("s_and_b32 s92, s%d, 3" % S_J)
        if "ln" in parts:
            a("v_and_b32 v%d, 1, v2" % T); a("v_lshrrev_b32 v%d, 1, v2" % (T + 1))
            a("v_lshlrev_b32 v%d, 11, v%d" % (T + 2, T)); a("v_lshl_add_u32 v%d, v%d, 4, v%d" % (T + 2, T + 1, T + 2)); self.stash("lnh", T + 2)
            a("s_lshl_b32 s58, s%d, 4" % S_WAVE); a("s_add_u32 s58, s58, %d" % PSTG)
            a("v_lshlrev_b32 v%d, 6, v2" % (T + 2)); a("v_add_u32 v%d, s58, v%d" % (T + 2, T + 2)); self.stash("lny", T + 2)
            a("s_lshl_b32 s58, s%d, 5" % S_WAVE); a("s_add_u32 s58, s58, %d" % CSTG)
            a("v_lshlrev_b32 v%d, 7, v%d" % (T + 2, T + 1)); a("v_lshl_add_u32 v%d, v%d, 4, v%d" % (T + 2, T, T + 2)); a("v_add_u32 v%d, s58, v%d" % (T + 2, T + 2))
            self.stash("lnw", T + 2)
            a("v_lshlrev_b32 v%d, 4, v0" % (T + 2)); a("v_add_u32 v%d, %d, v%d" % (T + 2, CSTG, T + 2)); self.stash("lnr", T + 2)
            a("v_lshrrev_b32 v%d, 5, v0" % (T + 2)); a("v_lshlrev_b32 v%d, 10, v%d" % (T + 2, T + 2))
            a("v_bfe_u32 v%d, v0, 3, 2" % (T + 3)); a("v_lshl_add_u32 v%d, v%d, 8, v%d" % (T + 2, T + 3, T + 2))
            a("v_and_b32 v%d, 7, v0" % (T + 3)); a("v_lshl_add_u32 v%d, v%d, 4, v%d" % (T + 2, T + 3, T + 2)); self.stash("lng", T + 2)
        if "cv" in parts:
            a("v_and_b32 v%d, 1, v2" % T)
            a("v_mov_b32 v226, 0x05040100"); a("v_mov_b32 v%d, 0x03020706" % (T + 1))
            a("v_cmp_eq_u32 vcc, 1, v%d" % T); a("s_nop 1"); a("v_cndmask_b32 v226, v226, v%d, vcc" % (T + 1))
            a("v_bfe_u32 v%d, v2, 1, 3" % (T + 1)); a("v_lshrrev_b32 v%d, 4, v2" % (T + 2))
            a("v_mul_u32_u24 v227, 272, v%d" % (T + 1)); a("v_lshl_add_u32 v227, v%d, 6, v227" % (T + 2)); a("v_lshl_add_u32 v227, v%d, 5, v227" % T)
            a("s_lshl_b32 s58, s%d, 2" % S_WAVE); a("s_add_u32 s58, s58, %d" % CSTG); a("v_add_u32 v227, s58, v227")
            a("v_lshrrev_b32 v%d, 2, v0" % T); a("v_and_b32 v%d, 3, v0" % (T + 1)); a("v_lshrrev_b32 v%d, 4, v0" % (T + 2))
            a("v_lshlrev_b32 v228, 6, v%d" % T); a("v_lshl_add_u32 v228, v%d, 4, v228" % (T + 2)); a("v_lshl_add_u32 v228, v%d, 4, v228" % (T + 1))
            a("v_add_u32 v228, %d, v228" % CSTG)
            a("v_lshlrev_b32 v229, 14, v%d" % T); a("v_lshl_add_u32 v229, v%d, 4, v229" % (T + 1)); a("s_lshl_b32 s58, s65, 6"); a("v_add_u32 v229, s58, v229")

    def g1_setup(self):
        a = self.a
        a("s_cmp_lt_u32 s%d, 2" % S_WAVE)
        a("s_cselect_b32 s%d, s%d, s%d" % (RA, P_WG, P_WU)); a("s_cselect_b32 s%d, s%d, s%d" % (RA + 1, P_WG + 1, P_WU + 1))
        a("s_and_b32 s%d, s%d, 0xffff" % (RA + 1, RA + 1)); a("s_mov_b32 s%d, %d" % (RA + 2, 1024 * 7168)); a("s_mov_b32 s%d, 0x00020000" % (RA + 3))
        for i in range(7): self.unstash("g1w%d" % i, 8 + i)
        self.in_srd(RE, P_WD, 3584 * 2048)
    def g1_wload_list(self):
        L = []
        for st in range(3):
            L.append("s_add_u32 m0, s75, s74")
            for i in range(7):
                if i == 4: L.append("s_add_u32 m0, m0, 4096")
                L.append(self.g1_dma(i))
            L.append("s_add_u32 s77, s77, %d" % (64 * 7168)); L.append("s_add_u32 s75, s75, %d" % G1_STAGE)
        return L
    def merged(self, body, fillers, start=0):
        keep = self.a; tmp = Asm(); tmp.uid = keep.uid + 1000; self.a = tmp
        body()
        self.a = keep; keep.uid = tmp.uid
        lines = tmp.lines
        n = max(1, (len(lines) - start) // (len(fillers) + 1))
        k = 0
        for i, l in enumerate(lines):
            keep.lines.append(l)
            if i >= start and (i - start) % n == n - 1 and k < len(fillers): keep(fillers[k]); k += 1
        for x in fillers[k:]: keep("s_nop 0"); keep(x)
    def g1_dma(self, i):
        fl = "nt" if "g1nt" in self.opt else "sc1" if "g1sc1" in self.opt else ""
        return "buffer_load_dwordx4 v%d, s[%d:%d], s77 offen offset:%d %s lds" % (8 + i, RA, RA + 3, 1024 * (i & 3), fl)
    def g1_wload_all(self):
        a = self.a
        a("s_add_u32 m0, s75, s74"); a("s_nop 0")
        for i in range(7):
            if i == 4: a("s_add_u32 m0, m0, 4096"); a("s_nop 0")
            a(self.g1_dma(i))
        a("s_add_u32 s77, s77, %d" % (64 * 7168)); a("s_add_u32 s75, s75, %d" % G1_STAGE)

    def reduce4(self, regs, sdst):
        a = self.a
        def step(mod):
            for r in regs: a("v_add_f32_dpp v%d, v%d, v%d %s" % (r, r, r, mod))
        a("s_nop 1")
        step("quad_perm:[1,0,3,2] row_mask:0xf bank_mask:0xf"); step("quad_perm:[2,3,0,1] row_mask:0xf bank_mask:0xf")
        step("row_half_mirror row_mask:0xf bank_mask:0xf"); step("row_mirror row_mask:0xf bank_mask:0xf")
        step("row_bcast:15 row_mask:0xa bank_mask:0xf"); step("row_bcast:31 row_mask:0xc bank_mask:0xf")
        a("s_nop 0")
        for r, s in zip(regs, sdst): a("v_readlane_b32 s%d, v%d, 63" % (s, r))
    def ln_scalars(self, sS, T):
        a = self.a
        t0, t1, t2, t3, t4, t5 = T + 8, T + 9, T + 10, T + 11, T + 12, T + 13
        M = S_MASK
        a("s_nop 1")
        a("v_mul_f32 v%d, s%d, v%d" % (t0, sS[0], T + 14)); a("v_mul_f32 v%d, s%d, v%d" % (t1, sS[2], T + 14))
        a("v_mul_f32 v%d, s%d, v%d" % (t2, sS[1], T + 14)); a("v_mul_f32 v%d, s%d, v%d" % (t3, sS[3], T + 14))
        a("v_fma_f32 v%d, -v%d, v%d, v%d" % (t2, t0, t0, t2)); a("v_fma_f32 v%d, -v%d, v%d, v%d" % (t3, t1, t1, t3))
        a("v_max_f32 v%d, 0, v%d" % (t2, t2)); a("v_max_f32 v%d, 0, v%d" % (t3, t3))
        a("v_cvt_pk_bf16_f32 v%d, v%d, v%d" % (t4, t0, t1)); a("v_cvt_pk_bf16_f32 v%d, v%d, v%d" % (t5, t2, t3))
        a("v_lshlrev_b32 v%d, 16, v%d" % (t0, t4)); a("v_and_b32 v%d, s%d, v%d" % (t1, M, t4))
        a("v_lshlrev_b32 v%d, 16, v%d" % (t2, t5)); a("v_and_b32 v%d, s%d, v%d" % (t3, M, t5))
        a("v_add_f32 v%d, s%d, v%d" % (t2, S_EPS, t2)); a("v_add_f32 v%d, s%d, v%d" % (t3, S_EPS, t3))
        a("v_cvt_pk_bf16_f32 v%d, v%d, v%d" % (t5, t2, t3))
        a("v_lshlrev_b32 v%d, 16, v%d" % (t2, t5)); a("v_and_b32 v%d, s%d, v%d" % (t3, M, t5))
        a("v_sqrt_f32 v%d, v%d" % (t2, t2)); a("v_sqrt_f32 v%d, v%d" % (t3, t3)); a("s_nop 0")
        a("v_cvt_pk_bf16_f32 v%d, v%d, v%d" % (t5, t2, t3))
        a("v_lshlrev_b32 v%d, 16, v%d" % (t2, t5)); a("v_and_b32 v%d, s%d, v%d" % (t3, M, t5))
        a("v_rcp_f32 v%d, v%d" % (T + 0, t2)); a("v_rcp_f32 v%d, v%d" % (T + 4, t3)); a("s_nop 0")
        a("v_mul_f32 v%d, v%d, v%d" % (T + 2, t0, T + 0)); a("v_mul_f32 v%d, v%d, v%d" % (T + 6, t1, T + 4))
        a("v_sub_f32 v%d, 0, v%d" % (T + 2, T + 2)); a("v_sub_f32 v%d, 0, v%d" % (T + 6, T + 6))
    def stats(self, X, acc):
        a = self.a
        for tok in range(2):
            b = X + 16 * tok; S = acc + 4 * tok; Q = S + 2
            a("v_pk_add_f32 v[%d:%d], v[%d:%d], v[%d:%d]" % (S, S + 1, b, b + 1, b + 2, b + 3))
            a("v_pk_mul_f32 v[%d:%d], v[%d:%d], v[%d:%d]" % (Q, Q + 1, b, b + 1, b, b + 1))
        for p in range(1, 8):
            for tok in range(2):
                b = X + 16 * tok + 2 * p; S = acc + 4 * tok; Q = S + 2
                if p >= 2: a("v_pk_add_f32 v[%d:%d], v[%d:%d], v[%d:%d]" % (S, S + 1, S, S + 1, b, b + 1))
                a("v_pk_fma_f32 v[%d:%d], v[%d:%d], v[%d:%d], v[%d:%d]" % (Q, Q + 1, b, b + 1, b, b + 1, Q, Q + 1))
        for r in (0, 2, 4, 6): a("v_add_f32 v%d, v%d, v%d" % (acc + r, acc + r, acc + r + 1))
    def ln(self):
        a = self.a
        M = S_MASK
        X, L1, Y, YR, HP, ACC, T = 32, 64, 96, 128, 144, 160, 168
        LP, U = 128, 96
        def ln1():
            a = self.a
            a("v_mov_b32 v%d, 0x3a800000" % (T + 14))
            for tok in range(2):
                for p in range(8):
                    dst = X + 16 * tok + 2 * p
                    a("v_accvgpr_read_b32 v3, a%d" % (160 + 8 * tok + p))
                    a("v_lshlrev_b32 v%d, 16, v3" % dst); a("v_and_b32 v%d, s%d, v3" % (dst + 1, M))
            self.stats(X, ACC)
            self.reduce4([ACC, ACC + 2, ACC + 4, ACC + 6], [60, 61, 62, 63])
            self.ln_scalars([60, 61, 62, 63], T)
            for tok in range(2):
                r, c = T + 4 * tok, T + 4 * tok + 2
                for p in range(8):
                    x = X + 16 * tok + 2 * p; l = L1 + 16 * tok + 2 * p
                    a("v_pk_fma_f32 v[%d:%d], v[%d:%d], v[%d:%d], v[%d:%d] op_sel_hi:[1,0,0]" % (l, l + 1, x, x + 1, r, r + 1, c, c + 1))
        self.merged(ln1, self.g1_wload_list())
        self.ws_srd(RB, WS_YB, 4194304); self.ws_srd(RC, WS_H, 4194304); self.ws_srd(RD, WS_LN2, 4194304)
        a("v_lshlrev_b32 v24, 4, v2")
        self.unstash("lnh", 4); self.unstash("lny", 5); self.unstash("lnw", 16); self.unstash("lnr", 17); self.unstash("lng", 18)
        a("s_lshl_b32 s61, s%d, 12" % S_WAVE); a("s_lshl_b32 s62, s2, 14"); a("s_add_u32 s62, s62, s61")
        a("s_add_u32 s61, s61, %d" % PSTG)
        a("s_and_b32 s60, s2, 15"); a("s_lshl_b32 s60, s60, 11"); a("s_add_u32 s60, s60, %d" % (C2 * 128))
        self.mark(7)
        self.wait(60, 16, 16)
        self.mark(8)
        a("s_mov_b32 m0, s61"); a("s_nop 0")
        for i in range(4):
            a("buffer_load_dwordx4 v24, s[%d:%d], s62 offen offset:%d lds" % (RB, RB + 3, 1024 * i))
        a("s_waitcnt vmcnt(0)")
        a("s_barrier")
        for i in range(4):
            a("ds_read_b128 v[%d:%d], v5 offset:%d" % (YR + 4 * i, YR + 4 * i + 3, 4096 * i))
        for i in range(4):
            a("s_waitcnt lgkmcnt(%d)" % (3 - i))
            for c in range(4):
                a("v_lshlrev_b32 v%d, 16, v%d" % (Y + 4 * i + c, YR + 4 * i + c)); a("v_and_b32 v%d, s%d, v%d" % (Y + 16 + 4 * i + c, M, YR + 4 * i + c))
        for tok in range(2):
            for p in range(8):
                x = X + 16 * tok + 2 * p; y = Y + 16 * tok + 2 * p; l = L1 + 16 * tok + 2 * p
                a("v_pk_fma_f32 v[%d:%d], v[%d:%d], v[%d:%d], v[%d:%d]" % (l, l + 1, l, l + 1, y, y + 1, x, x + 1))
                a("v_cvt_pk_bf16_f32 v%d, v%d, v%d" % (HP + 8 * tok + p, l, l + 1))
        HU = 184
        a("s_mov_b32 vcc_lo, 0x55555555"); a("s_mov_b32 vcc_hi, 0x55555555"); a("s_nop 1")
        for i in range(4):
            for d in range(2):
                a("v_cndmask_b32_dpp v%d, v%d, v%d, vcc quad_perm:[1,0,3,2] row_mask:0xf bank_mask:0xf" % (HU + 4 * i + d, HP + 8 + 2 * i + d, HP + 2 * i + d))
        a("s_mov_b32 vcc_lo, 0xaaaaaaaa"); a("s_mov_b32 vcc_hi, 0xaaaaaaaa"); a("s_nop 1")
        for i in range(4):
            for d in range(2):
                a("v_cndmask_b32_dpp v%d, v%d, v%d, vcc quad_perm:[1,0,3,2] row_mask:0xf bank_mask:0xf" % (HU + 4 * i + 2 + d, HP + 2 * i + d, HP + 8 + 2 * i + d))
        for i in range(4):
            if "x3noh" in self.opt: continue
            a("buffer_store_dwordx4 v[%d:%d], v4, s[%d:%d], s70 offen offset:%d sc1" % (HU + 4 * i, HU + 4 * i + 3, RC, RC + 3, 512 * i))
        for tok in range(2):
            for p in range(8):
                src = HP + 8 * tok + p; dst = X + 16 * tok + 2 * p
                a("v_lshlrev_b32 v%d, 16, v%d" % (dst, src)); a("v_and_b32 v%d, s%d, v%d" % (dst + 1, M, src))
        self.stats(X, ACC)
        self.reduce4([ACC, ACC + 2, ACC + 4, ACC + 6], [60, 61, 62, 63])
        self.ln_scalars([60, 61, 62, 63], T)
        for tok in range(2):
            r, c = T + 4 * tok, T + 4 * tok + 2
            for p in range(8):
                x = X + 16 * tok + 2 * p
                a("v_pk_fma_f32 v[%d:%d], v[%d:%d], v[%d:%d], v[%d:%d] op_sel_hi:[1,0,0]" % (ACC, ACC + 1, x, x + 1, r, r + 1, c, c + 1))
                a("v_cvt_pk_bf16_f32 v%d, v%d, v%d" % (LP + 8 * tok + p, ACC, ACC + 1))
        a("s_mov_b32 vcc_lo, 0x55555555"); a("s_mov_b32 vcc_hi, 0x55555555"); a("s_nop 1")
        for i in range(4):
            for d in range(2):
                a("v_cndmask_b32_dpp v%d, v%d, v%d, vcc quad_perm:[1,0,3,2] row_mask:0xf bank_mask:0xf" % (U + 4 * i + d, LP + 8 + 2 * i + d, LP + 2 * i + d))
        a("s_mov_b32 vcc_lo, 0xaaaaaaaa"); a("s_mov_b32 vcc_hi, 0xaaaaaaaa"); a("s_nop 1")
        for i in range(4):
            for d in range(2):
                a("v_cndmask_b32_dpp v%d, v%d, v%d, vcc quad_perm:[1,0,3,2] row_mask:0xf bank_mask:0xf" % (U + 4 * i + 2 + d, LP + 2 * i + d, LP + 8 + 2 * i + d))
        for i in range(4):
            a("ds_write_b128 v16, v[%d:%d] offset:%d" % (U + 4 * i, U + 4 * i + 3, 4096 * i))
        a("s_lshr_b32 s58, s2, 1"); a("s_lshl_b32 s58, s58, 15"); a("s_and_b32 s59, s2, 1"); a("s_lshl_b32 s59, s59, 7"); a("s_add_u32 s58, s58, s59")
        a("s_waitcnt lgkmcnt(0)")
        a("s_barrier")
        for i in range(4):
            a("ds_read_b128 v[%d:%d], v17 offset:%d" % (LP + 4 * i, LP + 4 * i + 3, 4096 * i))
        for i in range(4):
            a("s_add_u32 s59, s58, %d" % (8192 * i))
            a("s_waitcnt lgkmcnt(%d)" % (3 - i))
            a("buffer_store_dwordx4 v[%d:%d], v18, s[%d:%d], s59 offen sc1" % (LP + 4 * i, LP + 4 * i + 3, RD, RD + 3))
        self.mark(9)
        self.unstash("g1t", 20); self.unstash("g1f", 15)
        self.unstash("pfd", 30); self.unstash("pfw", 31)
        for tt in range(1, 4): a("v_add_u32 v%d, %d, v20" % (20 + tt, 32768 * tt))
        self.arrive(["s_lshr_b32 s58, s2, 5", "s_lshl_b32 s58, s58, 4", "s_and_b32 s59, s2, 1", "s_add_u32 s58, s58, s59", "s_lshl_b32 s58, s58, 7",
                     "s_add_u32 s60, s58, %d" % (C3 * 128), "v_lshlrev_b32 v7, 8, v2", "v_add_u32 v7, s60, v7"], nlanes=8)
        self.mark(10)

    def g2_dma(self, i, soff):
        fl = "nt" if "g2nt" in self.opt else "sc1" if "g2sc1" in self.opt else ""
        return "buffer_load_dwordx4 v%d, s[%d:%d], s%d offen offset:%d %s lds" % (8 + i, RE, RE + 3, soff, 1024 * i, fl)
    def g2_voffs(self):
        return ["v_add_u32 v%d, %d, v25" % (8 + i, 2048 * (16 * (i & 1) + 4 * (i >> 1)) - 1024 * i) for i in range(4)]

    def gemm1(self):
        a = self.a
        ACC, TOK, WF, PD = 32, 0, 128, 5
        def acc(ct, tt): return ACC + (ct * 4 + tt) * 4
        def wreg(F): return WF + 4 * (F % 7)
        def lreg(F):
            return 4 * F if F < 16 else 160 + 4 * (F - 16) if F < 20 else 204 + 4 * (F - 20)
        def foff(F, jh):
            kk, ct = F // 14, F % 14
            return (ct // 7) * 14336 + kk * 7168 + jh * 3584 + (ct % 7) * 32
        def tokload(slot, j):
            kk, tt = j >> 2, j & 3
            r = TOK + 32 * slot + 16 * kk + 4 * tt
            fl = "nt" if "g1tnt" in self.opt else "" if "g1tpl" in self.opt else "sc1"
            return "buffer_load_dwordx4 a[%d:%d], v%d, s[%d:%d], s78 offen offset:%d %s" % (r, r + 3, 20 + tt, RD, RD + 3, 1024 * kk, fl)
        def mfma(c, w, t): return "v_mfma_f32_16x16x32_bf16 v[%d:%d], a[%d:%d], a[%d:%d], v[%d:%d]" % (c, c + 3, w, w + 3, t, t + 3, c, c + 3)
        def dsr(q, tag, reg, addr, off):
            return lambda: (q.issue(tag), "ds_read_b64_tr_b16 a[%d:%d], v%d offset:%d" % (reg, reg + 1, addr, off))[1]
        def emit(x):
            if callable(x): x = x()
            if x: a(x)
        pf = "nopf2" not in self.opt
        npf = 2 if pf else 0
        def pfops():
            return ["buffer_load_dword v7, v30, s[%d:%d], 0 offen" % (RE, RE + 3), "buffer_load_dword v7, v31, s[%d:%d], 0 offen" % (RC, RC + 3)]
        def pfturn(u):
            return ["s_cmp_eq_u32 s92, %d" % (((u + 1) & 1) if self.pffast else u), "s_cselect_b32 s%d, %d, 0" % (RE + 2, 3584 * 2048), "s_cselect_b32 s%d, %d, 0" % (RC + 2, 1024 * 7168)]
        if pf:
            for i in range(4): a("s_mov_b32 s%d, s%d" % (RC + i, RA + i))
            a("s_mov_b32 s%d, 0" % (RC + 2)); a("s_mov_b32 s%d, 0" % (RE + 2))
        self.ws_srd(RB, WS_HH, 128 * 112 * 1024)
        a("s_lshl_b32 s58, s83, 4"); a("s_lshl_b32 s59, s%d, 1" % S_X); a("s_add_u32 s58, s58, s59"); a("s_lshl_b32 s58, s58, 7")
        a("s_add_u32 s60, s58, %d" % (C3 * 128))
        def zero_acc():
            self.shadow(self.sh_c3)
            self.unstash("g2w", 25)
            for c in range(4): self.unstash("g2f%d" % c, 26 + c)
            for r in range(32, 256, 2): a("v_pk_mov_b32 v[%d:%d], 0, 0" % (r, r + 1))
        self.wait(60, 2, 16, shadow=zero_acc)
        self.mark(11)
        for st in range(3):
            for j in range(8): a(tokload(st, j))
            a("s_add_u32 s78, s78, 2048")
        if pf:
            for op in pfops(): a(op)
        a("v_mov_b32 v16, v15")
        q0 = DSQ()
        for F in range(PD):
            for jh in range(2): emit(dsr(q0, ("c", F, jh), wreg(F) + 2 * jh, 16, foff(F, jh)))
        fine = "nofine" not in self.opt
        a("s_waitcnt vmcnt(%d) lgkmcnt(8)" % ((20 if fine else 16) + npf))
        self.mark(12)

        def stage(u, loads, bwait, q, side=False, first_wait=None, mode="n", adv_end=None, nextf=None):
            pfop = side and pf
            G = [[] for _ in range(112)]
            for F in range(28):
                Fn = F + PD
                if Fn < 28:
                    for jh in range(2): G[4 * F + jh].append(dsr(q, ("c", Fn, jh), wreg(Fn) + 2 * jh, 16, foff(Fn, jh)))
                elif mode == "n":
                    for jh in range(2): G[4 * F + jh].append(dsr(q, ("n", Fn - 28, jh), wreg(Fn) + 2 * jh, 16, (foff(nextf[Fn - 28][0], jh) + nextf[Fn - 28][1]) if nextf else foff(Fn - 28, jh)))
                if mode == "m":
                    for jh in range(2): G[4 * F + 2 + jh].append(dsr(q, ("l", F, jh), lreg(F) + 2 * jh, 17, foff(F, jh)))
                if F < 27: G[4 * F + 3].append(lambda F=F: q.wait(("c", F + 1, 1)))
                elif mode == "n": G[4 * F + 3].append(lambda: q.wait(("n", 0, 1)))
            if loads:
                G[1].append("s_add_u32 m0, s75, s74")
                G[16].append("s_add_u32 m0, m0, 4096")
                vm = [self.g1_dma(i) for i in range(7)] + [tokload((u + 3) % 4, j) for j in range(8)]
                if pfop: vm += pfops()
                for i, x in enumerate(vm): G[4 * i + 2].append(x)
                G[4 * 8].append("s_add_u32 s77, s77, %d" % (64 * 7168))
                G[4 * 9].append("s_add_u32 s75, s75, %d" % G1_STAGE); G[4 * 10].append("s_cmp_eq_u32 s75, %d" % (G1_STAGE * G1_NSLOT))
                G[4 * 11].append("s_cselect_b32 s75, 0, s75")
                G[4 * 16].append("s_add_u32 s78, s78, 2048")
                if pfop:
                    for i, x in enumerate(pfturn(u)): G[4 * (12 + i)].append(x)
                    if self.pffast:
                        if u == 1: G[4 * 17].append("v_add_u32 v30, %d, v30" % (320 * 2048)); G[4 * 18].append("v_add_u32 v31, %d, v31" % (128 * 7168))
                        if u == 3: G[4 * 17].append("v_add_u32 v30, %d, v30" % (-960 * 2048)); G[4 * 18].append("v_add_u32 v31, %d, v31" % (128 * 7168))
                    elif u == 3:
                        G[4 * 17].append("v_add_u32 v30, %d, v30" % (-640 * 2048)); G[4 * 18].append("v_add_u32 v31, %d, v31" % (256 * 7168))
            if mode == "n":
                G[4 * 19].append("s_add_u32 s76, s76, %d" % G1_STAGE); G[4 * 20].append("s_cmp_eq_u32 s76, %d" % (G1_STAGE * G1_NSLOT))
                G[4 * 21].append("s_cselect_b32 s76, 0, s76")
                if first_wait is not None and fine:
                    l = a.new_label("fk")
                    G[45].append("s_cmp_lg_u32 s80, 3")
                    G[47] += ["s_cbranch_scc1 %s" % l, "s_waitcnt vmcnt(%d)" % (16 + npf + 12), l + ":"]
                if first_wait is not None:
                    l = a.new_label("fw")
                    G[4 * 21 + 2].append("s_cmp_lg_u32 s80, 3")
                    G[4 * 22] += ["s_cbranch_scc1 %s" % l, "s_waitcnt vmcnt(%d)" % first_wait, l + ":"]
                G[4 * 22 + 2] += ["v_add_u32 v16, s76, v15", "s_waitcnt vmcnt(%d)" % bwait]
                G[4 * 22 + 3].insert(0, "s_barrier")
            if adv_end:
                for g, x in adv_end: G[g].append(x)
            k = 0
            for F in range(28):
                kk, ct = F // 14, F % 14
                for tt in range(4):
                    a(mfma(acc(ct, tt), wreg(F), TOK + 32 * u + 16 * kk + 4 * tt))
                    for x in G[k]: emit(x)
                    k += 1
            for key in list(q.pos):
                if key[0] == "c": del q.pos[key]
            for key in list(q.pos):
                if key[0] == "n": q.pos[("c",) + key[1:]] = q.pos.pop(key)
        nst = 15 + npf
        a("s_mov_b32 s80, 3")
        loop = a.new_label("g1"); a.label(loop)
        q = DSQ()
        for F in range(PD):
            for jh in range(2): q.issue(("c", F, jh))
        q.done = 2
        for u in range(4):
            stage(u, True, npf + 2 * nst, q, side=True, first_wait=(8 + npf + nst) if u == 0 else None,
                  adv_end=[(4 * 23 + 2, "s_sub_u32 s80, s80, 1"), (4 * 26 + 2, "s_cmp_lg_u32 s80, 0")] if u == 3 else None)
        a("s_cbranch_scc1 %s" % loop)
        self.mark(13)
        if "xs" in self.opt: a("s_mov_b32 s100, 0"); a("s_mov_b32 s101, 0")
        a("s_mov_b32 s%d, %d" % (RE + 2, 3584 * 2048))
        def run(c, sts): return [(st, kk, ct) for st in sts for kk in range(2) for ct in (c, 7 + c)]
        seq = run(0, (13, 14)) + run(1, (13, 14)) + run(0, (15,)) + run(1, (15,))
        done = {0: 20, 1: 24}
        for c in range(2, 7): seq += run(c, (13, 14, 15)); done[c] = len(seq)
        stage(0, True, npf + 15, q, nextf=[(14 * kk + ct, (st - 13) * G1_STAGE) for (st, kk, ct) in seq[:PD]])
        self.mark(14)
        def capture(fn):
            keep = self.a; tmp = Asm(); self.a = tmp; fn(); self.a = keep
            return [l.strip() for l in tmp.lines]
        st_ = self.stashed
        pre = self.g2_voffs() + ["v_mov_b32 v17, v15", "v_accvgpr_read_b32 v4, a%d" % st_["g1es"],
               "s_mul_i32 s58, s73, %d" % (112 * 1024), "s_mul_i32 s59, s72, 7", "s_add_u32 s60, s59, 1", "s_lshr_b32 s60, s60, 1",
               "s_lshl_b32 s60, s60, 10", "s_add_u32 s60, s60, s58", "s_and_b32 s61, s72, 1", "s_mov_b32 s62, 3072", "s_cmp_eq_u32 s61, 1", "s_cselect_b32 s62, -512, s62",
               "s_add_u32 s62, s62, s60"] + capture(self.g2_pre)
        def glue(L):
            out = []; i = 0
            while i < len(L):
                if i + 1 < len(L) and isinstance(L[i], str) and (L[i + 1].startswith("s_addc") or L[i + 1].startswith("s_cselect")):
                    out.append(L[i] + "\n" + L[i + 1]); i += 2
                else: out.append(L[i]); i += 1
            return out
        pre = glue(pre)
        vq = VMQ()
        def mul(c, tt):
            g, u = acc(c, tt), acc(7 + c, tt)
            return ["v_mul_f32 v%d, v%d, v%d" % (g + i, g + i, u + i) for i in range(4)]
        def cvt(c, tt):
            g = acc(c, tt); u = acc(7 + c, tt & ~1) + 2 * (tt & 1)
            return ["v_cvt_pk_bf16_f32 v%d, v%d, v%d" % (u, g, g + 1), "v_cvt_pk_bf16_f32 v%d, v%d, v%d" % (u + 1, g + 2, g + 3)]
        def out(c, tp):
            u = acc(7 + c, tp)
            base, off = (62, 0) if c == 6 else (60, 1024 * (c >> 1) + 512 * (c & 1))
            return ["s_add_u32 s63, s%d, %d" % (base, off + tp * 112 * 1024),
                    "v_permlane16_swap_b32 v%d, v%d" % (u, u + 2), "v_permlane16_swap_b32 v%d, v%d" % (u + 1, u + 3),
                    vq.op(("h", c, tp), "buffer_store_dwordx4 v[%d:%d], v4, s[%d:%d], s63 offen sc1" % (u, u + 3, RB, RB + 3))]
        held = []
        def epi(c, hold=False):
            o0, o2 = out(c, 0), out(c, 2)
            if hold:
                held.extend([o0[0], o0[3], o2[0], o2[3]]); o0 = o0[1:3]; o2 = ["s_nop 1"] + o2[1:3]
            return mul(c, 0) + mul(c, 1) + cvt(c, 0) + cvt(c, 1) + mul(c, 2) + mul(c, 3) + o0 + cvt(c, 2) + cvt(c, 3) + o2
        N = len(seq)
        G = [[] for _ in range(4 * N)]
        def faddr(n):
            st, kk, ct = seq[n]
            return (16, 0) if st == 13 else (16, G1_STAGE) if st == 14 else (17, 0)
        for n in range(N):
            m = n + PD
            if m < N:
                st, kk, ct = seq[m]; reg, off = faddr(m)
                for jh in range(2): G[4 * n + jh].append(dsr(q, ("c", m, jh), wreg(m) + 2 * jh, reg, off + foff(14 * kk + ct, jh)))
            if n < N - 1: G[4 * n + 3].append(lambda n=n: q.wait(("c", n + 1, 1)))
        nb = 16 - PD - 1
        assert all(x[0] != 15 for x in seq[:16])
        G[4 * nb + 2].append(lambda: "s_waitcnt vmcnt(%d)" % vq.n); G[4 * nb + 3].insert(0, "s_barrier")
        ex = []
        for st in range(4):
            ex.append("s_add_u32 m0, s88, %d" % G2_SLOT[st])
            for i in range(4): ex.append(vq.op(("w", st, i), self.g2_dma(i, G2_ROW[st])))
        exn = self.optv("exn", 4)
        ex0 = self.optv("ex0", 3)
        if ex0 <= nb:
            G[4 * (ex0 - 1) + 3].insert(0, "s_barrier")
        for i, x in enumerate(ex): G[4 * (ex0 + (i * exn) // 5) + (2 if i % 5 else 1)].append(x)
        nA, nP, nC, nB = self.nA0, self.nPoll, self.nChk, self.nA1
        G[4 * nA + 2] += [lambda: vq.wait(("h", 1, 2)), vq.op("a0", "buffer_atomic_add v6, v5, s[%d:%d], 0 offen" % (RS, RS + 3))]
        G[4 * nP + 2].append(vq.op("p0", "buffer_load_dword v31, v30, s[%d:%d], 0 offen sc1" % (RS, RS + 3)))
        slow = a.new_label("c4s"); back = a.new_label("c4b")
        G[4 * nC + 1].append(lambda: vq.wait("p0"))
        G[4 * nC + 2] += ["v_cmp_gt_u32 vcc, 16, v31", "s_cbranch_vccnz %s" % slow, back + ":"]
        self.slow.append((slow, back, "0"))
        G[4 * nB + 2] += [lambda: vq.wait(("h", 3, 2)), vq.op("a1", "buffer_atomic_add v6, v5, s[%d:%d], s79 offen" % (RS, RS + 3))]
        def place(ops, g0):
            g = g0; k = 0
            while k < len(ops) and g < 4 * N:
                if len([x for x in G[g] if not (isinstance(x, str) and x.endswith(":"))]) < 2: G[g].append(ops[k]); k += 1
                else: g += 1
            return ops[k:], g + 1
        rest, gp = place(pre, 0); assert not rest and gp <= 4 * 20, gp
        tok = []
        for st in range(4):
            tok.append("s_lshr_b32 s78, s%d, 6" % G2_ROW[st])
            for j in range(4): tok.append(vq.op(("t", st, j), self.g2_tokload(st, j)))
        tkn = self.optv("tkn", 4)
        gt = 0
        for i, x in enumerate(tok):
            gt = 4 * (nC + 1 + i // tkn) + ([2], [0, 2], [0, 1, 2], [0, 1, 2, 3])[tkn - 1][i % tkn]
            G[gt].append(x)
        nhold = self.optv("hold", 0)
        def zero(r0): return ["v_pk_mov_b32 v[%d:%d], 0, 0" % (r, r + 1) for r in range(r0, r0 + 16, 2)]
        g = 0
        left = []
        for c in range(6):
            rest, g = place(epi(c, hold=c >= 6 - nhold), max(g - 1, 4 * done[c] + 1))
            assert not rest or c == 5
            left += rest
            if c < 4: rest, g = place(zero(acc(c, 0)), g - 1); assert not rest
        rest, g = place(held, max(gt + 1, g - 1) if not left else 4 * N)
        left += rest
        k = 0
        for n in range(N):
            st, kk, ct = seq[n]
            for tt in range(4):
                a(mfma(acc(ct, tt), wreg(n), TOK + 32 * (st % 4) + 16 * kk + 4 * tt))
                for x in G[k]: emit(x)
                k += 1
            if "xm" in self.opt and n in (nA, nC, 23, 47): self.mark({nA: 26, nC: 27, 23: 24, 47: 25}[n])
        for x in left + epi(6): emit(x)
        self.mark(15)
        self.vq = vq

    def g2_pre(self):
        a = self.a
        self.unstash("g2t0", 20); self.unstash("g2t1", 21); self.unstash("g2o4", 23)
        self.unstash("g2tab", 25); self.unstash("c4a", 5); self.unstash("c4p", 30)
        ks = 1024 if "x2nat" in self.opt else 7168
        a("v_bfe_u32 v22, v2, 3, 1"); a("v_mul_u32_u24 v22, 0x%x, v22" % 16320); a("v_sub_u32 v22, v23, v22")
        a("v_add_u32 v18, %d, v20" % ks); a("v_add_u32 v19, %d, v21" % ks); a("v_mov_b32 v6, 1")
        self.in_srd(RD, P_OUT, 4194304)
        self.ws_srd(RA, WS_XCH, 1024 * self.xstr)
        self.ws_srd(RC, WS_H, 4194304)
        for c in range(4):
            a("v_add_u32 v%d, %d, v%d" % (12 + c, G2_SLOT[5], 26 + c)); a("v_add_u32 v%d, %d, v%d" % (26 + c, G2_BASE, 26 + c))
        a("v_readlane_b32 s75, v25, 4"); a("s_mov_b32 s76, 5"); a("s_mov_b32 s79, %d" % (128 * 128)); a("s_mov_b32 s77, %d" % (256 * 128))
    def g2_tokload(self, slot, j):
        kk, tt = j >> 1, j & 1
        r = G2_TOK[slot] + 8 * kk + 4 * tt
        fl = "nt" if "g2tnt" in self.opt else "" if "g2tpl" in self.opt else "sc1"
        return "buffer_load_dwordx4 a[%d:%d], v%d, s[%d:%d], s78 offen %s" % (r, r + 3, (18 if kk else 20) + tt, RB, RB + 3, fl)
    def gemm2(self):
        a = self.a
        ACC, HR, TOK, WF, PD, NST = 32, 96, 0, G2_WF, 7, 28
        def acc(ct, tt): return ACC + (ct * 2 + tt) * 4
        tokload = self.g2_tokload
        def fk(F): return (F >> 2) & 1, (F & 3) + (0 if F >= 8 else 4)
        def fread(slot, F, jh, ring=None):
            kk, ct = fk(F)
            r = WF + 4 * ((F if ring is None else ring) % 8) + 2 * jh
            base, so = (12, G2_SLOT[slot] - G2_SLOT[5]) if slot in (3, 5) else (26, G2_SLOT[slot] - G2_BASE)
            assert 0 <= so <= 49152
            return "ds_read_b64_tr_b16 a[%d:%d], v%d offset:%d" % (r, r + 1, base + (ct & 3), so + (2 * kk + (ct >> 2)) * 4096 + jh * 2048)
        a("s_barrier")
        for F in range(PD):
            for jh in range(2): a(fread(0, F, jh))
        a("s_add_u32 m0, s88, %d" % G2_SLOT[4])
        a(self.vq.wait(("t", 1, 3)) + " lgkmcnt(10)")
        self.mark(18)
        vq = self.vq
        def stage(u, loads, bwait, last=False, extra=None, tailops=None, first=None):
            G = [[] for _ in range(32)]
            nods = "x2nods" in self.opt
            for F in range(16):
                Fn = F + PD
                if not nods and not (last and Fn >= 16):
                    sl = u if Fn < 16 else (u + 1) % 6
                    G[2 * F].append(fread(sl, Fn % 16, 0)); G[2 * F + 1].append(fread(sl, Fn % 16, 1))
                if F & 1:
                    if not last: G[2 * F + 1].append("s_waitcnt lgkmcnt(10)")
                    elif F < 15:
                        issued = min(F + PD, 15); need = F + 2
                        G[2 * F + 1].append("s_waitcnt lgkmcnt(%d)" % max(0, 2 * (issued - need)))
            vm = []
            def check(g, wait, soff):
                slow = a.new_label("c4t"); back = a.new_label("c4u")
                G[g].append(wait); G[g + 1].append("v_cmp_gt_u32 vcc, 16, v31"); G[g + 2] += ["s_cbranch_vccnz %s" % slow, back + ":"]
                self.slow.append((slow, back, soff))
            def poll(soff): return "buffer_load_dword v31, v30, s[%d:%d], %s offen sc1" % (RS, RS + 3, soff)
            if loads:
                vm = [self.g2_dma(i, 75) for i in range(4)] + [tokload((u + 4) % 6, j) for j in range(4)]
                if "x2nodma" in self.opt: vm[:4] = ["s_nop 0"] * 4
                if "x2notok" in self.opt: vm[4:] = ["s_nop 0"] * 4
                G[1].append("s_lshr_b32 s78, s75, 6")
                G[9].append("v_readlane_b32 s75, v25, s76"); G[13].append("s_add_u32 s76, s76, 1")
                G[29].append("s_add_u32 m0, s88, %d" % G2_SLOT[(u + 5) % 6])
                if first is not None:
                    vm = [vq.op(("L", first + 4, i), x) for i, x in enumerate(vm)]
                    bwait = lambda: vq.wait(("L", first + 1, 7) if first >= 3 else ("t", first + 1, 3))
                    if first == 1: G[15].append(vq.op("p1", poll("s79")))
                    if first == 4: check(5, lambda: vq.wait("p1"), "s79")
                    if first == self.optv("nD", 2):
                        G[18] += [lambda: vq.wait(("h", 6, 2))]; G[20].append(vq.op("a2", "buffer_atomic_add v6, v5, s[%d:%d], s77 offen" % (RS, RS + 3)))
                else:
                    if u == 3: G[15].append(poll("s77"))
                    if u == 0: check(5, "s_waitcnt vmcnt(19)", "s77")
            if extra: vm = extra
            for i, x in enumerate(vm): G[2 * i].append(x)
            if not last:
                G[16].append(bwait if callable(bwait) else "s_waitcnt vmcnt(%d)" % bwait); G[17].append("s_barrier")
            if tailops:
                for g, x in tailops: G[g].append(x)
            k = 0
            for F in range(16):
                kk, ct = fk(F)
                w = WF + 4 * (F % 8)
                for tt in range(2):
                    t = G2_TOK[u] + 8 * kk + 4 * tt; c = acc(ct, tt)
                    if "x2nomfma" not in self.opt:
                        a("v_mfma_f32_16x16x32_bf16 v[%d:%d], a[%d:%d], a[%d:%d], v[%d:%d]" % (c, c + 3, w, w + 3, t, t + 3, c, c + 3))
                    for x in G[k]: a(x() if callable(x) else x)
                    k += 1
        for u in range(6):
            stage(u, True, None, first=u)
            if "xm3" in self.opt: self.mark([16, 17, 24, 25, 26, 27][u])
        a("s_mov_b32 s81, 3")
        loop = a.new_label("g2"); a.label(loop)
        for u in range(6):
            stage(u, True, [25, 24, 24, 25, 25, 25][u], tailops=[(22, "s_sub_u32 s81, s81, 1"), (30, "s_cmp_lg_u32 s81, 0")] if u == 5 else None)
        a("s_cbranch_scc1 %s" % loop)
        a("s_mov_b32 s60, 32768")
        hl = ["buffer_load_dwordx4 v[%d:%d], v23, s[%d:%d], %s offen offset:%d sc1" % (HR + 4 * i, HR + 4 * i + 3, RC, RC + 3, "s60" if i >> 1 else "0", 64 * (i & 1)) for i in range(4)]
        order = {0: "a0 a1 a2 a3 b0 b1 b2 b3", 1: "a0 a1 b0 a2 a3 b1 b2 b3", 2: "a0 a1 b0 a2 b1 a3 b2 b3", 3: "a0 b0 a1 a2 b1 a3 b2 b3",
                 4: "a0 b0 a1 a2 a3 b1 b2 b3"}[self.optv("ord", 1)].split()
        seq = [(int(h[1]), F + (8 if h[0] == "b" else 0)) for h in order for F in range(8)]
        aend = 8 * (max(i for i, h in enumerate(order) if h[0] == "a") + 1)
        N = len(seq)
        G = [[] for _ in range(2 * N)]
        q = DSQ()
        for n in range(PD):
            for jh in range(2): q.issue((n, jh))
        q.done = 4
        def rd(m, jh): return lambda: (q.issue((m, jh)), fread(seq[m][0], seq[m][1], jh, ring=m))[1]
        for n in range(N):
            m = n + PD
            if m < N: G[2 * n].append(rd(m, 0)); G[2 * n + 1].append(rd(m, 1))
            if n & 1 and n < N - 1: G[2 * n + 1].append(lambda n=n: q.wait((min(n + 2, N - 1), 1)))
        hpos = [2 * (1 + i) for i in range(len(hl))]
        for u in (1, 2, 3):
            n = min(i for i, x in enumerate(seq) if x[0] == u) - PD - 1
            cnt = 8 * (3 - u) + len([g for g in hpos if g < 2 * n])
            G[2 * n].append("s_waitcnt vmcnt(%d)" % cnt); G[2 * n + 1].insert(0, "s_barrier")
        for g, x in zip(hpos, hl): G[g].append(x)
        xa = ["s_lshl_b32 s58, s2, 2", "s_add_u32 s58, s58, s%d" % S_WAVE, "s_mul_i32 s61, s58, %d" % self.xstr, "s_xor_b32 s58, s58, 4",
              "s_mul_i32 s62, s58, %d" % self.xstr, "s_add_u32 s63, s62, 4096", "s_add_u32 s58, s61, 4096"]
        for i, x in enumerate(xa): G[2 * (9 + i) + 1].append(x)
        if self.x32:
            for e in range(8):
                c = ACC + 32 + 4 * e
                G[2 * aend + self.optv("xsp", 1) * e + 1].append("buffer_store_dwordx4 v[%d:%d], v24, s[%d:%d], s%d offen offset:%d sc1" % (c, c + 3, RA, RA + 3, 58 if e >> 2 else 61, 1024 * (e & 3)))
        else:
            g = 2 * (aend - 1)
            for p_ in range(4):
                c = ACC + 32 + 8 * p_
                ops = ["v_cvt_pk_bf16_f32 v%d, v%d, v%d" % (c + i, c + 2 * i, c + 2 * i + 1) for i in range(4)]
                ops.append("buffer_store_dwordx4 v[%d:%d], v24, s[%d:%d], s61 offen offset:%d sc1" % (c, c + 3, RA, RA + 3, 1024 * p_))
                g = max(g, 2 * (aend - 4 + p_) + 6)
                for x in ops:
                    while len(G[g]) >= 2: g += 1
                    G[g].append(x)
                g += self.optv("xsp", 1)
        k = 0
        if "xm4" in self.opt: self.mark(24)
        for n in range(N):
            if "xm4" in self.opt and n in (16, 32, 48): self.mark({16: 25, 32: 26, 48: 27}[n])
            u, F = seq[n]; kk, ct = fk(F)
            w = WF + 4 * (n % 8)
            for tt in range(2):
                t = G2_TOK[u] + 8 * kk + 4 * tt; c = acc(ct, tt)
                a("v_mfma_f32_16x16x32_bf16 v[%d:%d], a[%d:%d], a[%d:%d], v[%d:%d]" % (c, c + 3, w, w + 3, t, t + 3, c, c + 3))
                for x in G[k]:
                    x = x() if callable(x) else x
                    if x: a(x)
                k += 1
        self.mark(19)
        R = 112
        NX = 8 if self.x32 else 4
        def xloads():
            for e in range(NX):
                a("buffer_load_dwordx4 v[%d:%d], v24, s[%d:%d], s%d offen offset:%d sc1" % (R + 4 * e, R + 4 * e + 3, RA, RA + 3, 62 + (e >> 2), 1024 * (e & 3)))
        def residual():
            for i in range(4):
                u = HR + 4 * i
                a("v_permlane16_swap_b32 v%d, v%d" % (u, u + 2)); a("v_permlane16_swap_b32 v%d, v%d" % (u + 1, u + 3))
            for e in list(range(8)):
                ct, tt = e >> 1, e & 1
                c = ACC + 4 * e; r = HR + 4 * (2 * tt + (ct >> 1)) + 2 * (ct & 1)
                a("v_lshlrev_b32 v4, 16, v%d" % r); a("v_and_b32 v5, s%d, v%d" % (S_MASK, r))
                a("v_lshlrev_b32 v6, 16, v%d" % (r + 1)); a("v_and_b32 v7, s%d, v%d" % (S_MASK, r + 1))
                for i in (0, 2): a("v_pk_add_f32 v[%d:%d], v[%d:%d], v[%d:%d]" % (c + i, c + i + 1, c + i, c + i + 1, 4 + i, 5 + i))
        if "reslast" not in self.opt:
            a("s_waitcnt vmcnt(%d)" % NX); residual(); xloads()
        else:
            xloads()
            a("s_waitcnt vmcnt(%d)" % (2 * NX))
            residual()
        self.mark(20)
        ok = a.new_label("xgo"); lp = a.new_label("xpl")
        a("s_mov_b32 s59, 0")
        a.label(lp)
        a("s_waitcnt vmcnt(0)")
        a("v_max3_u32 v4, v%d, v%d, v%d" % (R, R + 1, R + 2))
        for i in range(3, 4 * NX - 1, 2): a("v_max3_u32 v4, v4, v%d, v%d" % (R + i, R + i + 1))
        a("v_max_u32 v4, v4, v%d" % (R + 4 * NX - 1))
        a("v_cmp_eq_u32 vcc, -1, v4")
        a("s_add_u32 s59, s59, 1"); a("s_cmp_gt_u32 s59, %d" % SPIN_MAX); a("s_cbranch_scc1 %s" % ok)
        a("s_cbranch_vccz %s" % ok)
        xloads()
        a("s_branch %s" % lp)
        a.label(ok)
        self.mark(21)
        units = [(tt, m) for tt in range(2) for m in range(2)]
        def fin(i):
            tt, m = units[i]; up = HR + 4 * i
            a("v_permlane16_swap_b32 v%d, v%d" % (up, up + 2)); a("v_permlane16_swap_b32 v%d, v%d" % (up + 1, up + 3))
            fl = "" if "outplain" in self.opt else " nt" if "outnt" in self.opt else " sc0 sc1" if "outsc01" in self.opt else " sc1 nt" if "outsc1nt" in self.opt else " sc0 sc1 nt" if "outall" in self.opt else " sc1"
            a("buffer_store_dwordx4 v[%d:%d], v23, s[%d:%d], %s offen offset:%d%s" % (up, up + 3, RD, RD + 3, "s60" if tt else "0", 64 * m, fl))
        full = "outhalf" not in self.opt
        def fin_pair(tt):
            u0, u1 = HR + 8 * tt, HR + 8 * tt + 4
            for u in (u0, u1):
                a("v_permlane16_swap_b32 v%d, v%d" % (u, u + 2)); a("v_permlane16_swap_b32 v%d, v%d" % (u + 1, u + 3))
            a("s_nop 0")
            for d in range(4): a("v_mov_b32 v%d, v%d" % (4 + d, u0 + d))
            for d in range(4): a("v_mov_b32_dpp v%d, v%d row_ror:8 row_mask:0xf bank_mask:0xc" % (u0 + d, u1 + d))
            for d in range(4): a("v_mov_b32_dpp v%d, v%d row_ror:8 row_mask:0xf bank_mask:0x3" % (u1 + d, 4 + d))
            fl = "" if "outplain" in self.opt else " nt" if "outnt" in self.opt else " sc1"
            a("buffer_store_dwordx4 v[%d:%d], v22, s[%d:%d], %s offen%s" % (u0, u0 + 3, RD, RD + 3, "s60" if tt else "0", fl))
            a("buffer_store_dwordx4 v[%d:%d], v22, s[%d:%d], %s offen%s" % (u1, u1 + 3, RD, RD + 3, "s62" if tt else "s61", fl))
        if full: a("s_mov_b32 s61, 16384"); a("s_mov_b32 s62, 49152")
        for i, (tt, m) in enumerate(units):
            u = HR + 4 * i
            for h in range(2):
                e = 2 * (2 * m + h) + tt
                c = ACC + 4 * e; r = R + 4 * e
                if self.x32:
                    for j in range(4): a("v_add_f32 v%d, v%d, v%d" % (c + j, c + j, r + j))
                else:
                    r = R + 4 * (e >> 1) + 2 * (e & 1)
                    a("v_lshlrev_b32 v4, 16, v%d" % r); a("v_and_b32 v5, s%d, v%d" % (S_MASK, r))
                    a("v_lshlrev_b32 v6, 16, v%d" % (r + 1)); a("v_and_b32 v7, s%d, v%d" % (S_MASK, r + 1))
                    for j in (0, 2): a("v_pk_add_f32 v[%d:%d], v[%d:%d], v[%d:%d]" % (c + j, c + j + 1, c + j, c + j + 1, 4 + j, 5 + j))
                a("v_cvt_pk_bf16_f32 v%d, v%d, v%d" % (u + 2 * h, c, c + 1)); a("v_cvt_pk_bf16_f32 v%d, v%d, v%d" % (u + 2 * h + 1, c + 2, c + 3))
            if full:
                if i == 2: pending = 0
                if i == 2: fin_pair(0)
            elif i > 0: fin(i - 1)
        a("s_nop 1")
        if full: fin_pair(1)
        else: fin(3)
        self.mark(22)

    def finish(self, name):
        a = self.a
        if self.diag:
            a("s_waitcnt vmcnt(0) lgkmcnt(0)")
            self.mark(23)
            a("s_memrealtime s[92:93]"); a("s_waitcnt lgkmcnt(0)")
            a("v_accvgpr_read_b32 v1, a255"); a("s_nop 1")
            if "xs" in self.opt: a("v_writelane_b32 v1, s100, 54"); a("v_writelane_b32 v1, s101, 55")
            for i, s in enumerate((94, 95, 96, 97, 92, 93)):
                a("v_writelane_b32 v1, s%d, %d" % (s, 56 + i))
            self.ws_srd(RA, STAMP, 256 * 1024)
            a("s_lshl_b32 s58, s2, 10"); a("s_lshl_b32 s59, s%d, 8" % S_WAVE); a("s_add_u32 s58, s58, s59")
            a("v_lshlrev_b32 v3, 2, v2")
            a("buffer_store_dword v1, v3, s[%d:%d], s58 offen" % (RA, RA + 3))
            if "dbgspan" in self.opt:
                self.in_srd(RE, P_DBG, 256)
                nd = a.new_label("nodbg")
                a("s_cmp_lg_u32 s%d, 0" % S_WAVE); a("s_cbranch_scc1 %s" % nd)
                a("s_not_b32 s58, s94"); a("v_mov_b32 v4, s58"); a("v_mov_b32 v5, 16"); a("v_mov_b32 v6, s92"); a("v_mov_b32 v7, 20")
                a("s_mov_b64 exec, 1")
                a("buffer_atomic_umax v4, v5, s[%d:%d], 0 offen" % (RE, RE + 3))
                a("buffer_atomic_umax v6, v7, s[%d:%d], 0 offen" % (RE, RE + 3))
                a("s_mov_b64 exec, -1")
                a("s_cmp_lg_u32 s2, 0"); a("s_cbranch_scc1 %s" % nd)
                a("v_mov_b32 v4, 0")
                for i, m in enumerate((2, 3, 6, 8, 11, 12, 14, 17, 19, 23)):
                    a("v_readlane_b32 s58, v1, %d" % (2 * m)); a("s_nop 3"); a("s_sub_u32 s58, s58, s96"); a("v_writelane_b32 v4, s58, %d" % (6 + i)); a("s_nop 1")
                a("v_lshlrev_b32 v5, 2, v2")
                a("s_mov_b64 exec, 0xffc0")
                a("buffer_store_dword v4, v5, s[%d:%d], 0 offen" % (RE, RE + 3))
                a("s_mov_b64 exec, -1")
                a.label(nd)
        a.label(name + "_done")
        a("s_endpgm")
        for slow, back, soff in self.slow:
            a.label(slow)
            a("s_mov_b32 s80, 0")
            a.label(slow + "l")
            a("buffer_load_dword v31, v30, s[%d:%d], %s offen sc1" % (RS, RS + 3, soff))
            a("s_waitcnt vmcnt(0)")
            a("v_cmp_gt_u32 vcc, 16, v31")
            if "xs" in self.opt: a("s_add_u32 s%d, s%d, 1" % ((100, 100) if soff == "0" else (101, 101)))
            a("s_add_u32 s80, s80, 1"); a("s_cmp_gt_u32 s80, %d" % SPIN_MAX); a("s_cbranch_scc1 %s" % back)
            a("s_cbranch_vccnz %sl" % slow)
            a("s_branch %s" % back)
        if self.slow: a("s_endpgm")
    def build(self, upto=5):
        name = KNAME + "_kernel"
        self.entry(name)
        self.prep()
        if upto >= 2: self.conv()
        if upto >= 3:
            self.g1_setup(); self.ln()
        if upto >= 4: self.gemm1()
        if upto >= 5: self.gemm2()
        self.finish(name)
        hdr = "; persistent single-launch kernel generated by gen/fused.py (hand-written generator)\n"
        hdr += "; @launch grid=(256,1,1) block=(256,1,1) lds=%d\n" % LDS_TOTAL
        hdr += '.amdgcn_target "amdgcn-amd-amdhsa--gfx950"\n'
        return hdr + self.a.text() + kernel_desc(name, 512, 102, 256)

if __name__ == "__main__":
    import sys
    out = sys.argv[1]
    opt = sys.argv[2] if len(sys.argv) > 2 else ""
    diag = "diag" in opt.split(",")
    upto = 5
    for t in opt.split(","):
        if t.startswith("upto"): upto = int(t[4:])
    open(out, "w").write(Gen(opt, diag).build(upto))
```
